```python
import torch

def _softmax(x, axis=-1):
    return torch.softmax(x, dim=axis)
def _gelu(x):
    return torch.nn.functional.gelu(x, approximate="tanh")
def _silu(x):
    return torch.nn.functional.silu(x)
def _sigmoid(x):
    return torch.sigmoid(x)
def _layernorm(x, axis=-1, eps=1e-5):
    m = x.mean(dim=axis, keepdim=True)
    v = x.var(dim=axis, keepdim=True, unbiased=False)
    return (x - m) / torch.sqrt(v + eps)
def _scatter_add(tgt, idx, src, axis=0):
    return tgt.clone().index_add_(axis, idx, src)
def _segment_sum(src, seg, n):
    out = torch.zeros((n,) + src.shape[1:], dtype=src.dtype)
    return out.index_add_(0, seg, src)
def _pad(x, pw):
    flat = tuple(v for pair in reversed(pw) for v in pair)
    return torch.nn.functional.pad(x, flat)

kernel_name = 'parallel_sum__linear_attn_block__dense_activation_silu__prompt'

def setup_inputs():

    _w = (lambda a: (lambda t: t.to(torch.bfloat16) if t.is_floating_point() else t)(torch.as_tensor(a)))
    def _A_setup():
        B, S, D = 1, 2048, 576
        return {
            "x": _w((lambda *s: torch.randn(*s, dtype=torch.bfloat16) * 0.05)(B, S, D)),
            "wqkv": _w((lambda *s: torch.randn(*s, dtype=torch.bfloat16) * 0.1)(D, 3 * D)),
            "wo": _w((lambda *s: torch.randn(*s, dtype=torch.bfloat16) * 0.05)(D, D)),
        }
    _A_in = _A_setup()

    def _B_setup():
        B, S, D, F = 1, 2048, 576, 4608
        return {
            "x": _w((lambda *s: torch.randn(*s, dtype=torch.bfloat16) * 0.05)(B, S, D)),
            "w1": _w((lambda *s: torch.randn(*s, dtype=torch.bfloat16) * 0.8)(D, F) * (D ** -0.5)),
            "w2": _w((lambda *s: torch.randn(*s, dtype=torch.bfloat16) * 0.1)(F, D) * (F ** -0.5)),
        }
    _B_in = _B_setup()

    return {
        "A_x": _A_in["x"],
        "A_wqkv": _A_in["wqkv"],
        "A_wo": _A_in["wo"],
        "B_x": _B_in["x"],
        "B_w1": _B_in["w1"],
        "B_w2": _B_in["w2"],
    }

def reference(A_x, A_wqkv, A_wo, B_x, B_w1, B_w2):
    def _A_ref(x, wqkv, wo):
        B, S, D = x.shape
        H = 32; Dh = D // H
        qkv = (lambda x, *d: x.permute(*d))((x @ wqkv).reshape(B, S, 3, H, Dh), 2, 0, 3, 1, 4)
        q, k, v = qkv[0], qkv[1], qkv[2]
        phi = lambda t: torch.where(t > 0, t + 1, torch.exp(t)) + 1e-6
        pq, pk = phi(q), phi(k)
        kv = torch.einsum("bhsd,bhse->bhde", pk, v)
        z = torch.einsum("bhsd->bhd", pk)
        num = torch.einsum("bhqd,bhde->bhqe", pq, kv)
        den = torch.einsum("bhqd,bhd->bhq", pq, z)[..., None] + 1e-6
        o = num / den
        return (lambda x, *d: x.permute(*d))(o, 0, 2, 1, 3).reshape(B, S, D) @ wo

    def _B_ref(x, w1, w2):
        h = torch.einsum("bsd,df->bsf", x, w1)
        h = _silu(h)
        out = torch.einsum("bsf,fd->bsd", h, w2)
        return out

    x = A_x
    xn = _layernorm(x, axis=-1)
    return x + _A_ref(xn, A_wqkv, A_wo) + _B_ref(xn, B_w1, B_w2)
```

```python
import sys, math
from asmlib import *

NAME = "parallel_sum__linear_attn_block__dense_activation_silu__prompt"
S, D, F = 2048, 576, 4608
PART_BYTES = S * D * 2
NPART = 16
WS_KV = 40 << 20
LOG2E = 0x3fb8aa3b
EPS_LN = 0x3727c5ac
INV576 = 0x3ae38e39

class Ctr:
    def __init__(self, maxv):
        self.ops = []; self.done = 0; self.maxv = maxv
    def issue(self, tag):
        self.ops.append(tag)
    def need(self, tags):
        if not isinstance(tags, (list, set, tuple)) or (isinstance(tags, tuple) and not isinstance(tags[0], tuple)):
            tags = [tags]
        idx = -1
        for i, t in enumerate(self.ops):
            if t in tags: idx = max(idx, i)
        for t in tags:
            assert t in self.ops, ("tag not issued", t)
        if idx < self.done: return None
        n = len(self.ops) - 1 - idx
        n = min(n, self.maxv)
        self.done = max(self.done, len(self.ops) - n)
        return n
    def all(self):
        self.done = len(self.ops)

class K(Asm):
    def __init__(self):
        super().__init__()
        self.vm = Ctr(63); self.lg = Ctr(15)
    def wait(self, vm=None, lg=None):
        a = self.vm.need(vm) if vm else None
        b = self.lg.need(lg) if lg else None
        parts = []
        if a is not None: parts.append("vmcnt(%d)" % a)
        if b is not None: parts.append("lgkmcnt(%d)" % b)
        if parts: self("s_waitcnt " + " ".join(parts))
    def waitall(self):
        self("s_waitcnt vmcnt(0) lgkmcnt(0)"); self.vm.all(); self.lg.all()

def srd(A, sreg, lo, hi, nbytes):
    A("s_mov_b32 s%d, s%d" % (sreg, lo))
    A("s_and_b32 s%d, s%d, 0xffff" % (sreg + 1, hi))
    A("s_mov_b32 s%d, 0x%x" % (sreg + 2, nbytes))
    A("s_mov_b32 s%d, 0x20000" % (sreg + 3))

def srd_off(A, sreg, lo, hi, soff, total, tmp):
    A("s_add_u32 s%d, s%d, s%d" % (sreg, lo, soff))
    A("s_addc_u32 s%d, s%d, 0" % (sreg + 1, hi))
    A("s_and_b32 s%d, s%d, 0xffff" % (sreg + 1, sreg + 1))
    A("s_sub_u32 s%d, 0x%x, s%d" % (sreg + 2, total, soff))
    A("s_mov_b32 s%d, 0x20000" % (sreg + 3))

STAMPS = False
REPEAT = False
EXP = ''
PRO = False
STAMP_STEPS = (1, 9, 54, 60)
WS_STAMP = 48 << 20
nstamp = [0]
def stamp(A):
    if not STAMPS: return
    k = nstamp[0]; nstamp[0] += 1
    A("s_memtime s[%d:%d]" % (60 + 2*k, 61 + 2*k))
def stamp_flush(A):
    if not STAMPS: return
    k = nstamp[0]
    A("s_memrealtime s[%d:%d]" % (60 + 2*k, 61 + 2*k))
    A("s_waitcnt lgkmcnt(0)")
    A("s_cmp_lg_u32 s%d, 0" % S_WAVE)
    A("s_cbranch_scc1 L_stamp_done%d" % id(A.lines) )
    A("s_lshl_b32 s%d, s2, 7" % S_T0)
    A("s_add_u32 s%d, s%d, %d" % (S_T0, S_T0, WS_STAMP))
    A("s_add_u32 s56, s%d, s%d" % (S_WS, S_T0)); A("s_addc_u32 s57, s%d, 0" % (S_WS + 1))
    A("s_and_b32 s57, s57, 0xffff"); A("s_mov_b32 s58, 128"); A("s_mov_b32 s59, 0x20000")
    A("v_mov_b32 v250, 0")
    for j in range(k + 1):
        A("v_mov_b32 v251, s%d" % (60 + 2*j))
        A("buffer_store_dword v251, v250, s[56:59], 0 offen offset:%d" % (4*j))
    if PRO:
        A("v_mov_b32 v251, s88")
        A("buffer_store_dword v251, v250, s[56:59], 0 offen offset:%d" % (4*(k+2)))
    A("v_mov_b32 v251, s%d" % 92)
    A("buffer_store_dword v251, v250, s[56:59], 0 offen offset:%d" % (4*(k+1)))
    A.label("L_stamp_done%d" % id(A.lines))
    nstamp[0] = 0

S_X, S_WQKV, S_WO, S_W1, S_W2, S_OUT, S_DBG, S_WS = 4, 6, 8, 12, 14, 16, 18, 20
SRD_X, SRD_A, SRD_B, SRD_P = 24, 28, 32, 36
S_WAVE, S_R, S_C, S_ROLE, S_TILE = 40, 41, 42, 43, 44
S_M0B, S_T0, S_T1, S_T2, S_T3 = 45, 46, 47, 48, 49
S_ONES, S_L2E, S_XM0 = 50, 51, 52

def ln_stats(A, regs_list, vsum, vsq, tmp):
    A("v_mov_b32 v%d, 0" % vsum); A("v_mov_b32 v%d, 0" % (vsum + 1))
    A("v_mov_b32 v%d, 0" % vsq); A("v_mov_b32 v%d, 0" % (vsq + 1))
    for n, r in enumerate(regs_list):
        e = n & 1
        A("v_dot2_f32_bf16 v%d, v%d, s%d, v%d" % (vsum + e, r, S_ONES, vsum + e))
        A("v_dot2_f32_bf16 v%d, v%d, v%d, v%d" % (vsq + e, r, r, vsq + e))
    A("s_nop 2")
    A("v_add_f32 v%d, v%d, v%d" % (vsum, vsum, vsum + 1))
    A("v_add_f32 v%d, v%d, v%d" % (vsq, vsq, vsq + 1))

def xsum32(A, r, tmp):
    A("v_mov_b32 v%d, v%d" % (tmp, r))
    A("s_nop 1")
    A("v_permlane32_swap_b32 v%d, v%d" % (r, tmp))
    A("s_nop 1")
    A("v_add_f32 v%d, v%d, v%d" % (r, r, tmp))

def xsum16(A, r, tmp):
    A("v_mov_b32 v%d, v%d" % (tmp, r))
    A("s_nop 1")
    A("v_permlane16_swap_b32 v%d, v%d" % (r, tmp))
    A("s_nop 1")
    A("v_add_f32 v%d, v%d, v%d" % (r, r, tmp))

def ln_coef(A, vsum, vsq, va, vb, tmp, scale_l2e):
    A("v_mul_f32 v%d, 0x%x, v%d" % (vsum, INV576, vsum))
    A("v_mul_f32 v%d, 0x%x, v%d" % (vsq, INV576, vsq))
    A("v_fma_f32 v%d, -v%d, v%d, v%d" % (vsq, vsum, vsum, vsq))
    A("v_max_f32 v%d, 0, v%d" % (vsq, vsq))
    A("v_add_f32 v%d, 0x%x, v%d" % (vsq, EPS_LN, vsq))
    A("v_rsq_f32 v%d, v%d" % (va, vsq))
    A("s_nop 0")
    if scale_l2e:
        A("v_mul_f32 v%d, s%d, v%d" % (va, S_L2E, va))
    A("v_mul_f32 v%d, v%d, v%d" % (vb, vsum, va))
    A("v_sub_f32 v%d, 0, v%d" % (vb, vb))

def ln_apply(A, regs_list, va, vb, temps):
    npair = len(temps) // 2
    pend = []
    for n, r in enumerate(regs_list):
        t0 = temps[(n % npair) * 2]; t1 = t0 + 1
        A("v_lshlrev_b32 v%d, 16, v%d" % (t0, r))
        A("v_and_b32 v%d, 0xffff0000, v%d" % (t1, r))
        A("v_fma_f32 v%d, v%d, v%d, v%d" % (t0, t0, va, vb))
        A("v_fma_f32 v%d, v%d, v%d, v%d" % (t1, t1, va, vb))
        A("v_cvt_pk_bf16_f32 v%d, v%d, v%d" % (r, t0, t1))


XB = 16384
XT = XB + 131072
def x_dma(A, vL, vt0, vt1, vt2):
    A("s_lshl_b32 s%d, s%d, 7" % (S_T0, S_TILE))
    A("s_lshl_b32 s%d, s%d, 4" % (S_T1, S_WAVE))
    A("s_add_u32 s%d, s%d, s%d" % (S_T0, S_T0, S_T1))
    A("s_mul_i32 s%d, s%d, 1152" % (S_T0, S_T0))
    A("s_lshl_b32 s%d, s%d, 14" % (S_T1, S_WAVE))
    A("s_add_u32 s%d, s%d, %d" % (S_T1, S_T1, XB))
    A("v_lshlrev_b32 v%d, 4, v%d" % (vt0, vL))
    for e in range(16):
        A("v_xor_b32 v%d, %d, v%d" % (vt1 + (e & 1), e * 16, vt0))
        A("s_add_u32 m0, s%d, %d" % (S_T1, e * 1024))
        A("s_add_u32 s%d, s%d, %d" % (S_T2, S_T0, e * 1152))
        A("buffer_load_dwordx4 v%d, s[%d:%d], s%d offen lds" % (vt1 + (e & 1), SRD_X, SRD_X + 3, S_T2))
        A.vm.issue(("x", e))
    A("s_lshl_b32 s%d, s%d, 11" % (S_T1, S_WAVE))
    A("s_add_u32 s%d, s%d, %d" % (S_T1, S_T1, XT))
    for q in range(2):
        t = vt1 + q
        A("v_lshrrev_b32 v%d, 4, v%d" % (vt0, vL))
        A("v_add_u32 v%d, %d, v%d" % (vt0, 4 * q, vt0))
        A("v_and_b32 v%d, 7, v%d" % (t, vL))
        A("v_xor_b32 v%d, v%d, v%d" % (t, t, vt0))
        A("v_lshlrev_b32 v%d, 4, v%d" % (t, t))
        A("v_lshrrev_b32 v%d, 3, v%d" % (vt0, vL))
        A("v_mul_u32_u24 v%d, 1152, v%d" % (vt0, vt0))
        A("v_add_u32 v%d, v%d, v%d" % (t, t, vt0))
        A("s_add_u32 m0, s%d, %d" % (S_T1, q * 1024))
        A("s_add_u32 s%d, s%d, %d" % (S_T2, S_T0, q * 8 * 1152 + 1024))
        A("buffer_load_dwordx4 v%d, s[%d:%d], s%d offen lds" % (t, SRD_X, SRD_X + 3, S_T2))
        A.vm.issue(("x", 16 + q))

S_SEL0, S_SEL1 = 53, 54

def x_unit_dma_setup(A, vL, vDX, vT0, vT1, vT2, vT3, XS):
    A("s_lshl_b32 s%d, s%d, 7" % (S_T0, S_TILE))
    A("s_lshl_b32 s%d, s%d, 4" % (S_T1, S_WAVE))
    A("s_add_u32 s%d, s%d, s%d" % (S_T0, S_T0, S_T1))
    A("s_mul_i32 s%d, s%d, 1152" % (S_T0, S_T0))
    A("v_lshrrev_b32 v%d, 3, v%d" % (vT0, vL))
    A("v_mul_u32_u24 v%d, 1152, v%d" % (vT1, vT0))
    A("v_add_u32 v%d, s%d, v%d" % (vT1, S_T0, vT1))
    A("v_lshrrev_b32 v%d, 4, v%d" % (vT2, vL))
    A("v_and_b32 v%d, 7, v%d" % (vT3, vL))
    A("v_xor_b32 v%d, v%d, v%d" % (vDX, vT3, vT2))
    A("v_lshl_add_u32 v%d, v%d, 4, v%d" % (vDX, vDX, vT1))
    A("v_add_u32 v%d, 4, v%d" % (vT2, vT2))
    A("v_xor_b32 v%d, v%d, v%d" % (vDX + 1, vT3, vT2))
    A("v_lshl_add_u32 v%d, v%d, 4, v%d" % (vDX + 1, vDX + 1, vT1))
    A("v_add_u32 v%d, %d, v%d" % (vDX + 1, 8 * 1152, vDX + 1))
    A("s_lshl_b32 s%d, s%d, 11" % (S_XM0, S_WAVE))
    A("s_add_u32 s%d, s%d, %d" % (S_XM0, S_XM0, XS))

def x_unit_dma(A, kb, vDX, nslots=6):
    slot = kb % nslots
    for q in range(2):
        A("s_add_u32 m0, s%d, %d" % (S_XM0, slot * 16384 + q * 1024))
        A("s_movk_i32 s%d, %d" % (S_T3, kb * 128))
        A("buffer_load_dwordx4 v%d, s[%d:%d], s%d offen lds" % (vDX + q, SRD_X, SRD_X + 3, S_T3))
        A.vm.issue(("x", kb, q))

def mlp_role(A, dbg=None):
    XN = 0
    ACC = [144, 160]
    WF = 176
    P = 208
    T = 216
    vD1, vD2 = 224, 225
    vR1, vR2, vHW, vHR, vST, vA, vC2 = 226, 227, 228, 229, 230, 231, 232
    U = 240
    vXR = 240
    vDX = 244
    vS, vQ = 246, 248
    vL, vT0, vT1, vT2, vT3 = 250, 251, 252, 253, 254
    RING = 8
    HBASE = 65536
    XS = HBASE
    NSC = 6
    NU1 = NSC * 9
    NU2 = 9 * 6
    NU = NU1 + NU2
    LOOK = RING - 1

    stamp(A)
    A("v_and_b32 v%d, 63, v0" % vL)
    x_unit_dma_setup(A, vL, vDX, vT0, vT1, vT2, vT3, XS)
    for kb in range(6): x_unit_dma(A, kb, vDX)
    A("s_mul_i32 s%d, s%d, 768" % (S_T0, S_ROLE))
    srd_off(A, SRD_A, S_W1, S_W1 + 1, S_T0, D * F * 2, None)
    A("s_lshl_b32 s%d, s%d, 3" % (S_T0, S_WAVE))
    A("v_add_u32 v%d, s%d, v%d" % (vT0, S_T0, vT0))
    A("v_lshrrev_b32 v%d, 2, v%d" % (vT2, vL)); A("v_and_b32 v%d, 4, v%d" % (vT2, vT2))
    A("v_xor_b32 v%d, v%d, v%d" % (vT2, vT3, vT2))
    A("v_lshlrev_b32 v%d, 4, v%d" % (vT2, vT2))
    A("v_mul_u32_u24 v%d, 9216, v%d" % (vD1, vT0))
    A("v_add_u32 v%d, v%d, v%d" % (vD1, vD1, vT2))
    A("v_mul_u32_u24 v%d, 1152, v%d" % (vD2, vT0))
    A("v_add_u32 v%d, v%d, v%d" % (vD2, vD2, vT2))
    A("s_lshl_b32 s%d, s%d, 10" % (S_M0B, S_WAVE))

    def dma(un):
        if un >= NU: return
        slot = un % RING
        A("s_add_u32 m0, s%d, %d" % (S_M0B, slot * 8192))
        if un < NU1:
            sc, kb = divmod(un, 9)
            A("s_mov_b32 s%d, %d" % (S_T3, kb * 64 * 9216 + sc * 128))
            A("buffer_load_dwordx4 v%d, s[%d:%d], s%d offen lds" % (vD1, SRD_A, SRD_A+3, S_T3))
        else:
            t, fb = divmod(un - NU1, 6)
            A("s_mov_b32 s%d, %d" % (S_T3, fb * 64 * 1152 + t * 128))
            A("buffer_load_dwordx4 v%d, s[%d:%d], s%d offen lds" % (vD2, SRD_B, SRD_B+3, S_T3))
        A.vm.issue(("dma", un))
    dma(0); dma(1)
    A("s_mul_i32 s%d, s%d, %d" % (S_T0, S_ROLE, 384 * 1152))
    srd_off(A, SRD_B, S_W2, S_W2 + 1, S_T0, D * F * 2, None)
    A("s_mul_i32 s%d, s%d, %d" % (S_T0, S_ROLE, PART_BYTES))
    A("s_mul_i32 s%d, s%d, %d" % (S_T1, S_TILE, 4 * 18 * 2048))
    A("s_add_u32 s%d, s%d, s%d" % (S_T0, S_T0, S_T1))
    srd_off(A, SRD_P, S_WS, S_WS + 1, S_T0, NPART * PART_BYTES, None)
    A("v_lshrrev_b32 v%d, 5, v%d" % (vT1, vL))
    A("v_lshrrev_b32 v%d, 2, v%d" % (vT0, vL)); A("v_and_b32 v%d, 3, v%d" % (vT0, vT0))
    A("v_lshrrev_b32 v%d, 4, v%d" % (vT2, vL)); A("v_and_b32 v%d, 1, v%d" % (vT2, vT2))
    A("v_lshlrev_b32 v%d, 1, v%d" % (vT2, vT2))
    A("v_lshrrev_b32 v%d, 1, v%d" % (vT3, vL)); A("v_and_b32 v%d, 1, v%d" % (vT3, vT3))
    A("v_add_u32 v%d, v%d, v%d" % (vT2, vT2, vT3))
    A("s_lshl_b32 s%d, s%d, 2" % (S_T0, S_C))
    A("v_add_u32 v%d, s%d, v%d" % (vT2, S_T0, vT2))
    A("v_lshrrev_b32 v%d, 1, v%d" % (vT3, vT0)); A("v_lshlrev_b32 v%d, 2, v%d" % (vT3, vT3))
    A("v_xor_b32 v%d, v%d, v%d" % (vT2, vT2, vT3))
    A("v_lshlrev_b32 v%d, 4, v%d" % (vT2, vT2))
    A("v_and_b32 v%d, 1, v%d" % (vT3, vL)); A("v_lshlrev_b32 v%d, 3, v%d" % (vT3, vT3))
    A("v_add_u32 v%d, v%d, v%d" % (vT2, vT2, vT3))
    A("v_lshlrev_b32 v%d, 2, v%d" % (vT3, vT1)); A("v_add_u32 v%d, v%d, v%d" % (vT3, vT3, vT0))
    A("v_lshlrev_b32 v%d, 7, v%d" % (vT3, vT3)); A("v_add_u32 v%d, v%d, v%d" % (vR2, vT3, vT2))
    A("v_lshlrev_b32 v%d, 3, v%d" % (vT3, vT1)); A("v_add_u32 v%d, v%d, v%d" % (vT3, vT3, vT0))
    A("v_lshlrev_b32 v%d, 7, v%d" % (vT3, vT3)); A("v_add_u32 v%d, v%d, v%d" % (vR1, vT3, vT2))
    A("v_and_b32 v%d, 31, v%d" % (vT0, vL))
    A("s_lshl_b32 s%d, s%d, 5" % (S_T0, S_R))
    A("v_add_u32 v%d, s%d, v%d" % (vT0, S_T0, vT0))
    A("v_lshrrev_b32 v%d, 1, v%d" % (vT2, vL)); A("v_and_b32 v%d, 7, v%d" % (vT2, vT2))
    A("v_xor_b32 v%d, v%d, v%d" % (vT2, vT2, vT1))
    A("v_lshlrev_b32 v%d, 4, v%d" % (vT2, vT2))
    A("v_lshl_add_u32 v%d, v%d, 7, v%d" % (vT2, vT0, vT2))
    A("v_add_u32 v%d, %d, v%d" % (vXR, XS, vT2))
    for j in range(1, 4):
        A("v_xor_b32 v%d, %d, v%d" % (vXR + j, j * 32, vXR))
    A("s_mul_i32 s%d, s%d, 24576" % (S_T0, S_R))
    A("s_add_u32 s%d, s%d, %d" % (S_T0, S_T0, HBASE))
    A("v_lshlrev_b32 v%d, 4, v%d" % (vT3, vL))
    A("v_add_u32 v%d, s%d, v%d" % (vHR, S_T0, vT3))
    A("s_lshl_b32 s%d, s%d, 11" % (S_T1, S_C))
    A("v_add_u32 v%d, s%d, v%d" % (vHW, S_T1, vHR))
    A("s_mul_i32 s%d, s%d, 18" % (S_T0, S_R))
    A("s_add_u32 s%d, s%d, s%d" % (S_T0, S_T0, S_C))
    A("s_lshl_b32 s%d, s%d, 11" % (S_T0, S_T0))
    A("v_add_u32 v%d, s%d, v%d" % (vST, S_T0, vT3))
    for q in range(2):
        A("v_mov_b32 v%d, 0" % (vS + q)); A("v_mov_b32 v%d, 0" % (vQ + q))
    A("s_mov_b32 s%d, 0x00003f80" % S_SEL0)
    A("s_mov_b32 s%d, 0x3f800000" % S_SEL1)

    def xread(kb, j):
        slot = kb % 6
        rg = XN + 4 * (4 * kb + j)
        if slot < 4:
            A("ds_read_b128 v[%d:%d], v%d offset:%d" % (rg, rg + 3, vXR + j, slot * 16384))
        else:
            A("v_add_u32 v%d, 0x10000, v%d" % (T + j, vXR + j))
            A("ds_read_b128 v[%d:%d], v%d offset:%d" % (rg, rg + 3, T + j, (slot - 4) * 16384))
        A.lg.issue(("xf", kb, j))
    def stats(kb, j):
        for e in range(4):
            rg = XN + 4 * (4 * kb + j) + e
            A("v_dot2_f32_bf16 v%d, v%d, s%d, v%d" % (vS + (e & 1), rg, S_ONES, vS + (e & 1)))
            A("v_dot2_f32_bf16 v%d, v%d, v%d, v%d" % (vQ + (e & 1), rg, rg, vQ + (e & 1)))
    stamp(A)
    for g in range(3):
        A.wait(vm=[("x", 3 * g + 2, 1)])
        A("s_barrier")
        if g == 1:
            for kb in range(6, 9): x_unit_dma(A, kb, vDX)
            for un in range(2, LOOK): dma(un)
        for kb in range(3 * g, 3 * g + 3):
            for j in range(4): xread(kb, j)
        for kb in range(3 * g, 3 * g + 3):
            for j in range(4):
                A.wait(lg=[("xf", kb, j)])
                stats(kb, j)
        if PRO: stamp(A)
    A("s_nop 1")
    A("v_add_f32 v%d, v%d, v%d" % (vS, vS, vS + 1))
    A("v_add_f32 v%d, v%d, v%d" % (vQ, vQ, vQ + 1))
    xsum32(A, vS, vS + 1)
    xsum32(A, vQ, vQ + 1)
    A("v_mul_f32 v%d, 0x%x, v%d" % (vS, INV576, vS))
    A("v_mul_f32 v%d, 0x%x, v%d" % (vQ, INV576, vQ))
    A("v_fma_f32 v%d, -v%d, v%d, v%d" % (vQ, vS, vS, vQ))
    A("v_max_f32 v%d, 0, v%d" % (vQ, vQ))
    A("v_add_f32 v%d, 0x%x, v%d" % (vQ, EPS_LN, vQ))
    A("v_sub_f32 v%d, 0, v%d" % (vS, vS))
    A("v_rsq_f32 v%d, v%d" % (vA, vQ))
    A("v_sqrt_f32 v%d, v%d" % (vC2, vQ))
    A("s_nop 0")
    A("v_mul_f32 v%d, s%d, v%d" % (vA, S_L2E, vA))
    for n in range(0, 144, 4):
        for e in range(4):
            A("v_dot2_f32_bf16 v%d, v%d, s%d, v%d" % (T + 2*e, XN + n + e, S_SEL0, vS))
            A("v_dot2_f32_bf16 v%d, v%d, s%d, v%d" % (T + 2*e + 1, XN + n + e, S_SEL1, vS))
        A("s_nop 0")
        for e in range(4):
            A("v_cvt_pk_bf16_f32 v%d, v%d, v%d" % (XN + n + e, T + 2*e, T + 2*e + 1))

    def wfrag(un, i):
        return WF + 16 * (un & 1) + 4 * i
    def wread(un, i):
        if un >= NU: return
        slot = un % RING
        f = wfrag(un, i)
        off = slot * 8192 + i * 2048
        if un < NU1:
            A("ds_read_b64_tr_b16 v[%d:%d], v%d offset:%d" % (f, f+1, vR1, off))
            A("ds_read_b64_tr_b16 v[%d:%d], v%d offset:%d" % (f+2, f+3, vR1, off + 512))
        else:
            A("ds_read_b64_tr_b16 v[%d:%d], v%d offset:%d" % (f, f+1, vR2, off))
            A("ds_read_b64_tr_b16 v[%d:%d], v%d offset:%d" % (f+2, f+3, vR2, off + 1024))
        A.lg.issue(("w", un, i, 0)); A.lg.issue(("w", un, i, 1))
    def hread(hf):
        A("ds_read_b128 v[%d:%d], v%d offset:%d" % (XN + 4*hf, XN + 4*hf + 3, vHR, hf * 1024))
        A.lg.issue(("hr", hf))
    def hwrite(sc, ks):
        A("ds_write_b128 v%d, v[%d:%d] offset:%d" % (vHW, P + 4*ks, P + 4*ks + 3, sc * 4096 + ks * 1024))
        A.lg.issue(("hw", sc, ks))

    def silu_0(va, t):
        A("v_mul_f32 v%d, v%d, v%d" % (t, va, vA)); A("v_mul_f32 v%d, v%d, v%d" % (t+1, va+1, vA))
    def silu_a(va, t):
        A("v_exp_f32_e64 v%d, -v%d" % (t, t)); A("v_exp_f32_e64 v%d, -v%d" % (t+1, t+1))
    def silu_b(va, t):
        A("v_fma_f32 v%d, v%d, v%d, v%d" % (t, t, vC2, vC2)); A("v_fma_f32 v%d, v%d, v%d, v%d" % (t+1, t+1, vC2, vC2))
        A("v_rcp_f32 v%d, v%d" % (t, t)); A("v_rcp_f32 v%d, v%d" % (t+1, t+1))
    def silu_c(va, t):
        A("v_mul_f32 v%d, v%d, v%d" % (t, va, t)); A("v_mul_f32 v%d, v%d, v%d" % (t+1, va+1, t+1))
    def silu_d(va, t, pidx):
        A("v_cvt_pk_bf16_f32 v%d, v%d, v%d" % (P + pidx, t, t+1))

    stamp(A)
    A.wait(vm=[("dma", 0)])
    A("s_barrier")
    for i in range(4): wread(0, i)

    fill = [[[] for _ in range(4)] for _ in range(NU + 2)]
    pre_barrier_lg = [[] for _ in range(NU + 2)]
    def sched_silu(sc, plan, slots):
        acc = ACC[sc & 1]
        for n, pairs in plan:
            for q, pidx in enumerate(pairs):
                va = acc + 2 * pidx
                t = T + 2 * (q % 4)
                s0, s1, s2, s3, s4 = slots
                fill[n][s0].append(lambda va=va, t=t: silu_0(va, t))
                fill[n][s1].append(lambda va=va, t=t: silu_a(va, t))
                fill[n][s2].append(lambda va=va, t=t: silu_b(va, t))
                fill[n][s3].append(lambda va=va, t=t: silu_c(va, t))
                fill[n][s4].append(lambda va=va, t=t, pidx=pidx: silu_d(va, t, pidx))
                if pidx % 4 == 3:
                    ks = pidx // 4
                    fill[n + 1][0].insert(0, lambda sc=sc, ks=ks: hwrite(sc, ks))
                    pre_barrier_lg[n + 2].append(("hw", sc, ks))
    for sc in range(NSC):
        n0 = 9 * (sc + 1)
        if sc < NSC - 1:
            sched_silu(sc, [(n0 + 1 + q, [q]) for q in range(8)], (0, 0, 1, 2, 3))
        else:
            fill[n0][0].append(lambda: (A('s_nop 7'), A('s_nop 3')))
            sched_silu(sc, [(n0, [0, 1, 2, 3]), (n0 + 1, [4, 5, 6, 7])], (0, 1, 2, 3, 3))
    last_pass = 9 * (NSC - 1)
    nh_early = 4 * (NSC - 2)
    for hf in range(nh_early):
        fill[last_pass + 1 + hf // 4][hf % 4].append(lambda hf=hf: hread(hf))
    for hf in range(nh_early, nh_early + 4):
        fill[NU1 + 2][hf % 4].append(lambda hf=hf: hread(hf))
    for hf in range(nh_early + 4, nh_early + 8):
        fill[NU1 + 4][hf % 4].append(lambda hf=hf: hread(hf))
    def epi(t, half):
        acc = ACC[t & 1] + 8 * half
        for q in range(4):
            A("v_cvt_pk_bf16_f32 v%d, v%d, v%d" % (P + 4*half + q, acc + 2*q, acc + 2*q + 1))
    def epi_store(t, half):
        A("s_mov_b32 s%d, %d" % (S_T2, t * 4096))
        A("buffer_store_dwordx4 v[%d:%d], v%d, s[%d:%d], s%d offen offset:%d" % (P + 4*half, P + 4*half + 3, vST, SRD_P, SRD_P+3, S_T2, half * 1024))
        A.vm.issue(("st", t, half))
    for t in range(8):
        n0 = NU1 + 6 * (t + 1)
        fill[n0 + 1][0].append(lambda t=t: epi(t, 0))
        fill[n0 + 1][1].append(lambda t=t: epi_store(t, 0))
        fill[n0 + 3][0].append(lambda t=t: epi(t, 1))
        fill[n0 + 3][1].append(lambda t=t: epi_store(t, 1))

    DMAPOS = 2
    for n in range(NU):
        A.comment("step %d" % n)
        if n in STAMP_STEPS: stamp(A)
        need_vm = ([("dma", n + 1)] if n + 1 < NU else [])
        A.wait(vm=need_vm or None, lg=pre_barrier_lg[n] or None)
        A("s_barrier")
        for i in range(4):
            tags = [("w", n, i, 1)]
            if n >= NU1:
                t, fb = divmod(n - NU1, 6)
                hf = fb * 4 + i
                if t == 0: tags.append(("hr", hf))
            A.wait(lg=tags)
            f = wfrag(n, i)
            if n < NU1:
                sc, kb = divmod(n, 9)
                acc = ACC[sc & 1]; bop = XN + 4 * (4 * kb + i)
                first = (kb == 0 and i == 0)
            else:
                acc = ACC[t & 1]; bop = XN + 4 * hf
                first = (fb == 0 and i == 0)
            csrc = "0" if first else "v[%d:%d]" % (acc, acc + 15)
            A("v_mfma_f32_32x32x16_bf16 v[%d:%d], v[%d:%d], v[%d:%d], %s" % (acc, acc+15, f, f+3, bop, bop+3, csrc))
            wread(n + 1, i)
            for fn in fill[n][i]: fn()
            if i == DMAPOS: dma(n + LOOK)
    A("s_nop 7"); A("s_nop 7")
    epi(8, 0); epi(8, 1)
    epi_store(8, 0); epi_store(8, 1)
    stamp(A)
    A("s_waitcnt vmcnt(0)")
    stamp(A)
    stamp_flush(A)
    A("s_endpgm")


KV_GROUP_BYTES = 36 * 1024
SRD_KV, SRD_D = 8, 16
S_WOP = 56
def att_role(A):
    A.vm = Ctr(63); A.lg = Ctr(15)
    def xf(u, kk): return 4 * (18 * u + kk)
    ACC = 144
    WR = 216
    vDM = 240
    vTR1, vTR3 = 243, 244
    vTR3b = 254
    vCA = 245
    vL, vT0, vT1, vT2, vT3 = 249, 250, 251, 252, 253
    vDX = 254
    XS = 55296
    USZ = 18432
    EX = 73728
    PQ = 82944
    KVF = 119808
    ZF = 133632
    CH = 41472
    stamp(A)
    A("v_and_b32 v%d, 63, v0" % vL)
    A("v_mov_b32 v%d, v0" % ACC)
    x_unit_dma_setup(A, vL, vDX, vT0, vT1, vT2, vT3, XS)
    for kb in range(6): x_unit_dma(A, kb, vDX)
    srd(A, SRD_A, S_WQKV, S_WQKV + 1, D * 3 * D * 2)
    A("s_mul_i32 s%d, s%d, %d" % (S_T0, S_ROLE, 144 * 1152))
    srd_off(A, SRD_B, S_WO, S_WO + 1, S_T0, D * D * 2, None)
    A("s_lshr_b32 s%d, s%d, 1" % (S_T0, S_R)); A("s_lshl_b32 s%d, s%d, 4" % (S_T0, S_T0))
    A("s_and_b32 s%d, s%d, 1" % (S_T1, S_R)); A("s_lshl_b32 s%d, s%d, 2" % (S_T1, S_T1))
    A("s_add_u32 s%d, s%d, s%d" % (S_T0, S_T0, S_T1))
    A("s_mul_i32 s%d, s%d, 288" % (S_T1, S_ROLE))
    for q in range(3):
        A("v_add_u32 v%d, %d, v%d" % (vT0, 48 * q, vL))
        A("v_mul_u32_u24 v%d, 3641, v%d" % (vT1, vT0))
        A("v_lshrrev_b32 v%d, 16, v%d" % (vT1, vT1))
        A("v_mul_u32_u24 v%d, 18, v%d" % (vT2, vT1))
        A("v_sub_u32 v%d, v%d, v%d" % (vT2, vT0, vT2))
        A("v_lshrrev_b32 v%d, 2, v%d" % (vT3, vT1))
        A("v_lshlrev_b32 v%d, 3, v%d" % (vT3, vT3))
        A("v_and_b32 v%d, 3, v%d" % (vT1, vT1))
        A("v_add_u32 v%d, v%d, v%d" % (vT1, vT1, vT3))
        A("v_add_u32 v%d, s%d, v%d" % (vT1, S_T0, vT1))
        A("v_mul_u32_u24 v%d, 3456, v%d" % (vT1, vT1))
        A("v_lshl_add_u32 v%d, v%d, 4, v%d" % (vT1, vT2, vT1))
        A("v_add_u32 v%d, s%d, v%d" % (vDM + q, S_T1, vT1))
    S_MB, S_O1, S_O3 = 58, 59, 55
    A("s_mul_i32 s%d, s%d, 9216" % (S_MB, S_C)); A("s_mul_i32 s%d, s%d, 2304" % (S_T0, S_R)); A("s_add_u32 s%d, s%d, s%d" % (S_MB, S_MB, S_T0))
    A("s_add_u32 s%d, s%d, 1" % (S_O1, S_C)); A("s_mul_i32 s%d, s%d, 1152" % (S_O1, S_O1))
    A("s_mul_i32 s%d, s%d, %d" % (S_O3, S_C, 32 * 3456))
    NUA = 27
    def wdma(un):
        if un >= NUA: return
        slot = un % 4
        if un < 18: A("s_add_u32 s%d, s%d, %d" % (S_T3, S_O1, un * 32 * 3456))
        else: A("s_add_u32 s%d, s%d, %d" % (S_T3, S_O3, (un - 18) * 64 * 3456))
        A("s_mov_b32 exec_hi, 0xffff")
        for q in range(3):
            A("s_add_u32 m0, s%d, %d" % (S_MB, slot * USZ + q * 768))
            A("s_nop 0")
            A("buffer_load_dwordx4 v%d, s[%d:%d], s%d offen lds" % (vDM + q, SRD_A, SRD_A + 3, S_T3))
            A.vm.issue(("wa", un, q))
        A("s_mov_b32 exec_hi, -1")
    for un in range(3): wdma(un)
    A("s_add_u32 s%d, s%d, 12" % (S_T0, S_ROLE))
    A("s_mul_i32 s%d, s%d, %d" % (S_T0, S_T0, PART_BYTES))
    A("s_mul_i32 s%d, s%d, %d" % (S_T1, S_TILE, 4 * 18 * 2048))
    A("s_add_u32 s%d, s%d, s%d" % (S_T0, S_T0, S_T1))
    srd_off(A, SRD_P, S_WS, S_WS + 1, S_T0, NPART * PART_BYTES, None)
    A("s_mul_i32 s%d, s%d, %d" % (S_T0, S_ROLE, KV_GROUP_BYTES))
    A("s_add_u32 s%d, s%d, %d" % (S_T0, S_T0, WS_KV))
    A("s_add_u32 s%d, s%d, s%d" % (SRD_KV, S_WS, S_T0)); A("s_addc_u32 s%d, s%d, 0" % (SRD_KV + 1, S_WS + 1))
    A("s_and_b32 s%d, s%d, 0xffff" % (SRD_KV + 1, SRD_KV + 1)); A("s_mov_b32 s%d, %d" % (SRD_KV + 2, KV_GROUP_BYTES)); A("s_mov_b32 s%d, 0x20000" % (SRD_KV + 3))
    srd(A, SRD_D, S_DBG, S_DBG + 1, 256)
    A("s_cmp_lg_u32 s%d, 0" % S_TILE)
    A("s_cbranch_scc1 L_att_nozero")
    for q in range(4): A("v_mov_b32 v%d, 0" % (ACC + 4 + q))
    A("v_lshlrev_b32 v%d, 4, v%d" % (ACC + 1, ACC))
    for q in range(5):
        A("s_mov_b32 s%d, %d" % (S_T3, q * 8192))
        A("buffer_store_dwordx4 v[%d:%d], v%d, s[%d:%d], s%d offen sc0 sc1" % (ACC + 4, ACC + 7, ACC + 1, SRD_KV, SRD_KV + 3, S_T3))
    A("s_waitcnt vmcnt(0)")
    A("s_barrier")
    A("v_mov_b32 v%d, 1" % (ACC + 2))
    A("s_lshl_b32 s%d, s%d, 2" % (S_T0, S_ROLE)); A("s_add_u32 s%d, s%d, 64" % (S_T0, S_T0))
    A("v_mov_b32 v%d, 0x7fffff00" % (ACC + 3)); A("v_mov_b32 v%d, s%d" % (ACC + 4, S_T0))
    A("v_cmp_eq_u32 vcc, 0, v%d" % ACC)
    A("s_nop 1")
    A("v_cndmask_b32 v%d, v%d, v%d, vcc" % (ACC + 3, ACC + 3, ACC + 4))
    A("buffer_atomic_add v%d, v%d, s[%d:%d], 0 offen sc1" % (ACC + 2, ACC + 3, SRD_D, SRD_D + 3))
    A("s_waitcnt vmcnt(0)")
    A.label("L_att_nozero")
    A("v_lshrrev_b32 v%d, 4, v%d" % (vT0, vL))
    A("v_lshrrev_b32 v%d, 1, v%d" % (vT1, vT0)); A("v_lshlrev_b32 v%d, 4, v%d" % (vT1, vT1))
    A("v_and_b32 v%d, 1, v%d" % (vT2, vT0)); A("v_lshlrev_b32 v%d, 2, v%d" % (vT2, vT2))
    A("v_add_u32 v%d, v%d, v%d" % (vT1, vT1, vT2))
    A("v_lshrrev_b32 v%d, 2, v%d" % (vT2, vL)); A("v_and_b32 v%d, 3, v%d" % (vT2, vT2))
    A("v_add_u32 v%d, v%d, v%d" % (vT1, vT1, vT2))
    A("v_mul_u32_u24 v%d, 288, v%d" % (vT1, vT1))
    A("v_and_b32 v%d, 3, v%d" % (vT2, vL))
    A("v_lshl_add_u32 v%d, v%d, 3, v%d" % (vT1, vT2, vT1))
    A("s_mul_i32 s%d, s%d, 9216" % (S_T0, S_C))
    A("v_add_u32 v%d, s%d, v%d" % (vTR1, S_T0, vT1))
    A("s_lshl_b32 s%d, s%d, 7" % (S_T0, S_C))
    A("v_add_u32 v%d, s%d, v%d" % (vTR3, S_T0, vT1))
    vXR = ACC + 8
    A("v_and_b32 v%d, 15, v%d" % (vT1, vL))
    A("v_lshrrev_b32 v%d, 1, v%d" % (vT2, vT1))
    A("v_xor_b32 v%d, v%d, v%d" % (vT2, vT2, vT0))
    A("v_lshlrev_b32 v%d, 4, v%d" % (vT2, vT2))
    A("s_lshl_b32 s%d, s%d, 5" % (S_T0, S_R))
    A("v_add_u32 v%d, s%d, v%d" % (vT1, S_T0, vT1))
    A("v_lshl_add_u32 v%d, v%d, 7, v%d" % (vT2, vT1, vT2))
    A("v_add_u32 v%d, %d, v%d" % (vXR, XS, vT2))
    A("v_xor_b32 v%d, 64, v%d" % (vXR + 1, vXR))
    A("v_add_u32 v%d, 0x10000, v%d" % (vXR + 2, vXR)); A("v_add_u32 v%d, 0x10000, v%d" % (vXR + 3, vXR + 1))
    vS = ACC + 16
    for q in range(8): A("v_mov_b32 v%d, 0" % (vS + q))
    def xread(kb, e, u):
        slot = kb % 6; kk = 2 * kb + e
        if slot < 4: A("ds_read_b128 v[%d:%d], v%d offset:%d" % (xf(u, kk), xf(u, kk) + 3, vXR + e, slot * 16384 + u * 2048))
        else: A("ds_read_b128 v[%d:%d], v%d offset:%d" % (xf(u, kk), xf(u, kk) + 3, vXR + 2 + e, (slot - 4) * 16384 + u * 2048))
        A.lg.issue(("xf", u, kk))
    def stats(u, kk):
        for e in range(4):
            rg = xf(u, kk) + e
            A("v_dot2_f32_bf16 v%d, v%d, s%d, v%d" % (vS + 4*u + (e & 1), rg, S_ONES, vS + 4*u + (e & 1)))
            A("v_dot2_f32_bf16 v%d, v%d, v%d, v%d" % (vS + 4*u + 2 + (e & 1), rg, rg, vS + 4*u + 2 + (e & 1)))
    stamp(A)
    for g in range(3):
        A.wait(vm=[("x", 3 * g + 2, 1)])
        A("s_barrier")
        if g == 1:
            for kb in range(6, 9): x_unit_dma(A, kb, vDX)
        lst = [(kb, e, u) for kb in range(3 * g, 3 * g + 3) for e in range(2) for u in range(2)]
        for (kb, e, u) in lst: xread(kb, e, u)
        for (kb, e, u) in lst:
            A.wait(lg=[("xf", u, 2 * kb + e)])
            stats(u, 2 * kb + e)
    A("s_nop 2")
    for u in range(2):
        b = vS + 4 * u
        A("v_add_f32 v%d, v%d, v%d" % (b, b, b + 1)); A("v_add_f32 v%d, v%d, v%d" % (b + 2, b + 2, b + 3))
        xsum16(A, b, b + 1); xsum32(A, b, b + 1)
        xsum16(A, b + 2, b + 3); xsum32(A, b + 2, b + 3)
        ln_coef(A, b, b + 2, vCA + 2*u, vCA + 2*u + 1, None, False)
    for u in range(2):
        ln_apply(A, list(range(xf(u, 0), xf(u, 0) + 72)), vCA + 2*u, vCA + 2*u + 1, [ACC + 24 + i for i in range(8)])
    stamp(A)

    seq = []
    for n in range(18):
        for t in range(9): seq.append((n, vTR1, (n % 4) * USZ + 32 * t, 1, t, n))
    for n in range(18, 27):
        for ks in range(2):
            for tau in range(5): seq.append((n, vTR3b if ks else vTR3, (n % 4) * USZ + 32 * tau, 3, tau, 2 * (n - 18) + ks))
    def fread(phi):
        if phi >= len(seq): return
        un, base, off = seq[phi][:3]
        f = WR + 4 * (phi % 6)
        A("ds_read_b64_tr_b16 v[%d:%d], v%d offset:%d" % (f, f + 1, base, off))
        A("ds_read_b64_tr_b16 v[%d:%d], v%d offset:%d" % (f + 2, f + 3, base, off + 2304))
        A.lg.issue(("f", phi, 0)); A.lg.issue(("f", phi, 1))
    A("v_add_u32 v%d, 9216, v%d" % (vTR3b, vTR3))
    A.wait(vm=[("wa", 0, 2)])
    A("s_barrier")
    for phi in range(6): fread(phi)
    def run_steps(n_lo, n_hi, extra=None):
        for n in range(n_lo, n_hi):
            A.comment("att step %d" % n)
            need = [("wa", n + 1, 2)] if n + 1 < NUA else []
            if extra and n in extra.get("vm", {}): need += extra["vm"][n]
            A.wait(vm=need or None)
            A("s_barrier")
            if extra and n in extra.get("post", {}): extra["post"][n]()
            phis = [p for p in range(len(seq)) if seq[p][0] == n]
            for idx, phi in enumerate(phis):
                un, base, off, kind, t, kk = seq[phi]
                f = WR + 4 * (phi % 6)
                A.wait(lg=[("f", phi, 1)])
                for u in range(2):
                    if kind == 1:
                        acc = ACC + 8 * t + 4 * u
                        cs = "0" if kk == 0 else "v[%d:%d]" % (acc, acc + 3)
                        A("v_mfma_f32_16x16x32_bf16 v[%d:%d], v[%d:%d], v[%d:%d], %s" % (acc, acc + 3, xf(u, kk), xf(u, kk) + 3, f, f + 3, cs))
                    else:
                        acc = ACC + 8 * t + 4 * u
                        cs = "0" if kk == 0 else "v[%d:%d]" % (acc, acc + 3)
                        A("v_mfma_f32_16x16x32_bf16 v[%d:%d], v[%d:%d], v[%d:%d], %s" % (acc, acc + 3, f, f + 3, xf(u, kk), xf(u, kk) + 3, cs))
                fread(phi + 6)
                if idx == 3: wdma(n + 3)
    run_steps(0, 18)
    stamp(A)
    C1E6 = 0x358637bd
    def phi_vals(regs, temps):
        nt = len(temps)
        for i0 in range(0, len(regs), nt):
            grp = regs[i0:i0 + nt]
            for r_, t_ in zip(grp, temps): A("v_mul_f32 v%d, s%d, v%d" % (t_, S_L2E, r_))
            for r_, t_ in zip(grp, temps): A("v_min_f32 v%d, 0, v%d" % (t_, t_))
            for r_, t_ in zip(grp, temps): A("v_exp_f32 v%d, v%d" % (t_, t_))
            for r_, t_ in zip(grp, temps): A("v_max_f32 v%d, 0, v%d" % (r_, r_))
            for r_, t_ in zip(grp, temps): A("v_add_f32 v%d, 0x%x, v%d" % (r_, C1E6, r_))
            for r_, t_ in zip(grp, temps): A("v_add_f32 v%d, v%d, v%d" % (r_, r_, t_))
    TP = [vT0, vT1, vT2, vT3, vCA, vCA + 1, vCA + 2, vCA + 3]
    A("s_nop 7"); A("s_nop 1")
    A("s_cmp_lg_u32 s%d, 0" % S_C)
    A("s_cbranch_scc1 L_att_nophi")
    phi_vals(list(range(ACC, ACC + 72)), TP)
    A.label("L_att_nophi")
    vEW = vT0
    A("s_mul_i32 s%d, s%d, 18432" % (S_T0, S_R)); A("s_mul_i32 s%d, s%d, 9216" % (S_T1, S_C))
    A("s_add_u32 s%d, s%d, s%d" % (S_T0, S_T0, S_T1)); A("s_add_u32 s%d, s%d, %d" % (S_T0, S_T0, EX))
    A("v_lshl_add_u32 v%d, v%d, 4, s%d" % (vEW, vL, S_T0))
    for t in range(9):
        b = ACC + 8 * t
        A("v_cvt_pk_bf16_f32 v%d, v%d, v%d" % (b, b, b + 1)); A("v_cvt_pk_bf16_f32 v%d, v%d, v%d" % (b + 1, b + 2, b + 3))
        A("v_cvt_pk_bf16_f32 v%d, v%d, v%d" % (b + 2, b + 4, b + 5)); A("v_cvt_pk_bf16_f32 v%d, v%d, v%d" % (b + 3, b + 6, b + 7))
        A("ds_write_b128 v%d, v[%d:%d] offset:%d" % (vEW, b, b + 3, t * 1024))
        A.lg.issue(("ew", t))
    def poll(dw_off_sreg_expr, target, vreg, vaddr):
        lab = A.newlabel("L_poll"); ok = A.newlabel("L_pollok")
        dw_off_sreg_expr()
        A("v_mov_b32 v%d, s%d" % (vaddr, S_T0))
        A("s_mov_b32 s%d, 0" % S_T1)
        A.label(lab)
        A("buffer_load_dword v%d, v%d, s[%d:%d], 0 offen sc1" % (vreg, vaddr, SRD_D, SRD_D + 3))
        A("s_waitcnt vmcnt(0)")
        A("v_readfirstlane_b32 s%d, v%d" % (S_T0, vreg))
        A("s_add_u32 s%d, s%d, 1" % (S_T1, S_T1))
        A("s_nop 2")
        A("s_cmp_ge_u32 s%d, %d" % (S_T0, target))
        A("s_cbranch_scc1 %s" % ok)
        A("s_sleep 4")
        A("s_cmp_lt_u32 s%d, 50000" % S_T1)
        A("s_cbranch_scc1 %s" % lab)
        A.label(ok)
        A.vm.all()
    poll(lambda: (A("s_lshl_b32 s%d, s%d, 2" % (S_T0, S_ROLE)), A("s_add_u32 s%d, s%d, 64" % (S_T0, S_T0))), 1, vT1, vT2)
    A("s_waitcnt lgkmcnt(0)"); A.lg.all()
    A("s_barrier")
    FA, FB, KA, HD, HE = ACC, ACC + 16, ACC + 32, ACC + 36, ACC + 40
    S_A, S_B = 22, 23
    vER = vT0
    A("v_lshlrev_b32 v%d, 4, v%d" % (vER, vL)); A("v_add_u32 v%d, %d, v%d" % (vER, EX, vER))
    vAT = vT1
    A("v_lshlrev_b32 v%d, 2, v%d" % (vAT, vL))
    vG4x4 = vT2
    A("v_lshrrev_b32 v%d, 4, v%d" % (vG4x4, vL)); A("v_lshlrev_b32 v%d, 2, v%d" % (vG4x4, vG4x4))
    vE16 = vT3
    A("v_and_b32 v%d, 15, v%d" % (vE16, vL))
    ONESF = ACC + 44
    for q in range(4): A("v_mov_b32 v%d, s%d" % (ONESF + q, S_ONES))
    natom = [0]
    def kv_round(tag):
        A("s_lshl_b32 s%d, s%d, 10" % (S_T0, S_A))
        A("v_add_u32 v%d, s%d, v%d" % (ACC + 48, S_T0, vER))
        for r_ in range(4):
            A("ds_read_b128 v[%d:%d], v%d offset:%d" % (FA + 4*r_, FA + 4*r_ + 3, ACC + 48, r_ * 18432))
        A("s_lshl_b32 s%d, s%d, 4" % (S_T0, S_A))
        for rr in range(4):
            A("v_add_u32 v%d, s%d, v%d" % (HD + rr, S_T0, vG4x4))
            if rr: A("v_add_u32 v%d, %d, v%d" % (HD + rr, rr, HD + rr))
            A("v_mul_u32_u24 v%d, 3641, v%d" % (HD + rr, HD + rr))
            A("v_lshrrev_b32 v%d, 16, v%d" % (HD + rr, HD + rr))
        for db in (-1, 0, 1, "z"):
            if db != "z":
                A("s_add_i32 s%d, s%d, %d" % (S_B, S_A, db))
                A("s_max_i32 s%d, s%d, 0" % (S_T1, S_B)); A("s_min_i32 s%d, s%d, 8" % (S_T1, S_T1))
                A("s_cmp_eq_u32 s%d, s%d" % (S_T1, S_B))
                A("s_mul_i32 s%d, s%d, 3" % (S_T2, S_A)); A("s_add_u32 s%d, s%d, %d" % (S_T2, S_T2, db + 1));
                A("s_cmp_eq_u32 s%d, s%d" % (S_T1, S_B))
                A("s_cselect_b32 s%d, s%d, 0x1fffff" % (S_T2, S_T2))
                A("s_lshl_b32 s%d, s%d, 10" % (S_T2, S_T2))
                A("s_add_u32 s%d, s%d, 9" % (S_T0, S_T1)); A("s_lshl_b32 s%d, s%d, 10" % (S_T0, S_T0))
                A("v_add_u32 v%d, s%d, v%d" % (ACC + 48, S_T0, vER))
                for r_ in range(4):
                    A("ds_read_b128 v[%d:%d], v%d offset:%d" % (FB + 4*r_, FB + 4*r_ + 3, ACC + 48, r_ * 18432))
                A("s_lshl_b32 s%d, s%d, 4" % (S_T0, S_T1))
                A("v_add_u32 v%d, s%d, v%d" % (HE, S_T0, vE16))
                A("v_mul_u32_u24 v%d, 3641, v%d" % (HE, HE))
                A("v_lshrrev_b32 v%d, 16, v%d" % (HE, HE))
                A("s_waitcnt lgkmcnt(0)")
                bsrc = lambda r_: FB + 4 * r_
            else:
                A("s_add_u32 s%d, s%d, 27" % (S_T2, S_A)); A("s_lshl_b32 s%d, s%d, 10" % (S_T2, S_T2))
                bsrc = lambda r_: ONESF
            for r_ in range(4):
                cs = "0" if r_ == 0 else "v[%d:%d]" % (KA, KA + 3)
                A("v_mfma_f32_16x16x32_bf16 v[%d:%d], v[%d:%d], v[%d:%d], %s" % (KA, KA + 3, FA + 4*r_, FA + 4*r_ + 3, bsrc(r_), bsrc(r_) + 3, cs))
            A("s_nop 7"); A("s_nop 1")
            if db != "z":
                for rr in range(4):
                    A("v_cmp_eq_u32 vcc, v%d, v%d" % (HD + rr, HE))
                    A("s_nop 1")
                    A("v_cndmask_b32 v%d, 0, v%d, vcc" % (KA + rr, KA + rr))
            for rr in range(4):
                A("buffer_atomic_add_f32 v%d, v%d, s[%d:%d], s%d offen offset:%d" % (KA + rr, vAT, SRD_KV, SRD_KV + 3, S_T2, rr * 256))
                A.vm.issue(("at", tag, db, rr))
            A("s_nop 1")
    A("s_mov_b32 s%d, s%d" % (S_A, S_WAVE))
    kv_round(0)
    A("s_cmp_lg_u32 s%d, 0" % S_WAVE)
    A("s_cbranch_scc1 L_att_kv2")
    A("s_mov_b32 s%d, 8" % S_A)
    sv = (list(A.vm.ops), A.vm.done)
    kv_round(1)
    A("s_waitcnt vmcnt(0)")
    A.vm.ops, A.vm.done = sv
    A.label("L_att_kv2")
    A.lg.all()
    stamp(A)
    def signal_kv():
        A("s_lshl_b32 s%d, s%d, 2" % (S_T0, S_ROLE)); A("s_add_u32 s%d, s%d, 80" % (S_T0, S_T0))
        A("v_mov_b32 v%d, 0x7fffff00" % vT0); A("v_mov_b32 v%d, s%d" % (vT1, S_T0))
        A("s_lshl_b32 s%d, s%d, 6" % (S_T1, S_WAVE))
        A("v_add_u32 v%d, s%d, v%d" % (vT2, S_T1, vL))
        A("v_cmp_eq_u32 vcc, 0, v%d" % vT2)
        A("v_mov_b32 v%d, 1" % vT3)
        A("s_nop 0")
        A("v_cndmask_b32 v%d, v%d, v%d, vcc" % (vT0, vT0, vT1))
        A("buffer_atomic_add v%d, v%d, s[%d:%d], 0 offen sc1" % (vT3, vT0, SRD_D, SRD_D + 3))
        A.vm.issue(("sig",))
    run_steps(18, 27, extra=dict(vm={19: [("at", 0, "z", 3)]}, post={19: signal_kv}))
    stamp(A)
    vWD = vDM
    A("v_mul_u32_u24 v%d, 3641, v%d" % (vT1, vL)); A("v_lshrrev_b32 v%d, 16, v%d" % (vT1, vT1))
    A("v_mul_u32_u24 v%d, 18, v%d" % (vT2, vT1)); A("v_sub_u32 v%d, v%d, v%d" % (vT2, vL, vT2))
    A("s_mul_i32 s%d, s%d, 18" % (S_T0, S_WAVE))
    A("v_add_u32 v%d, s%d, v%d" % (vT1, S_T0, vT1))
    A("v_mul_u32_u24 v%d, 1152, v%d" % (vT1, vT1))
    A("v_lshl_add_u32 v%d, v%d, 4, v%d" % (vWD, vT2, vT1))
    A("s_mul_i32 s%d, s%d, %d" % (S_MB, S_WAVE, 18 * 288))
    def cdma(ch):
        if ch >= 4: return
        A("s_mov_b32 exec_hi, 0x3fffff")
        for q in range(6):
            A("s_add_u32 m0, s%d, %d" % (S_MB, (ch & 1) * CH + q * 864))
            A("s_mov_b32 s%d, %d" % (S_T3, q * 3 * 1152 + ch * 288))
            A("buffer_load_dwordx4 v%d, s[%d:%d], s%d offen lds" % (vWD, SRD_B, SRD_B + 3, S_T3))
            A.vm.issue(("c", ch, q))
        A("s_mov_b32 exec_hi, -1")
    A("s_nop 7")
    TP3 = [ACC + 40 + i for i in range(8)]
    phi_vals(list(range(ACC, ACC + 40)), TP3)
    A("s_waitcnt lgkmcnt(0)"); A.lg.all()
    A("s_barrier")
    cdma(0); cdma(1)
    vPQ = vT0
    A("s_mul_i32 s%d, s%d, %d" % (S_T0, S_R, 2 * 9 * 512)); A("s_lshl_b32 s%d, s%d, 11" % (S_T1, S_C))
    A("s_add_u32 s%d, s%d, s%d" % (S_T0, S_T0, S_T1)); A("s_add_u32 s%d, s%d, %d" % (S_T0, S_T0, PQ))
    A("v_lshl_add_u32 v%d, v%d, 3, s%d" % (vPQ, vL, S_T0))
    for tau in range(5):
        for u in range(2):
            b = ACC + 8 * tau + 4 * u
            A("v_cvt_pk_bf16_f32 v%d, v%d, v%d" % (b, b, b + 1)); A("v_cvt_pk_bf16_f32 v%d, v%d, v%d" % (b + 1, b + 2, b + 3))
            A("ds_write_b64 v%d, v[%d:%d] offset:%d" % (vPQ, b, b + 1, u * 9 * 512 + tau * 512))
    sv_ops = None
    poll(lambda: (A("s_lshl_b32 s%d, s%d, 2" % (S_T0, S_ROLE)), A("s_add_u32 s%d, s%d, 80" % (S_T0, S_T0))), 16, vT1, vT2)
    stamp(A)
    KL, ZL = 0, 16
    HD, HE = 24, 28
    vAT, vG4x4, vE16, vFW = vT1, vT2, vT3, 30
    A("v_lshlrev_b32 v%d, 2, v%d" % (vAT, vL))
    A("v_lshrrev_b32 v%d, 4, v%d" % (vG4x4, vL)); A("v_lshlrev_b32 v%d, 2, v%d" % (vG4x4, vG4x4))
    A("v_and_b32 v%d, 15, v%d" % (vE16, vL))
    def kvf_round():
        A("s_mul_i32 s%d, s%d, 3072" % (S_T2, S_A))
        for j in range(3):
            for rr in range(4):
                A("buffer_load_dword v%d, v%d, s[%d:%d], s%d offen offset:%d sc1" % (KL + 4*j + rr, vAT, SRD_KV, SRD_KV + 3, S_T2, j * 1024 + rr * 256))
        A("s_add_u32 s%d, s%d, 27" % (S_T2, S_A)); A("s_lshl_b32 s%d, s%d, 10" % (S_T2, S_T2))
        for rr in range(4):
            A("buffer_load_dword v%d, v%d, s[%d:%d], s%d offen offset:%d sc1" % (ZL + rr, vAT, SRD_KV, SRD_KV + 3, S_T2, rr * 256))
        A("s_lshl_b32 s%d, s%d, 4" % (S_T0, S_A))
        for rr in range(4):
            A("v_add_u32 v%d, s%d, v%d" % (HD + rr, S_T0, vG4x4))
            if rr: A("v_add_u32 v%d, %d, v%d" % (HD + rr, rr, HD + rr))
            A("v_mul_u32_u24 v%d, 3641, v%d" % (HD + rr, HD + rr))
            A("v_lshrrev_b32 v%d, 16, v%d" % (HD + rr, HD + rr))
        A("s_mul_i32 s%d, s%d, %d" % (S_T0, S_A, 3 * 512)); A("s_add_u32 s%d, s%d, %d" % (S_T0, S_T0, KVF))
        A("v_lshl_add_u32 v%d, v%d, 3, s%d" % (vFW, vL, S_T0))
        A("s_waitcnt vmcnt(0)")
        for j in range(3):
            A("s_add_u32 s%d, s%d, %d" % (S_T0, S_A, j + 15)); A("s_lshl_b32 s%d, s%d, 4" % (S_T0, S_T0)); A("s_sub_u32 s%d, s%d, 256" % (S_T0, S_T0))
            A("v_add_u32 v%d, s%d, v%d" % (HE, S_T0, vE16))
            A("v_and_b32 v%d, 0xff, v%d" % (HE, HE))
            A("v_mul_u32_u24 v%d, 3641, v%d" % (HE, HE))
            A("v_lshrrev_b32 v%d, 16, v%d" % (HE, HE))
            for rr in range(4):
                A("v_cmp_eq_u32 vcc, v%d, v%d" % (HD + rr, HE))
                A("s_nop 1")
                A("v_cndmask_b32 v%d, 0, v%d, vcc" % (32 + rr, ZL + rr))
                A("v_cndmask_b32 v%d, 0, v%d, vcc" % (KL + 4*j + rr, KL + 4*j + rr))
            A("v_cvt_pk_bf16_f32 v36, v%d, v%d" % (KL + 4*j, KL + 4*j + 1)); A("v_cvt_pk_bf16_f32 v37, v%d, v%d" % (KL + 4*j + 2, KL + 4*j + 3))
            A("v_cvt_pk_bf16_f32 v38, v32, v33"); A("v_cvt_pk_bf16_f32 v39, v34, v35")
            A("ds_write_b64 v%d, v[36:37] offset:%d" % (vFW, j * 512))
            A("ds_write_b64 v%d, v[38:39] offset:%d" % (vFW, (ZF - KVF) + j * 512))
            A("s_nop 1")
    A("s_mov_b32 s%d, s%d" % (S_A, S_WAVE))
    kvf_round()
    A("s_cmp_lg_u32 s%d, 0" % S_WAVE)
    A("s_cbranch_scc1 L_att_kvf2")
    A("s_mov_b32 s%d, 8" % S_A)
    kvf_round()
    A.label("L_att_kvf2")
    A("s_waitcnt vmcnt(0) lgkmcnt(0)"); A.vm.all(); A.lg.all()
    A("s_barrier")
    PF = 40
    vPR = vT0
    A("s_lshl_b32 s%d, s%d, 1" % (S_T0, S_R)); A("s_add_u32 s%d, s%d, s%d" % (S_T0, S_T0, S_C))
    A("s_mul_i32 s%d, s%d, %d" % (S_T0, S_T0, 9 * 512)); A("s_add_u32 s%d, s%d, %d" % (S_T0, S_T0, PQ))
    A("v_lshl_add_u32 v%d, v%d, 3, s%d" % (vPR, vL, S_T0))
    for t in range(9):
        A("ds_read_b64 v[%d:%d], v%d offset:%d" % (PF + 2*t, PF + 2*t + 1, vPR, t * 512))
    vKR = vT1
    A("v_lshlrev_b32 v%d, 3, v%d" % (vKR, vL)); A("v_add_u32 v%d, %d, v%d" % (vKR, KVF, vKR))
    KF, ZFr, NUM, DEN, OT = 60, 66, 72, 108, 144
    for b in range(9):
        al = [a for a in (b - 1, b, b + 1) if 0 <= a <= 8]
        for i_, a in enumerate(al):
            j = b - a + 1
            A("ds_read_b64 v[%d:%d], v%d offset:%d" % (KF + 2*i_, KF + 2*i_ + 1, vKR, (a * 3 + j) * 512))
            A("ds_read_b64 v[%d:%d], v%d offset:%d" % (ZFr + 2*i_, ZFr + 2*i_ + 1, vKR, (ZF - KVF) + (a * 3 + j) * 512))
        A("s_waitcnt lgkmcnt(0)")
        for i_, a in enumerate(al):
            cs = "0" if i_ == 0 else "v[%d:%d]" % (NUM + 4*b, NUM + 4*b + 3)
            A("v_mfma_f32_16x16x16_bf16 v[%d:%d], v[%d:%d], v[%d:%d], %s" % (NUM + 4*b, NUM + 4*b + 3, KF + 2*i_, KF + 2*i_ + 1, PF + 2*a, PF + 2*a + 1, cs))
        for i_, a in enumerate(al):
            cs = "0" if i_ == 0 else "v[%d:%d]" % (DEN + 4*b, DEN + 4*b + 3)
            A("v_mfma_f32_16x16x16_bf16 v[%d:%d], v[%d:%d], v[%d:%d], %s" % (DEN + 4*b, DEN + 4*b + 3, ZFr + 2*i_, ZFr + 2*i_ + 1, PF + 2*a, PF + 2*a + 1, cs))
        A("s_nop 1")
    A("s_nop 7"); A("s_nop 1")
    for i_ in range(36): A("v_add_f32 v%d, 0x%x, v%d" % (DEN + i_, C1E6, DEN + i_))
    for i_ in range(36): A("v_rcp_f32 v%d, v%d" % (DEN + i_, DEN + i_))
    A("s_nop 0")
    for i_ in range(36): A("v_mul_f32 v%d, v%d, v%d" % (NUM + i_, NUM + i_, DEN + i_))
    for b in range(9):
        A("v_cvt_pk_bf16_f32 v%d, v%d, v%d" % (OT + 2*b, NUM + 4*b, NUM + 4*b + 1)); A("v_cvt_pk_bf16_f32 v%d, v%d, v%d" % (OT + 2*b + 1, NUM + 4*b + 2, NUM + 4*b + 3))
        A("ds_write_b64 v%d, v[%d:%d] offset:%d" % (vPR, OT + 2*b, OT + 2*b + 1, b * 512))
    A("s_waitcnt vmcnt(0) lgkmcnt(0)")
    A("s_barrier")
    OB = 0
    A("s_mul_i32 s%d, s%d, %d" % (S_T0, S_R, 2 * 9 * 512)); A("s_add_u32 s%d, s%d, %d" % (S_T0, S_T0, PQ))
    A("v_lshl_add_u32 v%d, v%d, 3, s%d" % (vPR, vL, S_T0))
    for u in range(2):
        for b in range(9):
            A("ds_read_b64 v[%d:%d], v%d offset:%d" % (OB + 20*u + 2*b, OB + 20*u + 2*b + 1, vPR, u * 9 * 512 + b * 512))
    stamp(A)
    vCR = [40, 41]
    A("v_lshrrev_b32 v%d, 4, v%d" % (vT1, vL)); A("v_lshlrev_b32 v%d, 2, v%d" % (vT1, vT1))
    A("v_lshrrev_b32 v%d, 2, v%d" % (vT2, vL)); A("v_and_b32 v%d, 3, v%d" % (vT2, vT2))
    A("v_add_u32 v%d, v%d, v%d" % (vT1, vT1, vT2))
    A("v_mul_u32_u24 v%d, 288, v%d" % (vT1, vT1))
    A("v_and_b32 v%d, 3, v%d" % (vT2, vL))
    A("v_lshl_add_u32 v%d, v%d, 3, v%d" % (vT1, vT2, vT1))
    A("s_lshl_b32 s%d, s%d, 7" % (S_T0, S_C))
    A("v_add_u32 v%d, s%d, v%d" % (vCR[0], S_T0, vT1))
    A("v_add_u32 v%d, %d, v%d" % (vCR[1], CH, vCR[0]))
    vSO = 42
    A("v_and_b32 v%d, 15, v%d" % (vT1, vL))
    A("v_lshrrev_b32 v%d, 5, v%d" % (vT2, vL)); A("v_lshl_add_u32 v%d, v%d, 4, v%d" % (vT1, vT2, vT1))
    A("v_lshrrev_b32 v%d, 4, v%d" % (vT2, vL)); A("v_and_b32 v%d, 1, v%d" % (vT2, vT2)); A("v_lshl_add_u32 v%d, v%d, 5, v%d" % (vT1, vT2, vT1))
    A("s_mul_i32 s%d, s%d, %d" % (S_T0, S_R, 18 * 2048))
    A("v_lshl_add_u32 v%d, v%d, 4, s%d" % (vSO, vT1, S_T0))
    A("s_lshl_b32 s%d, s%d, 2" % (S_B, S_C))
    WF5 = 48
    AC5 = 96
    PK5 = 120
    A("s_waitcnt lgkmcnt(0)"); A.lg.all(); A.vm.all()
    def tread(ch, tau):
        st = (ch * 5 + tau) & 1
        f = WF5 + 18 * st
        base = vCR[ch & 1]
        for pb in range(4):
            A("ds_read_b64_tr_b16 v[%d:%d], v%d offset:%d" % (f + 4*pb, f + 4*pb + 1, base, (32 * pb) * 288 + 32 * tau))
            A("ds_read_b64_tr_b16 v[%d:%d], v%d offset:%d" % (f + 4*pb + 2, f + 4*pb + 3, base, (32 * pb + 16) * 288 + 32 * tau))
        A("ds_read_b64_tr_b16 v[%d:%d], v%d offset:%d" % (f + 16, f + 17, base, 128 * 288 + 32 * tau))
        for q in range(9): A.lg.issue(("t", ch, tau, q))
    def tstore(ch, tau):
        st = (ch * 5 + tau) & 1
        ac = AC5 + 8 * st; pk = PK5 + 4 * st
        A("v_cvt_pk_bf16_f32 v%d, v%d, v%d" % (pk, ac, ac + 1)); A("v_cvt_pk_bf16_f32 v%d, v%d, v%d" % (pk + 1, ac + 2, ac + 3))
        A("v_cvt_pk_bf16_f32 v%d, v%d, v%d" % (pk + 2, ac + 4, ac + 5)); A("v_cvt_pk_bf16_f32 v%d, v%d, v%d" % (pk + 3, ac + 6, ac + 7))
        A("s_add_u32 s%d, s%d, %d" % (S_T2, S_B, 9 * ch + tau)); A("s_lshl_b32 s%d, s%d, 10" % (S_T2, S_T2))
        A("v_permlane32_swap_b32 v%d, v%d" % (pk, pk + 2)); A("v_permlane32_swap_b32 v%d, v%d" % (pk + 1, pk + 3))
        A("s_nop 0")
        A("buffer_store_dwordx4 v[%d:%d], v%d, s[%d:%d], s%d offen" % (pk, pk + 3, vSO, SRD_P, SRD_P + 3, S_T2))
        A.vm.issue(("st", ch, tau))
    items = [(ch, tau) for ch in range(4) for tau in range(5)]
    tread(0, 0)
    for idx, (ch, tau) in enumerate(items):
        st = idx & 1
        f = WF5 + 18 * st; ac = AC5 + 8 * st
        nxt = items[idx + 1] if idx + 1 < len(items) else None
        if nxt and nxt[0] != ch:
            A.wait(vm=[("c", nxt[0], 5)] if nxt[0] >= 2 else None, lg=[("t", ch, tau, 8)])
            A("s_barrier")
        if nxt: tread(*nxt)
        A.wait(lg=[("t", ch, tau, 8)])
        for u in range(2):
            for pb in range(4):
                cs = "0" if pb == 0 else "v[%d:%d]" % (ac + 4*u, ac + 4*u + 3)
                A("v_mfma_f32_16x16x32_bf16 v[%d:%d], v[%d:%d], v[%d:%d], %s" % (ac + 4*u, ac + 4*u + 3, f + 4*pb, f + 4*pb + 3, OB + 20*u + 4*pb, OB + 20*u + 4*pb + 3, cs))
        A("s_nop 3")
        for u in range(2):
            A("v_mfma_f32_16x16x16_bf16 v[%d:%d], v[%d:%d], v[%d:%d], v[%d:%d]" % (ac + 4*u, ac + 4*u + 3, f + 16, f + 17, OB + 20*u + 16, OB + 20*u + 17, ac + 4*u, ac + 4*u + 3))
        if idx >= 1: tstore(*items[idx - 1])
        if tau == 0 and ch >= 1 and ch + 1 < 4:
            cdma(ch + 1)
    A("s_nop 7"); A("s_nop 1")
    tstore(*items[-1])
    stamp(A)
    stamp_flush(A)
    A("s_endpgm")

def k1_kernel(nmlp=12, with_att=False):
    A = K()
    A("s_cmp_ge_u32 s2, 256")
    A("s_cbranch_scc1 L_k1_end")
    A("s_load_dwordx16 s[4:19], s[0:1], 0")
    A("s_load_dwordx2 s[20:21], s[0:1], 64")
    if STAMPS: A("s_memrealtime s[92:93]")
    A("v_lshrrev_b32 v1, 6, v0")
    A("s_nop 0")
    A("v_readfirstlane_b32 s%d, v1" % S_WAVE)
    A("s_mov_b32 s%d, 0x3f803f80" % S_ONES)
    A("s_mov_b32 s%d, 0x%x" % (S_L2E, LOG2E))
    A("s_and_b32 s%d, s%d, 3" % (S_R, S_WAVE))
    A("s_lshr_b32 s%d, s%d, 2" % (S_C, S_WAVE))
    A("s_and_b32 s%d, s2, 7" % S_T0)
    A("s_lshr_b32 s%d, s2, 3" % S_T1)
    A("s_lshr_b32 s%d, s%d, 1" % (S_T2, S_T0))
    A("s_and_b32 s%d, s%d, 1" % (S_T0, S_T0))
    A("s_lshl_b32 s%d, s%d, 3" % (S_T0, S_T0))
    A("s_and_b32 s%d, s%d, 7" % (S_TILE, S_T1))
    A("s_add_u32 s%d, s%d, s%d" % (S_TILE, S_TILE, S_T0))
    A("s_lshr_b32 s%d, s%d, 3" % (S_T1, S_T1))
    A("s_mul_i32 s%d, s%d, 3" % (S_T3, S_T2))
    A("s_add_u32 s%d, s%d, s%d" % (S_ROLE, S_T3, S_T1))
    A("s_waitcnt lgkmcnt(0)")
    srd(A, SRD_X, S_X, S_X + 1, S * D * 2)
    A("s_cmp_lt_u32 s%d, 3" % S_T1)
    A("s_cbranch_scc1 L_mlp")
    A("s_mov_b32 s%d, s%d" % (S_ROLE, S_T2))
    if with_att:
        A("s_branch L_att")
    A.label("L_k1_end")
    A("s_endpgm")
    A.label("L_mlp")
    mlp_role(A)
    if with_att:
        A.label("L_att")
        att_role(A)
    return A

def k3_kernel(parts):
    A = K()
    A("s_cmp_ge_u32 s2, 1152")
    A("s_cbranch_scc1 L_k3_end")
    A("s_load_dwordx2 s[4:5], s[0:1], 0")
    A("s_load_dwordx2 s[6:7], s[0:1], 48")
    A("s_load_dwordx2 s[8:9], s[0:1], 64")
    A("v_and_b32 v1, 63, v0")
    A("v_lshrrev_b32 v2, 6, v0")
    A("s_lshl_b32 s3, s2, 11")
    A("v_lshlrev_b32 v3, 4, v0")
    A("v_add_u32 v3, s3, v3")
    A("s_mul_hi_u32 s10, s2, 0x%x" % ((2**32 + 17) // 18))
    A("s_mul_i32 s11, s10, 18")
    A("s_sub_u32 s11, s2, s11")
    A("v_and_b32 v4, 31, v1")
    A("s_lshl_b32 s12, s10, 5")
    A("v_add_u32 v4, s12, v4")
    A("s_movk_i32 s13, 1152")
    A("v_mul_lo_u32 v4, v4, s13")
    A("v_lshrrev_b32 v5, 5, v1")
    A("v_lshl_add_u32 v5, v2, 1, v5")
    A("v_lshlrev_b32 v5, 4, v5")
    A("s_lshl_b32 s12, s11, 6")
    A("v_add_u32 v4, v4, v5")
    A("v_add_u32 v4, s12, v4")
    A("s_waitcnt lgkmcnt(0)")
    srd(A, 16, 4, 5, S * D * 2)
    srd(A, 20, 6, 7, S * D * 2)
    srd(A, 24, 8, 9, NPART * PART_BYTES)
    A("buffer_load_dwordx4 v[8:11], v4, s[16:19], 0 offen")
    for n, p in enumerate(parts):
        A("s_mov_b32 s14, %d" % (p * PART_BYTES))
        A("buffer_load_dwordx4 v[%d:%d], v3, s[24:27], s14 offen" % (32 + 4*n, 35 + 4*n))
    A("s_mov_b32 s28, 0x00003f80")
    A("s_mov_b32 s29, 0x3f800000")
    for q in range(8): A("v_mov_b32 v%d, 0" % (16 + q))
    npart = len(parts)
    for n in range(npart):
        A("s_waitcnt vmcnt(%d)" % (npart - 1 - n))
        for q in range(4):
            A("v_dot2_f32_bf16 v%d, v%d, s28, v%d" % (16 + 2*q, 32 + 4*n + q, 16 + 2*q))
            A("v_dot2_f32_bf16 v%d, v%d, s29, v%d" % (17 + 2*q, 32 + 4*n + q, 17 + 2*q))
    A("s_nop 2")
    for q in range(4):
        A("v_permlane32_swap_b32 v%d, v%d" % (16 + q, 20 + q))
    A("s_nop 1")
    for q in range(4):
        A("v_lshlrev_b32 v24, 16, v%d" % (8 + q))
        A("v_and_b32 v25, 0xffff0000, v%d" % (8 + q))
        A("v_add_f32 v%d, v%d, v24" % (16 + 2*q, 16 + 2*q))
        A("v_add_f32 v%d, v%d, v25" % (17 + 2*q, 17 + 2*q))
    for q in range(4):
        A("v_cvt_pk_bf16_f32 v%d, v%d, v%d" % (8 + q, 16 + 2*q, 17 + 2*q))
    A("buffer_store_dwordx4 v[8:11], v4, s[20:23], 0 offen")
    A.label("L_k3_end")
    A("s_endpgm")
    return A

HDR = """; Kernarg layout for this problem (72 bytes, ptrs only, base s[0:1]):
"""

def build_all(path, with_att=False):
    k1 = k1_kernel(with_att=with_att)
    parts = list(range(16)) if with_att else list(range(12))
    k3 = k3_kernel(parts)
    n1, n3 = "fused_main_kernel", "reduce_kernel"
    t1, r1 = kernel_wrap(n1, k1.text(), 256, 96)
    t3, r3 = kernel_wrap(n3, k3.text(), 32 + 4 * len(parts), 40)
    hdr = HDR + "; @launch kernel=%s grid=(256,1,1) block=(512,1,1) lds=163840\n" % n1
    hdr += "; @launch kernel=%s grid=(1152,1,1) block=(128,1,1) lds=0\n" % n3
    txt = hdr + '.amdgcn_target "amdgcn-amd-amdhsa--gfx950"\n' + t1 + t3 + r1 + r3
    open(path, "w").write(txt)
    return txt

if __name__ == "__main__":
    out = sys.argv[1] if len(sys.argv) > 1 else "k.s"
    if "stamps" in sys.argv: STAMPS = True
    if "repeat" in sys.argv: REPEAT = True
    for a in sys.argv:
        if a.startswith("exp="): EXP = a[4:]
    if "pro" in sys.argv: PRO = True; STAMP_STEPS = (1,)
    for a in sys.argv:
        if a.startswith("steps="): STAMP_STEPS = tuple(int(x) for x in a[6:].split(","))
    build_all(out, with_att=('noatt' not in sys.argv))
    build(out)
    print("built", out)
```

```python
import sys, math
from asmlib import *

NAME = "parallel_sum__linear_attn_block__dense_activation_silu__prompt"
S, D, F = 2048, 576, 4608
PART_BYTES = S * D * 2
NPART = 16
WS_KV = 40 << 20
LOG2E = 0x3fb8aa3b
EPS_LN = 0x3727c5ac
INV576 = 0x3ae38e39

class Ctr:
    def __init__(self, maxv):
        self.ops = []; self.done = 0; self.maxv = maxv
    def issue(self, tag):
        self.ops.append(tag)
    def need(self, tags):
        if not isinstance(tags, (list, set, tuple)) or (isinstance(tags, tuple) and not isinstance(tags[0], tuple)):
            tags = [tags]
        idx = -1
        for i, t in enumerate(self.ops):
            if t in tags: idx = max(idx, i)
        for t in tags:
            assert t in self.ops, ("tag not issued", t)
        if idx < self.done: return None
        n = len(self.ops) - 1 - idx
        n = min(n, self.maxv)
        self.done = max(self.done, len(self.ops) - n)
        return n
    def all(self):
        self.done = len(self.ops)

class K(Asm):
    def __init__(self):
        super().__init__()
        self.vm = Ctr(63); self.lg = Ctr(15)
    def wait(self, vm=None, lg=None):
        a = self.vm.need(vm) if vm else None
        b = self.lg.need(lg) if lg else None
        parts = []
        if a is not None: parts.append("vmcnt(%d)" % a)
        if b is not None: parts.append("lgkmcnt(%d)" % b)
        if parts: self("s_waitcnt " + " ".join(parts))
    def waitall(self):
        self("s_waitcnt vmcnt(0) lgkmcnt(0)"); self.vm.all(); self.lg.all()

def srd(A, sreg, lo, hi, nbytes):
    A("s_mov_b32 s%d, s%d" % (sreg, lo))
    A("s_and_b32 s%d, s%d, 0xffff" % (sreg + 1, hi))
    A("s_mov_b32 s%d, 0x%x" % (sreg + 2, nbytes))
    A("s_mov_b32 s%d, 0x20000" % (sreg + 3))

def srd_off(A, sreg, lo, hi, soff, total, tmp):
    A("s_add_u32 s%d, s%d, s%d" % (sreg, lo, soff))
    A("s_addc_u32 s%d, s%d, 0" % (sreg + 1, hi))
    A("s_and_b32 s%d, s%d, 0xffff" % (sreg + 1, sreg + 1))
    A("s_sub_u32 s%d, 0x%x, s%d" % (sreg + 2, total, soff))
    A("s_mov_b32 s%d, 0x20000" % (sreg + 3))

STAMPS = False
REPEAT = False
DBGT = False
EXP = ''
PRO = False
STAMP_STEPS = (1, 9, 54, 60)
WS_STAMP = 48 << 20
nstamp = [0]
def stamp(A):
    if not STAMPS: return
    k = nstamp[0]; nstamp[0] += 1
    A("s_memtime s[%d:%d]" % (60 + 2*k, 61 + 2*k))
def stamp_flush(A):
    if not STAMPS: return
    k = nstamp[0]
    A("s_memrealtime s[%d:%d]" % (60 + 2*k, 61 + 2*k))
    A("s_waitcnt lgkmcnt(0)")
    A("s_cmp_lg_u32 s%d, 0" % S_WAVE)
    A("s_cbranch_scc1 L_stamp_done%d" % id(A.lines) )
    A("s_lshl_b32 s%d, s2, 7" % S_T0)
    A("s_add_u32 s%d, s%d, %d" % (S_T0, S_T0, WS_STAMP))
    A("s_add_u32 s56, s%d, s%d" % (S_WS, S_T0)); A("s_addc_u32 s57, s%d, 0" % (S_WS + 1))
    A("s_and_b32 s57, s57, 0xffff"); A("s_mov_b32 s58, 128"); A("s_mov_b32 s59, 0x20000")
    A("v_mov_b32 v250, 0")
    for j in range(k + 1):
        A("v_mov_b32 v251, s%d" % (60 + 2*j))
        A("buffer_store_dword v251, v250, s[56:59], 0 offen offset:%d" % (4*j))
    if PRO:
        A("v_mov_b32 v251, s88")
        A("buffer_store_dword v251, v250, s[56:59], 0 offen offset:%d" % (4*(k+2)))
    A("v_mov_b32 v251, s%d" % 92)
    A("buffer_store_dword v251, v250, s[56:59], 0 offen offset:%d" % (4*(k+1)))
    A.label("L_stamp_done%d" % id(A.lines))
    nstamp[0] = 0


def dbgt_end(A, slot):
    if not DBGT: return
    A("s_load_dwordx2 s[60:61], s[0:1], 56")
    A("s_memrealtime s[62:63]")
    A("s_waitcnt lgkmcnt(0)")
    A("s_mov_b32 s64, s60"); A("s_and_b32 s65, s61, 0xffff"); A("s_mov_b32 s66, 256"); A("s_mov_b32 s67, 0x20000")
    A("s_not_b32 s68, s92")
    A("s_mov_b64 exec, 1")
    A("v_mov_b32 v250, s68"); A("v_mov_b32 v251, 32")
    A("buffer_atomic_umax v250, v251, s[64:67], 0 offen")
    A("v_mov_b32 v252, s62"); A("v_mov_b32 v253, %d" % (4 * slot))
    A("buffer_atomic_umax v252, v253, s[64:67], 0 offen")
    A("s_waitcnt vmcnt(0)")

S_X, S_WQKV, S_WO, S_W1, S_W2, S_OUT, S_DBG, S_WS = 4, 6, 8, 12, 14, 16, 18, 20
SRD_X, SRD_A, SRD_B, SRD_P = 24, 28, 32, 36
S_WAVE, S_R, S_C, S_ROLE, S_TILE = 40, 41, 42, 43, 44
S_M0B, S_T0, S_T1, S_T2, S_T3 = 45, 46, 47, 48, 49
S_ONES, S_L2E, S_XM0 = 50, 51, 52

def ln_stats(A, regs_list, vsum, vsq, tmp):
    A("v_mov_b32 v%d, 0" % vsum); A("v_mov_b32 v%d, 0" % (vsum + 1))
    A("v_mov_b32 v%d, 0" % vsq); A("v_mov_b32 v%d, 0" % (vsq + 1))
    for n, r in enumerate(regs_list):
        e = n & 1
        A("v_dot2_f32_bf16 v%d, v%d, s%d, v%d" % (vsum + e, r, S_ONES, vsum + e))
        A("v_dot2_f32_bf16 v%d, v%d, v%d, v%d" % (vsq + e, r, r, vsq + e))
    A("s_nop 2")
    A("v_add_f32 v%d, v%d, v%d" % (vsum, vsum, vsum + 1))
    A("v_add_f32 v%d, v%d, v%d" % (vsq, vsq, vsq + 1))

def xsum32(A, r, tmp):
    A("v_mov_b32 v%d, v%d" % (tmp, r))
    A("s_nop 1")
    A("v_permlane32_swap_b32 v%d, v%d" % (r, tmp))
    A("s_nop 1")
    A("v_add_f32 v%d, v%d, v%d" % (r, r, tmp))

def xsum16(A, r, tmp):
    A("v_mov_b32 v%d, v%d" % (tmp, r))
    A("s_nop 1")
    A("v_permlane16_swap_b32 v%d, v%d" % (r, tmp))
    A("s_nop 1")
    A("v_add_f32 v%d, v%d, v%d" % (r, r, tmp))

def ln_coef(A, vsum, vsq, va, vb, tmp, scale_l2e):
    A("v_mul_f32 v%d, 0x%x, v%d" % (vsum, INV576, vsum))
    A("v_mul_f32 v%d, 0x%x, v%d" % (vsq, INV576, vsq))
    A("v_fma_f32 v%d, -v%d, v%d, v%d" % (vsq, vsum, vsum, vsq))
    A("v_max_f32 v%d, 0, v%d" % (vsq, vsq))
    A("v_add_f32 v%d, 0x%x, v%d" % (vsq, EPS_LN, vsq))
    A("v_rsq_f32 v%d, v%d" % (va, vsq))
    A("s_nop 0")
    if scale_l2e:
        A("v_mul_f32 v%d, s%d, v%d" % (va, S_L2E, va))
    A("v_mul_f32 v%d, v%d, v%d" % (vb, vsum, va))
    A("v_sub_f32 v%d, 0, v%d" % (vb, vb))

def ln_apply(A, regs_list, va, vb, temps):
    npair = len(temps) // 2
    pend = []
    for n, r in enumerate(regs_list):
        t0 = temps[(n % npair) * 2]; t1 = t0 + 1
        A("v_lshlrev_b32 v%d, 16, v%d" % (t0, r))
        A("v_and_b32 v%d, 0xffff0000, v%d" % (t1, r))
        A("v_fma_f32 v%d, v%d, v%d, v%d" % (t0, t0, va, vb))
        A("v_fma_f32 v%d, v%d, v%d, v%d" % (t1, t1, va, vb))
        A("v_cvt_pk_bf16_f32 v%d, v%d, v%d" % (r, t0, t1))


XB = 16384
XT = XB + 131072
def x_dma(A, vL, vt0, vt1, vt2):
    A("s_lshl_b32 s%d, s%d, 7" % (S_T0, S_TILE))
    A("s_lshl_b32 s%d, s%d, 4" % (S_T1, S_WAVE))
    A("s_add_u32 s%d, s%d, s%d" % (S_T0, S_T0, S_T1))
    A("s_mul_i32 s%d, s%d, 1152" % (S_T0, S_T0))
    A("s_lshl_b32 s%d, s%d, 14" % (S_T1, S_WAVE))
    A("s_add_u32 s%d, s%d, %d" % (S_T1, S_T1, XB))
    A("v_lshlrev_b32 v%d, 4, v%d" % (vt0, vL))
    for e in range(16):
        A("v_xor_b32 v%d, %d, v%d" % (vt1 + (e & 1), e * 16, vt0))
        A("s_add_u32 m0, s%d, %d" % (S_T1, e * 1024))
        A("s_add_u32 s%d, s%d, %d" % (S_T2, S_T0, e * 1152))
        A("buffer_load_dwordx4 v%d, s[%d:%d], s%d offen lds" % (vt1 + (e & 1), SRD_X, SRD_X + 3, S_T2))
        A.vm.issue(("x", e))
    A("s_lshl_b32 s%d, s%d, 11" % (S_T1, S_WAVE))
    A("s_add_u32 s%d, s%d, %d" % (S_T1, S_T1, XT))
    for q in range(2):
        t = vt1 + q
        A("v_lshrrev_b32 v%d, 4, v%d" % (vt0, vL))
        A("v_add_u32 v%d, %d, v%d" % (vt0, 4 * q, vt0))
        A("v_and_b32 v%d, 7, v%d" % (t, vL))
        A("v_xor_b32 v%d, v%d, v%d" % (t, t, vt0))
        A("v_lshlrev_b32 v%d, 4, v%d" % (t, t))
        A("v_lshrrev_b32 v%d, 3, v%d" % (vt0, vL))
        A("v_mul_u32_u24 v%d, 1152, v%d" % (vt0, vt0))
        A("v_add_u32 v%d, v%d, v%d" % (t, t, vt0))
        A("s_add_u32 m0, s%d, %d" % (S_T1, q * 1024))
        A("s_add_u32 s%d, s%d, %d" % (S_T2, S_T0, q * 8 * 1152 + 1024))
        A("buffer_load_dwordx4 v%d, s[%d:%d], s%d offen lds" % (t, SRD_X, SRD_X + 3, S_T2))
        A.vm.issue(("x", 16 + q))

S_SEL0, S_SEL1 = 53, 54

def x_unit_dma_setup(A, vL, vDX, vT0, vT1, vT2, vT3, XS):
    A("s_lshl_b32 s%d, s%d, 7" % (S_T0, S_TILE))
    A("s_lshl_b32 s%d, s%d, 4" % (S_T1, S_WAVE))
    A("s_add_u32 s%d, s%d, s%d" % (S_T0, S_T0, S_T1))
    A("s_mul_i32 s%d, s%d, 1152" % (S_T0, S_T0))
    A("v_lshrrev_b32 v%d, 3, v%d" % (vT0, vL))
    A("v_mul_u32_u24 v%d, 1152, v%d" % (vT1, vT0))
    A("v_add_u32 v%d, s%d, v%d" % (vT1, S_T0, vT1))
    A("v_lshrrev_b32 v%d, 4, v%d" % (vT2, vL))
    A("v_and_b32 v%d, 7, v%d" % (vT3, vL))
    A("v_xor_b32 v%d, v%d, v%d" % (vDX, vT3, vT2))
    A("v_lshl_add_u32 v%d, v%d, 4, v%d" % (vDX, vDX, vT1))
    A("v_add_u32 v%d, 4, v%d" % (vT2, vT2))
    A("v_xor_b32 v%d, v%d, v%d" % (vDX + 1, vT3, vT2))
    A("v_lshl_add_u32 v%d, v%d, 4, v%d" % (vDX + 1, vDX + 1, vT1))
    A("v_add_u32 v%d, %d, v%d" % (vDX + 1, 8 * 1152, vDX + 1))
    A("s_lshl_b32 s%d, s%d, 11" % (S_XM0, S_WAVE))
    A("s_add_u32 s%d, s%d, %d" % (S_XM0, S_XM0, XS))

def x_unit_dma(A, kb, vDX, nslots=6):
    slot = kb % nslots
    for q in range(2):
        A("s_add_u32 m0, s%d, %d" % (S_XM0, slot * 16384 + q * 1024))
        A("s_movk_i32 s%d, %d" % (S_T3, kb * 128))
        A("buffer_load_dwordx4 v%d, s[%d:%d], s%d offen lds" % (vDX + q, SRD_X, SRD_X + 3, S_T3))
        A.vm.issue(("x", kb, q))

def mlp_role(A, dbg=None):
    XN = 0
    ACC = [144, 160]
    WF = 176
    P = 208
    T = 216
    vD1, vD2 = 224, 225
    vR1, vR2, vHW, vHR, vST, vA, vC2 = 226, 227, 228, 229, 230, 231, 232
    U = 240
    vXR = 240
    vDX = 244
    vS, vQ = 246, 248
    vL, vT0, vT1, vT2, vT3 = 250, 251, 252, 253, 254
    RING = 8
    HBASE = 65536
    XS = HBASE
    NSC = 6
    NU1 = NSC * 9
    NU2 = 9 * 6
    NU = NU1 + NU2
    LOOK = RING - 1

    stamp(A)
    A("v_and_b32 v%d, 63, v0" % vL)
    x_unit_dma_setup(A, vL, vDX, vT0, vT1, vT2, vT3, XS)
    for kb in range(6): x_unit_dma(A, kb, vDX)
    A("s_mul_i32 s%d, s%d, 768" % (S_T0, S_ROLE))
    srd_off(A, SRD_A, S_W1, S_W1 + 1, S_T0, D * F * 2, None)
    A("s_lshl_b32 s%d, s%d, 3" % (S_T0, S_WAVE))
    A("v_add_u32 v%d, s%d, v%d" % (vT0, S_T0, vT0))
    A("v_lshrrev_b32 v%d, 2, v%d" % (vT2, vL)); A("v_and_b32 v%d, 4, v%d" % (vT2, vT2))
    A("v_xor_b32 v%d, v%d, v%d" % (vT2, vT3, vT2))
    A("v_lshlrev_b32 v%d, 4, v%d" % (vT2, vT2))
    A("v_mul_u32_u24 v%d, 9216, v%d" % (vD1, vT0))
    A("v_add_u32 v%d, v%d, v%d" % (vD1, vD1, vT2))
    A("v_mul_u32_u24 v%d, 1152, v%d" % (vD2, vT0))
    A("v_add_u32 v%d, v%d, v%d" % (vD2, vD2, vT2))
    A("s_lshl_b32 s%d, s%d, 10" % (S_M0B, S_WAVE))

    def dma(un):
        if un >= NU: return
        slot = un % RING
        A("s_add_u32 m0, s%d, %d" % (S_M0B, slot * 8192))
        if un < NU1:
            sc, kb = divmod(un, 9)
            A("s_mov_b32 s%d, %d" % (S_T3, kb * 64 * 9216 + sc * 128))
            A("buffer_load_dwordx4 v%d, s[%d:%d], s%d offen lds" % (vD1, SRD_A, SRD_A+3, S_T3))
        else:
            t, fb = divmod(un - NU1, 6)
            A("s_mov_b32 s%d, %d" % (S_T3, fb * 64 * 1152 + t * 128))
            A("buffer_load_dwordx4 v%d, s[%d:%d], s%d offen lds" % (vD2, SRD_B, SRD_B+3, S_T3))
        A.vm.issue(("dma", un))
    dma(0); dma(1)
    A("s_mul_i32 s%d, s%d, %d" % (S_T0, S_ROLE, 384 * 1152))
    srd_off(A, SRD_B, S_W2, S_W2 + 1, S_T0, D * F * 2, None)
    A("s_mul_i32 s%d, s%d, %d" % (S_T0, S_ROLE, PART_BYTES))
    A("s_mul_i32 s%d, s%d, %d" % (S_T1, S_TILE, 4 * 18 * 2048))
    A("s_add_u32 s%d, s%d, s%d" % (S_T0, S_T0, S_T1))
    srd_off(A, SRD_P, S_WS, S_WS + 1, S_T0, NPART * PART_BYTES, None)
    A("v_lshrrev_b32 v%d, 5, v%d" % (vT1, vL))
    A("v_lshrrev_b32 v%d, 2, v%d" % (vT0, vL)); A("v_and_b32 v%d, 3, v%d" % (vT0, vT0))
    A("v_lshrrev_b32 v%d, 4, v%d" % (vT2, vL)); A("v_and_b32 v%d, 1, v%d" % (vT2, vT2))
    A("v_lshlrev_b32 v%d, 1, v%d" % (vT2, vT2))
    A("v_lshrrev_b32 v%d, 1, v%d" % (vT3, vL)); A("v_and_b32 v%d, 1, v%d" % (vT3, vT3))
    A("v_add_u32 v%d, v%d, v%d" % (vT2, vT2, vT3))
    A("s_lshl_b32 s%d, s%d, 2" % (S_T0, S_C))
    A("v_add_u32 v%d, s%d, v%d" % (vT2, S_T0, vT2))
    A("v_lshrrev_b32 v%d, 1, v%d" % (vT3, vT0)); A("v_lshlrev_b32 v%d, 2, v%d" % (vT3, vT3))
    A("v_xor_b32 v%d, v%d, v%d" % (vT2, vT2, vT3))
    A("v_lshlrev_b32 v%d, 4, v%d" % (vT2, vT2))
    A("v_and_b32 v%d, 1, v%d" % (vT3, vL)); A("v_lshlrev_b32 v%d, 3, v%d" % (vT3, vT3))
    A("v_add_u32 v%d, v%d, v%d" % (vT2, vT2, vT3))
    A("v_lshlrev_b32 v%d, 2, v%d" % (vT3, vT1)); A("v_add_u32 v%d, v%d, v%d" % (vT3, vT3, vT0))
    A("v_lshlrev_b32 v%d, 7, v%d" % (vT3, vT3)); A("v_add_u32 v%d, v%d, v%d" % (vR2, vT3, vT2))
    A("v_lshlrev_b32 v%d, 3, v%d" % (vT3, vT1)); A("v_add_u32 v%d, v%d, v%d" % (vT3, vT3, vT0))
    A("v_lshlrev_b32 v%d, 7, v%d" % (vT3, vT3)); A("v_add_u32 v%d, v%d, v%d" % (vR1, vT3, vT2))
    A("v_and_b32 v%d, 31, v%d" % (vT0, vL))
    A("s_lshl_b32 s%d, s%d, 5" % (S_T0, S_R))
    A("v_add_u32 v%d, s%d, v%d" % (vT0, S_T0, vT0))
    A("v_lshrrev_b32 v%d, 1, v%d" % (vT2, vL)); A("v_and_b32 v%d, 7, v%d" % (vT2, vT2))
    A("v_xor_b32 v%d, v%d, v%d" % (vT2, vT2, vT1))
    A("v_lshlrev_b32 v%d, 4, v%d" % (vT2, vT2))
    A("v_lshl_add_u32 v%d, v%d, 7, v%d" % (vT2, vT0, vT2))
    A("v_add_u32 v%d, %d, v%d" % (vXR, XS, vT2))
    for j in range(1, 4):
        A("v_xor_b32 v%d, %d, v%d" % (vXR + j, j * 32, vXR))
    A("s_mul_i32 s%d, s%d, 24576" % (S_T0, S_R))
    A("s_add_u32 s%d, s%d, %d" % (S_T0, S_T0, HBASE))
    A("v_lshlrev_b32 v%d, 4, v%d" % (vT3, vL))
    A("v_add_u32 v%d, s%d, v%d" % (vHR, S_T0, vT3))
    A("s_lshl_b32 s%d, s%d, 11" % (S_T1, S_C))
    A("v_add_u32 v%d, s%d, v%d" % (vHW, S_T1, vHR))
    A("s_mul_i32 s%d, s%d, 18" % (S_T0, S_R))
    A("s_add_u32 s%d, s%d, s%d" % (S_T0, S_T0, S_C))
    A("s_lshl_b32 s%d, s%d, 11" % (S_T0, S_T0))
    A("v_add_u32 v%d, s%d, v%d" % (vST, S_T0, vT3))
    for q in range(2):
        A("v_mov_b32 v%d, 0" % (vS + q)); A("v_mov_b32 v%d, 0" % (vQ + q))
    A("s_mov_b32 s%d, 0x00003f80" % S_SEL0)
    A("s_mov_b32 s%d, 0x3f800000" % S_SEL1)

    def xread(kb, j):
        slot = kb % 6
        rg = XN + 4 * (4 * kb + j)
        if slot < 4:
            A("ds_read_b128 v[%d:%d], v%d offset:%d" % (rg, rg + 3, vXR + j, slot * 16384))
        else:
            A("v_add_u32 v%d, 0x10000, v%d" % (T + j, vXR + j))
            A("ds_read_b128 v[%d:%d], v%d offset:%d" % (rg, rg + 3, T + j, (slot - 4) * 16384))
        A.lg.issue(("xf", kb, j))
    def stats(kb, j):
        for e in range(4):
            rg = XN + 4 * (4 * kb + j) + e
            A("v_dot2_f32_bf16 v%d, v%d, s%d, v%d" % (vS + (e & 1), rg, S_ONES, vS + (e & 1)))
            A("v_dot2_f32_bf16 v%d, v%d, v%d, v%d" % (vQ + (e & 1), rg, rg, vQ + (e & 1)))
    stamp(A)
    for g in range(3):
        A.wait(vm=[("x", 3 * g + 2, 1)])
        A("s_barrier")
        if g == 1:
            for kb in range(6, 9): x_unit_dma(A, kb, vDX)
            for un in range(2, LOOK): dma(un)
        for kb in range(3 * g, 3 * g + 3):
            for j in range(4): xread(kb, j)
        for kb in range(3 * g, 3 * g + 3):
            for j in range(4):
                A.wait(lg=[("xf", kb, j)])
                stats(kb, j)
        if PRO: stamp(A)
    A("s_nop 1")
    A("v_add_f32 v%d, v%d, v%d" % (vS, vS, vS + 1))
    A("v_add_f32 v%d, v%d, v%d" % (vQ, vQ, vQ + 1))
    xsum32(A, vS, vS + 1)
    xsum32(A, vQ, vQ + 1)
    A("v_mul_f32 v%d, 0x%x, v%d" % (vS, INV576, vS))
    A("v_mul_f32 v%d, 0x%x, v%d" % (vQ, INV576, vQ))
    A("v_fma_f32 v%d, -v%d, v%d, v%d" % (vQ, vS, vS, vQ))
    A("v_max_f32 v%d, 0, v%d" % (vQ, vQ))
    A("v_add_f32 v%d, 0x%x, v%d" % (vQ, EPS_LN, vQ))
    A("v_sub_f32 v%d, 0, v%d" % (vS, vS))
    A("v_rsq_f32 v%d, v%d" % (vA, vQ))
    A("v_sqrt_f32 v%d, v%d" % (vC2, vQ))
    A("s_nop 0")
    A("v_mul_f32 v%d, s%d, v%d" % (vA, S_L2E, vA))
    for n in range(0, 144, 4):
        for e in range(4):
            A("v_dot2_f32_bf16 v%d, v%d, s%d, v%d" % (T + 2*e, XN + n + e, S_SEL0, vS))
            A("v_dot2_f32_bf16 v%d, v%d, s%d, v%d" % (T + 2*e + 1, XN + n + e, S_SEL1, vS))
        A("s_nop 0")
        for e in range(4):
            A("v_cvt_pk_bf16_f32 v%d, v%d, v%d" % (XN + n + e, T + 2*e, T + 2*e + 1))

    def wfrag(un, i):
        return WF + 16 * (un & 1) + 4 * i
    def wread(un, i):
        if un >= NU: return
        slot = un % RING
        f = wfrag(un, i)
        off = slot * 8192 + i * 2048
        if un < NU1:
            A("ds_read_b64_tr_b16 v[%d:%d], v%d offset:%d" % (f, f+1, vR1, off))
            A("ds_read_b64_tr_b16 v[%d:%d], v%d offset:%d" % (f+2, f+3, vR1, off + 512))
        else:
            A("ds_read_b64_tr_b16 v[%d:%d], v%d offset:%d" % (f, f+1, vR2, off))
            A("ds_read_b64_tr_b16 v[%d:%d], v%d offset:%d" % (f+2, f+3, vR2, off + 1024))
        A.lg.issue(("w", un, i, 0)); A.lg.issue(("w", un, i, 1))
    def hread(hf):
        A("ds_read_b128 v[%d:%d], v%d offset:%d" % (XN + 4*hf, XN + 4*hf + 3, vHR, hf * 1024))
        A.lg.issue(("hr", hf))
    def hwrite(sc, ks):
        A("ds_write_b128 v%d, v[%d:%d] offset:%d" % (vHW, P + 4*ks, P + 4*ks + 3, sc * 4096 + ks * 1024))
        A.lg.issue(("hw", sc, ks))

    def silu_0(va, t):
        A("v_mul_f32 v%d, v%d, v%d" % (t, va, vA)); A("v_mul_f32 v%d, v%d, v%d" % (t+1, va+1, vA))
    def silu_a(va, t):
        A("v_exp_f32_e64 v%d, -v%d" % (t, t)); A("v_exp_f32_e64 v%d, -v%d" % (t+1, t+1))
    def silu_b(va, t):
        A("v_fma_f32 v%d, v%d, v%d, v%d" % (t, t, vC2, vC2)); A("v_fma_f32 v%d, v%d, v%d, v%d" % (t+1, t+1, vC2, vC2))
        A("v_rcp_f32 v%d, v%d" % (t, t)); A("v_rcp_f32 v%d, v%d" % (t+1, t+1))
    def silu_c(va, t):
        A("v_mul_f32 v%d, v%d, v%d" % (t, va, t)); A("v_mul_f32 v%d, v%d, v%d" % (t+1, va+1, t+1))
    def silu_d(va, t, pidx):
        A("v_cvt_pk_bf16_f32 v%d, v%d, v%d" % (P + pidx, t, t+1))

    stamp(A)
    A.wait(vm=[("dma", 0)])
    A("s_barrier")
    for i in range(4): wread(0, i)

    fill = [[[] for _ in range(4)] for _ in range(NU + 2)]
    pre_barrier_lg = [[] for _ in range(NU + 2)]
    def sched_silu(sc, plan, slots):
        acc = ACC[sc & 1]
        for n, pairs in plan:
            for q, pidx in enumerate(pairs):
                va = acc + 2 * pidx
                t = T + 2 * (q % 4)
                s0, s1, s2, s3, s4 = slots
                fill[n][s0].append(lambda va=va, t=t: silu_0(va, t))
                fill[n][s1].append(lambda va=va, t=t: silu_a(va, t))
                fill[n][s2].append(lambda va=va, t=t: silu_b(va, t))
                fill[n][s3].append(lambda va=va, t=t: silu_c(va, t))
                fill[n][s4].append(lambda va=va, t=t, pidx=pidx: silu_d(va, t, pidx))
                if pidx % 4 == 3:
                    ks = pidx // 4
                    fill[n + 1][0].insert(0, lambda sc=sc, ks=ks: hwrite(sc, ks))
                    pre_barrier_lg[n + 2].append(("hw", sc, ks))
    for sc in range(NSC):
        n0 = 9 * (sc + 1)
        if sc < NSC - 1:
            sched_silu(sc, [(n0 + 1 + q, [q]) for q in range(8)], (0, 0, 1, 2, 3))
        else:
            fill[n0][0].append(lambda: (A('s_nop 7'), A('s_nop 3')))
            sched_silu(sc, [(n0, [0, 1, 2, 3]), (n0 + 1, [4, 5, 6, 7])], (0, 1, 2, 3, 3))
    last_pass = 9 * (NSC - 1)
    nh_early = 4 * (NSC - 2)
    for hf in range(nh_early):
        fill[last_pass + 1 + hf // 4][hf % 4].append(lambda hf=hf: hread(hf))
    for hf in range(nh_early, nh_early + 4):
        fill[NU1 + 2][hf % 4].append(lambda hf=hf: hread(hf))
    for hf in range(nh_early + 4, nh_early + 8):
        fill[NU1 + 4][hf % 4].append(lambda hf=hf: hread(hf))
    def epi(t, half):
        acc = ACC[t & 1] + 8 * half
        for q in range(4):
            A("v_cvt_pk_bf16_f32 v%d, v%d, v%d" % (P + 4*half + q, acc + 2*q, acc + 2*q + 1))
    def epi_store(t, half):
        A("s_mov_b32 s%d, %d" % (S_T2, t * 4096))
        A("buffer_store_dwordx4 v[%d:%d], v%d, s[%d:%d], s%d offen offset:%d" % (P + 4*half, P + 4*half + 3, vST, SRD_P, SRD_P+3, S_T2, half * 1024))
        A.vm.issue(("st", t, half))
    for t in range(8):
        n0 = NU1 + 6 * (t + 1)
        fill[n0 + 1][0].append(lambda t=t: epi(t, 0))
        fill[n0 + 1][1].append(lambda t=t: epi_store(t, 0))
        fill[n0 + 3][0].append(lambda t=t: epi(t, 1))
        fill[n0 + 3][1].append(lambda t=t: epi_store(t, 1))

    DMAPOS = 2
    for n in range(NU):
        A.comment("step %d" % n)
        if n in STAMP_STEPS: stamp(A)
        need_vm = ([("dma", n + 1)] if n + 1 < NU else [])
        A.wait(vm=need_vm or None, lg=pre_barrier_lg[n] or None)
        A("s_barrier")
        for i in range(4):
            tags = [("w", n, i, 1)]
            if n >= NU1:
                t, fb = divmod(n - NU1, 6)
                hf = fb * 4 + i
                if t == 0: tags.append(("hr", hf))
            A.wait(lg=tags)
            f = wfrag(n, i)
            if n < NU1:
                sc, kb = divmod(n, 9)
                acc = ACC[sc & 1]; bop = XN + 4 * (4 * kb + i)
                first = (kb == 0 and i == 0)
            else:
                acc = ACC[t & 1]; bop = XN + 4 * hf
                first = (fb == 0 and i == 0)
            csrc = "0" if first else "v[%d:%d]" % (acc, acc + 15)
            A("v_mfma_f32_32x32x16_bf16 v[%d:%d], v[%d:%d], v[%d:%d], %s" % (acc, acc+15, f, f+3, bop, bop+3, csrc))
            wread(n + 1, i)
            for fn in fill[n][i]: fn()
            if i == DMAPOS: dma(n + LOOK)
    A("s_nop 7"); A("s_nop 7")
    epi(8, 0); epi(8, 1)
    epi_store(8, 0); epi_store(8, 1)
    stamp(A)
    A("s_waitcnt vmcnt(0)")
    stamp(A)
    stamp_flush(A)
    dbgt_end(A, 9)
    A("s_endpgm")


KV_GROUP_BYTES = 36 * 1024
SRD_KV, SRD_D = 8, 16
S_WOP = 56
def att_role(A):
    A.vm = Ctr(63); A.lg = Ctr(15)
    def xf(u, kk): return 4 * (18 * u + kk)
    ACC = 144
    WR = 216
    vDM = 240
    vTR1, vTR3 = 243, 244
    vTR3b = 254
    vCA = 245
    vL, vT0, vT1, vT2, vT3 = 249, 250, 251, 252, 253
    vDX = 254
    XS = 55296
    USZ = 18432
    EX = 73728
    PQ = 82944
    KVF = 119808
    ZF = 133632
    CH = 41472
    stamp(A)
    A("v_and_b32 v%d, 63, v0" % vL)
    A("v_mov_b32 v%d, v0" % ACC)
    x_unit_dma_setup(A, vL, vDX, vT0, vT1, vT2, vT3, XS)
    for kb in range(6): x_unit_dma(A, kb, vDX)
    srd(A, SRD_A, S_WQKV, S_WQKV + 1, D * 3 * D * 2)
    A("s_mul_i32 s%d, s%d, %d" % (S_T0, S_ROLE, 144 * 1152))
    srd_off(A, SRD_B, S_WO, S_WO + 1, S_T0, D * D * 2, None)
    A("s_lshr_b32 s%d, s%d, 1" % (S_T0, S_R)); A("s_lshl_b32 s%d, s%d, 4" % (S_T0, S_T0))
    A("s_and_b32 s%d, s%d, 1" % (S_T1, S_R)); A("s_lshl_b32 s%d, s%d, 2" % (S_T1, S_T1))
    A("s_add_u32 s%d, s%d, s%d" % (S_T0, S_T0, S_T1))
    A("s_mul_i32 s%d, s%d, 288" % (S_T1, S_ROLE))
    for q in range(3):
        A("v_add_u32 v%d, %d, v%d" % (vT0, 48 * q, vL))
        A("v_mul_u32_u24 v%d, 3641, v%d" % (vT1, vT0))
        A("v_lshrrev_b32 v%d, 16, v%d" % (vT1, vT1))
        A("v_mul_u32_u24 v%d, 18, v%d" % (vT2, vT1))
        A("v_sub_u32 v%d, v%d, v%d" % (vT2, vT0, vT2))
        A("v_lshrrev_b32 v%d, 2, v%d" % (vT3, vT1))
        A("v_lshlrev_b32 v%d, 3, v%d" % (vT3, vT3))
        A("v_and_b32 v%d, 3, v%d" % (vT1, vT1))
        A("v_add_u32 v%d, v%d, v%d" % (vT1, vT1, vT3))
        A("v_add_u32 v%d, s%d, v%d" % (vT1, S_T0, vT1))
        A("v_mul_u32_u24 v%d, 3456, v%d" % (vT1, vT1))
        A("v_lshl_add_u32 v%d, v%d, 4, v%d" % (vT1, vT2, vT1))
        A("v_add_u32 v%d, s%d, v%d" % (vDM + q, S_T1, vT1))
    S_MB, S_O1, S_O3 = 58, 59, 55
    A("s_mul_i32 s%d, s%d, 9216" % (S_MB, S_C)); A("s_mul_i32 s%d, s%d, 2304" % (S_T0, S_R)); A("s_add_u32 s%d, s%d, s%d" % (S_MB, S_MB, S_T0))
    A("s_add_u32 s%d, s%d, 1" % (S_O1, S_C)); A("s_mul_i32 s%d, s%d, 1152" % (S_O1, S_O1))
    A("s_mul_i32 s%d, s%d, %d" % (S_O3, S_C, 32 * 3456))
    NUA = 27
    def wdma(un):
        if un >= NUA: return
        slot = un % 4
        if un < 18: A("s_add_u32 s%d, s%d, %d" % (S_T3, S_O1, un * 32 * 3456))
        else: A("s_add_u32 s%d, s%d, %d" % (S_T3, S_O3, (un - 18) * 64 * 3456))
        A("s_mov_b32 exec_hi, 0xffff")
        for q in range(3):
            A("s_add_u32 m0, s%d, %d" % (S_MB, slot * USZ + q * 768))
            A("s_nop 0")
            A("buffer_load_dwordx4 v%d, s[%d:%d], s%d offen lds" % (vDM + q, SRD_A, SRD_A + 3, S_T3))
            A.vm.issue(("wa", un, q))
        A("s_mov_b32 exec_hi, -1")
    for un in range(3): wdma(un)
    A("s_add_u32 s%d, s%d, 12" % (S_T0, S_ROLE))
    A("s_mul_i32 s%d, s%d, %d" % (S_T0, S_T0, PART_BYTES))
    A("s_mul_i32 s%d, s%d, %d" % (S_T1, S_TILE, 4 * 18 * 2048))
    A("s_add_u32 s%d, s%d, s%d" % (S_T0, S_T0, S_T1))
    srd_off(A, SRD_P, S_WS, S_WS + 1, S_T0, NPART * PART_BYTES, None)
    A("s_mul_i32 s%d, s%d, %d" % (S_T0, S_ROLE, KV_GROUP_BYTES))
    A("s_add_u32 s%d, s%d, %d" % (S_T0, S_T0, WS_KV))
    A("s_add_u32 s%d, s%d, s%d" % (SRD_KV, S_WS, S_T0)); A("s_addc_u32 s%d, s%d, 0" % (SRD_KV + 1, S_WS + 1))
    A("s_and_b32 s%d, s%d, 0xffff" % (SRD_KV + 1, SRD_KV + 1)); A("s_mov_b32 s%d, %d" % (SRD_KV + 2, KV_GROUP_BYTES)); A("s_mov_b32 s%d, 0x20000" % (SRD_KV + 3))
    srd(A, SRD_D, S_DBG, S_DBG + 1, 256)
    A("s_cmp_lg_u32 s%d, 0" % S_TILE)
    A("s_cbranch_scc1 L_att_nozero")
    for q in range(4): A("v_mov_b32 v%d, 0" % (ACC + 4 + q))
    A("v_lshlrev_b32 v%d, 4, v%d" % (ACC + 1, ACC))
    for q in range(5):
        A("s_mov_b32 s%d, %d" % (S_T3, q * 8192))
        A("buffer_store_dwordx4 v[%d:%d], v%d, s[%d:%d], s%d offen sc0 sc1" % (ACC + 4, ACC + 7, ACC + 1, SRD_KV, SRD_KV + 3, S_T3))
    A("s_waitcnt vmcnt(0)")
    A("s_barrier")
    A("v_mov_b32 v%d, 1" % (ACC + 2))
    A("s_lshl_b32 s%d, s%d, 2" % (S_T0, S_ROLE)); A("s_add_u32 s%d, s%d, 64" % (S_T0, S_T0))
    A("v_mov_b32 v%d, 0x7fffff00" % (ACC + 3)); A("v_mov_b32 v%d, s%d" % (ACC + 4, S_T0))
    A("v_cmp_eq_u32 vcc, 0, v%d" % ACC)
    A("s_nop 1")
    A("v_cndmask_b32 v%d, v%d, v%d, vcc" % (ACC + 3, ACC + 3, ACC + 4))
    A("buffer_atomic_add v%d, v%d, s[%d:%d], 0 offen sc1" % (ACC + 2, ACC + 3, SRD_D, SRD_D + 3))
    A("s_waitcnt vmcnt(0)")
    A.label("L_att_nozero")
    A("v_lshrrev_b32 v%d, 4, v%d" % (vT0, vL))
    A("v_lshrrev_b32 v%d, 1, v%d" % (vT1, vT0)); A("v_lshlrev_b32 v%d, 4, v%d" % (vT1, vT1))
    A("v_and_b32 v%d, 1, v%d" % (vT2, vT0)); A("v_lshlrev_b32 v%d, 2, v%d" % (vT2, vT2))
    A("v_add_u32 v%d, v%d, v%d" % (vT1, vT1, vT2))
    A("v_lshrrev_b32 v%d, 2, v%d" % (vT2, vL)); A("v_and_b32 v%d, 3, v%d" % (vT2, vT2))
    A("v_add_u32 v%d, v%d, v%d" % (vT1, vT1, vT2))
    A("v_mul_u32_u24 v%d, 288, v%d" % (vT1, vT1))
    A("v_and_b32 v%d, 3, v%d" % (vT2, vL))
    A("v_lshl_add_u32 v%d, v%d, 3, v%d" % (vT1, vT2, vT1))
    A("s_mul_i32 s%d, s%d, 9216" % (S_T0, S_C))
    A("v_add_u32 v%d, s%d, v%d" % (vTR1, S_T0, vT1))
    A("s_lshl_b32 s%d, s%d, 7" % (S_T0, S_C))
    A("v_add_u32 v%d, s%d, v%d" % (vTR3, S_T0, vT1))
    vXR = ACC + 8
    A("v_and_b32 v%d, 15, v%d" % (vT1, vL))
    A("v_lshrrev_b32 v%d, 1, v%d" % (vT2, vT1))
    A("v_xor_b32 v%d, v%d, v%d" % (vT2, vT2, vT0))
    A("v_lshlrev_b32 v%d, 4, v%d" % (vT2, vT2))
    A("s_lshl_b32 s%d, s%d, 5" % (S_T0, S_R))
    A("v_add_u32 v%d, s%d, v%d" % (vT1, S_T0, vT1))
    A("v_lshl_add_u32 v%d, v%d, 7, v%d" % (vT2, vT1, vT2))
    A("v_add_u32 v%d, %d, v%d" % (vXR, XS, vT2))
    A("v_xor_b32 v%d, 64, v%d" % (vXR + 1, vXR))
    A("v_add_u32 v%d, 0x10000, v%d" % (vXR + 2, vXR)); A("v_add_u32 v%d, 0x10000, v%d" % (vXR + 3, vXR + 1))
    vS = ACC + 16
    for q in range(8): A("v_mov_b32 v%d, 0" % (vS + q))
    def xread(kb, e, u):
        slot = kb % 6; kk = 2 * kb + e
        if slot < 4: A("ds_read_b128 v[%d:%d], v%d offset:%d" % (xf(u, kk), xf(u, kk) + 3, vXR + e, slot * 16384 + u * 2048))
        else: A("ds_read_b128 v[%d:%d], v%d offset:%d" % (xf(u, kk), xf(u, kk) + 3, vXR + 2 + e, (slot - 4) * 16384 + u * 2048))
        A.lg.issue(("xf", u, kk))
    def stats(u, kk):
        for e in range(4):
            rg = xf(u, kk) + e
            A("v_dot2_f32_bf16 v%d, v%d, s%d, v%d" % (vS + 4*u + (e & 1), rg, S_ONES, vS + 4*u + (e & 1)))
            A("v_dot2_f32_bf16 v%d, v%d, v%d, v%d" % (vS + 4*u + 2 + (e & 1), rg, rg, vS + 4*u + 2 + (e & 1)))
    stamp(A)
    for g in range(3):
        A.wait(vm=[("x", 3 * g + 2, 1)])
        A("s_barrier")
        if g == 1:
            for kb in range(6, 9): x_unit_dma(A, kb, vDX)
        lst = [(kb, e, u) for kb in range(3 * g, 3 * g + 3) for e in range(2) for u in range(2)]
        for (kb, e, u) in lst: xread(kb, e, u)
        for (kb, e, u) in lst:
            A.wait(lg=[("xf", u, 2 * kb + e)])
            stats(u, 2 * kb + e)
    A("s_nop 2")
    for u in range(2):
        b = vS + 4 * u
        A("v_add_f32 v%d, v%d, v%d" % (b, b, b + 1)); A("v_add_f32 v%d, v%d, v%d" % (b + 2, b + 2, b + 3))
        xsum16(A, b, b + 1); xsum32(A, b, b + 1)
        xsum16(A, b + 2, b + 3); xsum32(A, b + 2, b + 3)
        ln_coef(A, b, b + 2, vCA + 2*u, vCA + 2*u + 1, None, False)
    for u in range(2):
        ln_apply(A, list(range(xf(u, 0), xf(u, 0) + 72)), vCA + 2*u, vCA + 2*u + 1, [ACC + 24 + i for i in range(8)])
    stamp(A)

    seq = []
    for n in range(18):
        for t in range(9): seq.append((n, vTR1, (n % 4) * USZ + 32 * t, 1, t, n))
    for n in range(18, 27):
        for ks in range(2):
            for tau in range(5): seq.append((n, vTR3b if ks else vTR3, (n % 4) * USZ + 32 * tau, 3, tau, 2 * (n - 18) + ks))
    def fread(phi):
        if phi >= len(seq): return
        un, base, off = seq[phi][:3]
        f = WR + 4 * (phi % 6)
        A("ds_read_b64_tr_b16 v[%d:%d], v%d offset:%d" % (f, f + 1, base, off))
        A("ds_read_b64_tr_b16 v[%d:%d], v%d offset:%d" % (f + 2, f + 3, base, off + 2304))
        A.lg.issue(("f", phi, 0)); A.lg.issue(("f", phi, 1))
    A("v_add_u32 v%d, 9216, v%d" % (vTR3b, vTR3))
    A.wait(vm=[("wa", 0, 2)])
    A("s_barrier")
    for phi in range(6): fread(phi)
    def run_steps(n_lo, n_hi, extra=None):
        for n in range(n_lo, n_hi):
            A.comment("att step %d" % n)
            need = [("wa", n + 1, 2)] if n + 1 < NUA else []
            if extra and n in extra.get("vm", {}): need += extra["vm"][n]
            A.wait(vm=need or None)
            A("s_barrier")
            if extra and n in extra.get("post", {}): extra["post"][n]()
            phis = [p for p in range(len(seq)) if seq[p][0] == n]
            for idx, phi in enumerate(phis):
                un, base, off, kind, t, kk = seq[phi]
                f = WR + 4 * (phi % 6)
                A.wait(lg=[("f", phi, 1)])
                for u in range(2):
                    if kind == 1:
                        acc = ACC + 8 * t + 4 * u
                        cs = "0" if kk == 0 else "v[%d:%d]" % (acc, acc + 3)
                        A("v_mfma_f32_16x16x32_bf16 v[%d:%d], v[%d:%d], v[%d:%d], %s" % (acc, acc + 3, xf(u, kk), xf(u, kk) + 3, f, f + 3, cs))
                    else:
                        acc = ACC + 8 * t + 4 * u
                        cs = "0" if kk == 0 else "v[%d:%d]" % (acc, acc + 3)
                        A("v_mfma_f32_16x16x32_bf16 v[%d:%d], v[%d:%d], v[%d:%d], %s" % (acc, acc + 3, f, f + 3, xf(u, kk), xf(u, kk) + 3, cs))
                fread(phi + 6)
                if idx == 3: wdma(n + 3)
    run_steps(0, 18)
    stamp(A)
    C1E6 = 0x358637bd
    def phi_vals(regs, temps):
        nt = len(temps)
        for i0 in range(0, len(regs), nt):
            grp = regs[i0:i0 + nt]
            for r_, t_ in zip(grp, temps): A("v_mul_f32 v%d, s%d, v%d" % (t_, S_L2E, r_))
            for r_, t_ in zip(grp, temps): A("v_min_f32 v%d, 0, v%d" % (t_, t_))
            for r_, t_ in zip(grp, temps): A("v_exp_f32 v%d, v%d" % (t_, t_))
            for r_, t_ in zip(grp, temps): A("v_max_f32 v%d, 0, v%d" % (r_, r_))
            for r_, t_ in zip(grp, temps): A("v_add_f32 v%d, 0x%x, v%d" % (r_, C1E6, r_))
            for r_, t_ in zip(grp, temps): A("v_add_f32 v%d, v%d, v%d" % (r_, r_, t_))
    TP = [vT0, vT1, vT2, vT3, vCA, vCA + 1, vCA + 2, vCA + 3]
    A("s_nop 7"); A("s_nop 1")
    A("s_cmp_lg_u32 s%d, 0" % S_C)
    A("s_cbranch_scc1 L_att_nophi")
    phi_vals(list(range(ACC, ACC + 72)), TP)
    A.label("L_att_nophi")
    vEW = vT0
    A("s_mul_i32 s%d, s%d, 18432" % (S_T0, S_R)); A("s_mul_i32 s%d, s%d, 9216" % (S_T1, S_C))
    A("s_add_u32 s%d, s%d, s%d" % (S_T0, S_T0, S_T1)); A("s_add_u32 s%d, s%d, %d" % (S_T0, S_T0, EX))
    A("v_lshl_add_u32 v%d, v%d, 4, s%d" % (vEW, vL, S_T0))
    for t in range(9):
        b = ACC + 8 * t
        A("v_cvt_pk_bf16_f32 v%d, v%d, v%d" % (b, b, b + 1)); A("v_cvt_pk_bf16_f32 v%d, v%d, v%d" % (b + 1, b + 2, b + 3))
        A("v_cvt_pk_bf16_f32 v%d, v%d, v%d" % (b + 2, b + 4, b + 5)); A("v_cvt_pk_bf16_f32 v%d, v%d, v%d" % (b + 3, b + 6, b + 7))
        A("ds_write_b128 v%d, v[%d:%d] offset:%d" % (vEW, b, b + 3, t * 1024))
        A.lg.issue(("ew", t))
    def poll(dw_off_sreg_expr, target, vreg, vaddr):
        lab = A.newlabel("L_poll"); ok = A.newlabel("L_pollok")
        dw_off_sreg_expr()
        A("v_mov_b32 v%d, s%d" % (vaddr, S_T0))
        A("s_mov_b32 s%d, 0" % S_T1)
        A.label(lab)
        A("buffer_load_dword v%d, v%d, s[%d:%d], 0 offen sc1" % (vreg, vaddr, SRD_D, SRD_D + 3))
        A("s_waitcnt vmcnt(0)")
        A("v_readfirstlane_b32 s%d, v%d" % (S_T0, vreg))
        A("s_add_u32 s%d, s%d, 1" % (S_T1, S_T1))
        A("s_nop 2")
        A("s_cmp_ge_u32 s%d, %d" % (S_T0, target))
        A("s_cbranch_scc1 %s" % ok)
        A("s_sleep 4")
        A("s_cmp_lt_u32 s%d, 50000" % S_T1)
        A("s_cbranch_scc1 %s" % lab)
        A.label(ok)
        A.vm.all()
    poll(lambda: (A("s_lshl_b32 s%d, s%d, 2" % (S_T0, S_ROLE)), A("s_add_u32 s%d, s%d, 64" % (S_T0, S_T0))), 1, vT1, vT2)
    A("s_waitcnt lgkmcnt(0)"); A.lg.all()
    A("s_barrier")
    FA, FB, KA, HD, HE = ACC, ACC + 16, ACC + 32, ACC + 36, ACC + 40
    S_A, S_B = 22, 23
    vER = vT0
    A("v_lshlrev_b32 v%d, 4, v%d" % (vER, vL)); A("v_add_u32 v%d, %d, v%d" % (vER, EX, vER))
    vAT = vT1
    A("v_lshlrev_b32 v%d, 2, v%d" % (vAT, vL))
    vG4x4 = vT2
    A("v_lshrrev_b32 v%d, 4, v%d" % (vG4x4, vL)); A("v_lshlrev_b32 v%d, 2, v%d" % (vG4x4, vG4x4))
    vE16 = vT3
    A("v_and_b32 v%d, 15, v%d" % (vE16, vL))
    ONESF = ACC + 44
    for q in range(4): A("v_mov_b32 v%d, s%d" % (ONESF + q, S_ONES))
    natom = [0]
    def kv_round(tag):
        A("s_lshl_b32 s%d, s%d, 10" % (S_T0, S_A))
        A("v_add_u32 v%d, s%d, v%d" % (ACC + 48, S_T0, vER))
        for r_ in range(4):
            A("ds_read_b128 v[%d:%d], v%d offset:%d" % (FA + 4*r_, FA + 4*r_ + 3, ACC + 48, r_ * 18432))
        A("s_lshl_b32 s%d, s%d, 4" % (S_T0, S_A))
        for rr in range(4):
            A("v_add_u32 v%d, s%d, v%d" % (HD + rr, S_T0, vG4x4))
            if rr: A("v_add_u32 v%d, %d, v%d" % (HD + rr, rr, HD + rr))
            A("v_mul_u32_u24 v%d, 3641, v%d" % (HD + rr, HD + rr))
            A("v_lshrrev_b32 v%d, 16, v%d" % (HD + rr, HD + rr))
        for db in (-1, 0, 1, "z"):
            if db != "z":
                A("s_add_i32 s%d, s%d, %d" % (S_B, S_A, db))
                A("s_max_i32 s%d, s%d, 0" % (S_T1, S_B)); A("s_min_i32 s%d, s%d, 8" % (S_T1, S_T1))
                A("s_cmp_eq_u32 s%d, s%d" % (S_T1, S_B))
                A("s_mul_i32 s%d, s%d, 3" % (S_T2, S_A)); A("s_add_u32 s%d, s%d, %d" % (S_T2, S_T2, db + 1));
                A("s_cmp_eq_u32 s%d, s%d" % (S_T1, S_B))
                A("s_cselect_b32 s%d, s%d, 0x1fffff" % (S_T2, S_T2))
                A("s_lshl_b32 s%d, s%d, 10" % (S_T2, S_T2))
                A("s_add_u32 s%d, s%d, 9" % (S_T0, S_T1)); A("s_lshl_b32 s%d, s%d, 10" % (S_T0, S_T0))
                A("v_add_u32 v%d, s%d, v%d" % (ACC + 48, S_T0, vER))
                for r_ in range(4):
                    A("ds_read_b128 v[%d:%d], v%d offset:%d" % (FB + 4*r_, FB + 4*r_ + 3, ACC + 48, r_ * 18432))
                A("s_lshl_b32 s%d, s%d, 4" % (S_T0, S_T1))
                A("v_add_u32 v%d, s%d, v%d" % (HE, S_T0, vE16))
                A("v_mul_u32_u24 v%d, 3641, v%d" % (HE, HE))
                A("v_lshrrev_b32 v%d, 16, v%d" % (HE, HE))
                A("s_waitcnt lgkmcnt(0)")
                bsrc = lambda r_: FB + 4 * r_
            else:
                A("s_add_u32 s%d, s%d, 27" % (S_T2, S_A)); A("s_lshl_b32 s%d, s%d, 10" % (S_T2, S_T2))
                bsrc = lambda r_: ONESF
            for r_ in range(4):
                cs = "0" if r_ == 0 else "v[%d:%d]" % (KA, KA + 3)
                A("v_mfma_f32_16x16x32_bf16 v[%d:%d], v[%d:%d], v[%d:%d], %s" % (KA, KA + 3, FA + 4*r_, FA + 4*r_ + 3, bsrc(r_), bsrc(r_) + 3, cs))
            A("s_nop 7"); A("s_nop 1")
            if db != "z":
                for rr in range(4):
                    A("v_cmp_eq_u32 vcc, v%d, v%d" % (HD + rr, HE))
                    A("s_nop 1")
                    A("v_cndmask_b32 v%d, 0, v%d, vcc" % (KA + rr, KA + rr))
            for rr in range(4):
                A("buffer_atomic_add_f32 v%d, v%d, s[%d:%d], s%d offen offset:%d" % (KA + rr, vAT, SRD_KV, SRD_KV + 3, S_T2, rr * 256))
                A.vm.issue(("at", tag, db, rr))
            A("s_nop 1")
    A("s_mov_b32 s%d, s%d" % (S_A, S_WAVE))
    kv_round(0)
    A("s_cmp_lg_u32 s%d, 0" % S_WAVE)
    A("s_cbranch_scc1 L_att_kv2")
    A("s_mov_b32 s%d, 8" % S_A)
    sv = (list(A.vm.ops), A.vm.done)
    kv_round(1)
    A("s_waitcnt vmcnt(0)")
    A.vm.ops, A.vm.done = sv
    A.label("L_att_kv2")
    A.lg.all()
    stamp(A)
    def signal_kv():
        A("s_lshl_b32 s%d, s%d, 2" % (S_T0, S_ROLE)); A("s_add_u32 s%d, s%d, 80" % (S_T0, S_T0))
        A("v_mov_b32 v%d, 0x7fffff00" % vT0); A("v_mov_b32 v%d, s%d" % (vT1, S_T0))
        A("s_lshl_b32 s%d, s%d, 6" % (S_T1, S_WAVE))
        A("v_add_u32 v%d, s%d, v%d" % (vT2, S_T1, vL))
        A("v_cmp_eq_u32 vcc, 0, v%d" % vT2)
        A("v_mov_b32 v%d, 1" % vT3)
        A("s_nop 0")
        A("v_cndmask_b32 v%d, v%d, v%d, vcc" % (vT0, vT0, vT1))
        A("buffer_atomic_add v%d, v%d, s[%d:%d], 0 offen sc1" % (vT3, vT0, SRD_D, SRD_D + 3))
        A.vm.issue(("sig",))
    run_steps(18, 27, extra=dict(vm={19: [("at", 0, "z", 3)]}, post={19: signal_kv}))
    stamp(A)
    vWD = vDM
    A("v_mul_u32_u24 v%d, 3641, v%d" % (vT1, vL)); A("v_lshrrev_b32 v%d, 16, v%d" % (vT1, vT1))
    A("v_mul_u32_u24 v%d, 18, v%d" % (vT2, vT1)); A("v_sub_u32 v%d, v%d, v%d" % (vT2, vL, vT2))
    A("s_mul_i32 s%d, s%d, 18" % (S_T0, S_WAVE))
    A("v_add_u32 v%d, s%d, v%d" % (vT1, S_T0, vT1))
    A("v_mul_u32_u24 v%d, 1152, v%d" % (vT1, vT1))
    A("v_lshl_add_u32 v%d, v%d, 4, v%d" % (vWD, vT2, vT1))
    A("s_mul_i32 s%d, s%d, %d" % (S_MB, S_WAVE, 18 * 288))
    def cdma(ch):
        if ch >= 4: return
        A("s_mov_b32 exec_hi, 0x3fffff")
        for q in range(6):
            A("s_add_u32 m0, s%d, %d" % (S_MB, (ch & 1) * CH + q * 864))
            A("s_mov_b32 s%d, %d" % (S_T3, q * 3 * 1152 + ch * 288))
            A("buffer_load_dwordx4 v%d, s[%d:%d], s%d offen lds" % (vWD, SRD_B, SRD_B + 3, S_T3))
            A.vm.issue(("c", ch, q))
        A("s_mov_b32 exec_hi, -1")
    A("s_nop 7")
    TP3 = [ACC + 40 + i for i in range(8)]
    phi_vals(list(range(ACC, ACC + 40)), TP3)
    A("s_waitcnt lgkmcnt(0)"); A.lg.all()
    A("s_barrier")
    cdma(0); cdma(1)
    vPQ = vT0
    A("s_mul_i32 s%d, s%d, %d" % (S_T0, S_R, 2 * 9 * 512)); A("s_lshl_b32 s%d, s%d, 11" % (S_T1, S_C))
    A("s_add_u32 s%d, s%d, s%d" % (S_T0, S_T0, S_T1)); A("s_add_u32 s%d, s%d, %d" % (S_T0, S_T0, PQ))
    A("v_lshl_add_u32 v%d, v%d, 3, s%d" % (vPQ, vL, S_T0))
    for tau in range(5):
        for u in range(2):
            b = ACC + 8 * tau + 4 * u
            A("v_cvt_pk_bf16_f32 v%d, v%d, v%d" % (b, b, b + 1)); A("v_cvt_pk_bf16_f32 v%d, v%d, v%d" % (b + 1, b + 2, b + 3))
            A("ds_write_b64 v%d, v[%d:%d] offset:%d" % (vPQ, b, b + 1, u * 9 * 512 + tau * 512))
    sv_ops = None
    poll(lambda: (A("s_lshl_b32 s%d, s%d, 2" % (S_T0, S_ROLE)), A("s_add_u32 s%d, s%d, 80" % (S_T0, S_T0))), 16, vT1, vT2)
    stamp(A)
    KL, ZL = 0, 16
    HD, HE = 24, 28
    vAT, vG4x4, vE16, vFW = vT1, vT2, vT3, 30
    A("v_lshlrev_b32 v%d, 2, v%d" % (vAT, vL))
    A("v_lshrrev_b32 v%d, 4, v%d" % (vG4x4, vL)); A("v_lshlrev_b32 v%d, 2, v%d" % (vG4x4, vG4x4))
    A("v_and_b32 v%d, 15, v%d" % (vE16, vL))
    def kvf_round():
        A("s_mul_i32 s%d, s%d, 3072" % (S_T2, S_A))
        for j in range(3):
            for rr in range(4):
                A("buffer_load_dword v%d, v%d, s[%d:%d], s%d offen offset:%d sc1" % (KL + 4*j + rr, vAT, SRD_KV, SRD_KV + 3, S_T2, j * 1024 + rr * 256))
        A("s_add_u32 s%d, s%d, 27" % (S_T2, S_A)); A("s_lshl_b32 s%d, s%d, 10" % (S_T2, S_T2))
        for rr in range(4):
            A("buffer_load_dword v%d, v%d, s[%d:%d], s%d offen offset:%d sc1" % (ZL + rr, vAT, SRD_KV, SRD_KV + 3, S_T2, rr * 256))
        A("s_lshl_b32 s%d, s%d, 4" % (S_T0, S_A))
        for rr in range(4):
            A("v_add_u32 v%d, s%d, v%d" % (HD + rr, S_T0, vG4x4))
            if rr: A("v_add_u32 v%d, %d, v%d" % (HD + rr, rr, HD + rr))
            A("v_mul_u32_u24 v%d, 3641, v%d" % (HD + rr, HD + rr))
            A("v_lshrrev_b32 v%d, 16, v%d" % (HD + rr, HD + rr))
        A("s_mul_i32 s%d, s%d, %d" % (S_T0, S_A, 3 * 512)); A("s_add_u32 s%d, s%d, %d" % (S_T0, S_T0, KVF))
        A("v_lshl_add_u32 v%d, v%d, 3, s%d" % (vFW, vL, S_T0))
        A("s_waitcnt vmcnt(0)")
        for j in range(3):
            A("s_add_u32 s%d, s%d, %d" % (S_T0, S_A, j + 15)); A("s_lshl_b32 s%d, s%d, 4" % (S_T0, S_T0)); A("s_sub_u32 s%d, s%d, 256" % (S_T0, S_T0))
            A("v_add_u32 v%d, s%d, v%d" % (HE, S_T0, vE16))
            A("v_and_b32 v%d, 0xff, v%d" % (HE, HE))
            A("v_mul_u32_u24 v%d, 3641, v%d" % (HE, HE))
            A("v_lshrrev_b32 v%d, 16, v%d" % (HE, HE))
            for rr in range(4):
                A("v_cmp_eq_u32 vcc, v%d, v%d" % (HD + rr, HE))
                A("s_nop 1")
                A("v_cndmask_b32 v%d, 0, v%d, vcc" % (32 + rr, ZL + rr))
                A("v_cndmask_b32 v%d, 0, v%d, vcc" % (KL + 4*j + rr, KL + 4*j + rr))
            A("v_cvt_pk_bf16_f32 v36, v%d, v%d" % (KL + 4*j, KL + 4*j + 1)); A("v_cvt_pk_bf16_f32 v37, v%d, v%d" % (KL + 4*j + 2, KL + 4*j + 3))
            A("v_cvt_pk_bf16_f32 v38, v32, v33"); A("v_cvt_pk_bf16_f32 v39, v34, v35")
            A("ds_write_b64 v%d, v[36:37] offset:%d" % (vFW, j * 512))
            A("ds_write_b64 v%d, v[38:39] offset:%d" % (vFW, (ZF - KVF) + j * 512))
            A("s_nop 1")
    A("s_mov_b32 s%d, s%d" % (S_A, S_WAVE))
    kvf_round()
    A("s_cmp_lg_u32 s%d, 0" % S_WAVE)
    A("s_cbranch_scc1 L_att_kvf2")
    A("s_mov_b32 s%d, 8" % S_A)
    kvf_round()
    A.label("L_att_kvf2")
    A("s_waitcnt vmcnt(0) lgkmcnt(0)"); A.vm.all(); A.lg.all()
    A("s_barrier")
    PF = 40
    vPR = vT0
    A("s_lshl_b32 s%d, s%d, 1" % (S_T0, S_R)); A("s_add_u32 s%d, s%d, s%d" % (S_T0, S_T0, S_C))
    A("s_mul_i32 s%d, s%d, %d" % (S_T0, S_T0, 9 * 512)); A("s_add_u32 s%d, s%d, %d" % (S_T0, S_T0, PQ))
    A("v_lshl_add_u32 v%d, v%d, 3, s%d" % (vPR, vL, S_T0))
    for t in range(9):
        A("ds_read_b64 v[%d:%d], v%d offset:%d" % (PF + 2*t, PF + 2*t + 1, vPR, t * 512))
    vKR = vT1
    A("v_lshlrev_b32 v%d, 3, v%d" % (vKR, vL)); A("v_add_u32 v%d, %d, v%d" % (vKR, KVF, vKR))
    KF, ZFr, NUM, DEN, OT = 60, 66, 72, 108, 144
    for b in range(9):
        al = [a for a in (b - 1, b, b + 1) if 0 <= a <= 8]
        for i_, a in enumerate(al):
            j = b - a + 1
            A("ds_read_b64 v[%d:%d], v%d offset:%d" % (KF + 2*i_, KF + 2*i_ + 1, vKR, (a * 3 + j) * 512))
            A("ds_read_b64 v[%d:%d], v%d offset:%d" % (ZFr + 2*i_, ZFr + 2*i_ + 1, vKR, (ZF - KVF) + (a * 3 + j) * 512))
        A("s_waitcnt lgkmcnt(0)")
        for i_, a in enumerate(al):
            cs = "0" if i_ == 0 else "v[%d:%d]" % (NUM + 4*b, NUM + 4*b + 3)
            A("v_mfma_f32_16x16x16_bf16 v[%d:%d], v[%d:%d], v[%d:%d], %s" % (NUM + 4*b, NUM + 4*b + 3, KF + 2*i_, KF + 2*i_ + 1, PF + 2*a, PF + 2*a + 1, cs))
        for i_, a in enumerate(al):
            cs = "0" if i_ == 0 else "v[%d:%d]" % (DEN + 4*b, DEN + 4*b + 3)
            A("v_mfma_f32_16x16x16_bf16 v[%d:%d], v[%d:%d], v[%d:%d], %s" % (DEN + 4*b, DEN + 4*b + 3, ZFr + 2*i_, ZFr + 2*i_ + 1, PF + 2*a, PF + 2*a + 1, cs))
        A("s_nop 1")
    A("s_nop 7"); A("s_nop 1")
    for i_ in range(36): A("v_add_f32 v%d, 0x%x, v%d" % (DEN + i_, C1E6, DEN + i_))
    for i_ in range(36): A("v_rcp_f32 v%d, v%d" % (DEN + i_, DEN + i_))
    A("s_nop 0")
    for i_ in range(36): A("v_mul_f32 v%d, v%d, v%d" % (NUM + i_, NUM + i_, DEN + i_))
    for b in range(9):
        A("v_cvt_pk_bf16_f32 v%d, v%d, v%d" % (OT + 2*b, NUM + 4*b, NUM + 4*b + 1)); A("v_cvt_pk_bf16_f32 v%d, v%d, v%d" % (OT + 2*b + 1, NUM + 4*b + 2, NUM + 4*b + 3))
        A("ds_write_b64 v%d, v[%d:%d] offset:%d" % (vPR, OT + 2*b, OT + 2*b + 1, b * 512))
    A("s_waitcnt vmcnt(0) lgkmcnt(0)")
    A("s_barrier")
    OB = 0
    A("s_mul_i32 s%d, s%d, %d" % (S_T0, S_R, 2 * 9 * 512)); A("s_add_u32 s%d, s%d, %d" % (S_T0, S_T0, PQ))
    A("v_lshl_add_u32 v%d, v%d, 3, s%d" % (vPR, vL, S_T0))
    for u in range(2):
        for b in range(9):
            A("ds_read_b64 v[%d:%d], v%d offset:%d" % (OB + 20*u + 2*b, OB + 20*u + 2*b + 1, vPR, u * 9 * 512 + b * 512))
    stamp(A)
    vCR = [40, 41]
    A("v_lshrrev_b32 v%d, 4, v%d" % (vT1, vL)); A("v_lshlrev_b32 v%d, 2, v%d" % (vT1, vT1))
    A("v_lshrrev_b32 v%d, 2, v%d" % (vT2, vL)); A("v_and_b32 v%d, 3, v%d" % (vT2, vT2))
    A("v_add_u32 v%d, v%d, v%d" % (vT1, vT1, vT2))
    A("v_mul_u32_u24 v%d, 288, v%d" % (vT1, vT1))
    A("v_and_b32 v%d, 3, v%d" % (vT2, vL))
    A("v_lshl_add_u32 v%d, v%d, 3, v%d" % (vT1, vT2, vT1))
    A("s_lshl_b32 s%d, s%d, 7" % (S_T0, S_C))
    A("v_add_u32 v%d, s%d, v%d" % (vCR[0], S_T0, vT1))
    A("v_add_u32 v%d, %d, v%d" % (vCR[1], CH, vCR[0]))
    vSO = 42
    A("v_and_b32 v%d, 15, v%d" % (vT1, vL))
    A("v_lshrrev_b32 v%d, 5, v%d" % (vT2, vL)); A("v_lshl_add_u32 v%d, v%d, 4, v%d" % (vT1, vT2, vT1))
    A("v_lshrrev_b32 v%d, 4, v%d" % (vT2, vL)); A("v_and_b32 v%d, 1, v%d" % (vT2, vT2)); A("v_lshl_add_u32 v%d, v%d, 5, v%d" % (vT1, vT2, vT1))
    A("s_mul_i32 s%d, s%d, %d" % (S_T0, S_R, 18 * 2048))
    A("v_lshl_add_u32 v%d, v%d, 4, s%d" % (vSO, vT1, S_T0))
    A("s_lshl_b32 s%d, s%d, 2" % (S_B, S_C))
    WF5 = 48
    AC5 = 96
    PK5 = 120
    A("s_waitcnt lgkmcnt(0)"); A.lg.all(); A.vm.all()
    def tread(ch, tau):
        st = (ch * 5 + tau) & 1
        f = WF5 + 18 * st
        base = vCR[ch & 1]
        for pb in range(4):
            A("ds_read_b64_tr_b16 v[%d:%d], v%d offset:%d" % (f + 4*pb, f + 4*pb + 1, base, (32 * pb) * 288 + 32 * tau))
            A("ds_read_b64_tr_b16 v[%d:%d], v%d offset:%d" % (f + 4*pb + 2, f + 4*pb + 3, base, (32 * pb + 16) * 288 + 32 * tau))
        A("ds_read_b64_tr_b16 v[%d:%d], v%d offset:%d" % (f + 16, f + 17, base, 128 * 288 + 32 * tau))
        for q in range(9): A.lg.issue(("t", ch, tau, q))
    def tstore(ch, tau):
        st = (ch * 5 + tau) & 1
        ac = AC5 + 8 * st; pk = PK5 + 4 * st
        A("v_cvt_pk_bf16_f32 v%d, v%d, v%d" % (pk, ac, ac + 1)); A("v_cvt_pk_bf16_f32 v%d, v%d, v%d" % (pk + 1, ac + 2, ac + 3))
        A("v_cvt_pk_bf16_f32 v%d, v%d, v%d" % (pk + 2, ac + 4, ac + 5)); A("v_cvt_pk_bf16_f32 v%d, v%d, v%d" % (pk + 3, ac + 6, ac + 7))
        A("s_add_u32 s%d, s%d, %d" % (S_T2, S_B, 9 * ch + tau)); A("s_lshl_b32 s%d, s%d, 10" % (S_T2, S_T2))
        A("v_permlane32_swap_b32 v%d, v%d" % (pk, pk + 2)); A("v_permlane32_swap_b32 v%d, v%d" % (pk + 1, pk + 3))
        A("s_nop 0")
        A("buffer_store_dwordx4 v[%d:%d], v%d, s[%d:%d], s%d offen" % (pk, pk + 3, vSO, SRD_P, SRD_P + 3, S_T2))
        A.vm.issue(("st", ch, tau))
    items = [(ch, tau) for ch in range(4) for tau in range(5)]
    tread(0, 0)
    for idx, (ch, tau) in enumerate(items):
        st = idx & 1
        f = WF5 + 18 * st; ac = AC5 + 8 * st
        nxt = items[idx + 1] if idx + 1 < len(items) else None
        if nxt and nxt[0] != ch:
            A.wait(vm=[("c", nxt[0], 5)] if nxt[0] >= 2 else None, lg=[("t", ch, tau, 8)])
            A("s_barrier")
        if nxt: tread(*nxt)
        A.wait(lg=[("t", ch, tau, 8)])
        for u in range(2):
            for pb in range(4):
                cs = "0" if pb == 0 else "v[%d:%d]" % (ac + 4*u, ac + 4*u + 3)
                A("v_mfma_f32_16x16x32_bf16 v[%d:%d], v[%d:%d], v[%d:%d], %s" % (ac + 4*u, ac + 4*u + 3, f + 4*pb, f + 4*pb + 3, OB + 20*u + 4*pb, OB + 20*u + 4*pb + 3, cs))
        A("s_nop 3")
        for u in range(2):
            A("v_mfma_f32_16x16x16_bf16 v[%d:%d], v[%d:%d], v[%d:%d], v[%d:%d]" % (ac + 4*u, ac + 4*u + 3, f + 16, f + 17, OB + 20*u + 16, OB + 20*u + 17, ac + 4*u, ac + 4*u + 3))
        if idx >= 1: tstore(*items[idx - 1])
        if tau == 0 and ch >= 1 and ch + 1 < 4:
            cdma(ch + 1)
    A("s_nop 7"); A("s_nop 1")
    tstore(*items[-1])
    stamp(A)
    stamp_flush(A)
    dbgt_end(A, 10)
    A("s_endpgm")

def k1_kernel(nmlp=12, with_att=False):
    A = K()
    A("s_cmp_ge_u32 s2, 256")
    A("s_cbranch_scc1 L_k1_end")
    A("s_load_dwordx16 s[4:19], s[0:1], 0")
    A("s_load_dwordx2 s[20:21], s[0:1], 64")
    if STAMPS or DBGT: A("s_memrealtime s[92:93]")
    A("v_lshrrev_b32 v1, 6, v0")
    A("s_nop 0")
    A("v_readfirstlane_b32 s%d, v1" % S_WAVE)
    A("s_mov_b32 s%d, 0x3f803f80" % S_ONES)
    A("s_mov_b32 s%d, 0x%x" % (S_L2E, LOG2E))
    A("s_and_b32 s%d, s%d, 3" % (S_R, S_WAVE))
    A("s_lshr_b32 s%d, s%d, 2" % (S_C, S_WAVE))
    A("s_and_b32 s%d, s2, 7" % S_T0)
    A("s_lshr_b32 s%d, s2, 3" % S_T1)
    A("s_lshr_b32 s%d, s%d, 1" % (S_T2, S_T0))
    A("s_and_b32 s%d, s%d, 1" % (S_T0, S_T0))
    A("s_lshl_b32 s%d, s%d, 3" % (S_T0, S_T0))
    A("s_and_b32 s%d, s%d, 7" % (S_TILE, S_T1))
    A("s_add_u32 s%d, s%d, s%d" % (S_TILE, S_TILE, S_T0))
    A("s_lshr_b32 s%d, s%d, 3" % (S_T1, S_T1))
    A("s_mul_i32 s%d, s%d, 3" % (S_T3, S_T2))
    A("s_add_u32 s%d, s%d, s%d" % (S_ROLE, S_T3, S_T1))
    A("s_waitcnt lgkmcnt(0)")
    srd(A, SRD_X, S_X, S_X + 1, S * D * 2)
    A("s_cmp_lt_u32 s%d, 3" % S_T1)
    A("s_cbranch_scc1 L_mlp")
    A("s_mov_b32 s%d, s%d" % (S_ROLE, S_T2))
    if with_att:
        A("s_branch L_att")
    A.label("L_k1_end")
    A("s_endpgm")
    A.label("L_mlp")
    mlp_role(A)
    if with_att:
        A.label("L_att")
        att_role(A)
    return A

def k3_kernel(parts):
    A = K()
    A("s_cmp_ge_u32 s2, 1152")
    A("s_cbranch_scc1 L_k3_end")
    A("s_load_dwordx2 s[4:5], s[0:1], 0")
    A("s_load_dwordx2 s[6:7], s[0:1], 48")
    A("s_load_dwordx2 s[8:9], s[0:1], 64")
    A("v_and_b32 v1, 63, v0")
    A("v_lshrrev_b32 v2, 6, v0")
    A("s_lshl_b32 s3, s2, 11")
    A("v_lshlrev_b32 v3, 4, v0")
    A("v_add_u32 v3, s3, v3")
    A("s_mul_hi_u32 s10, s2, 0x%x" % ((2**32 + 17) // 18))
    A("s_mul_i32 s11, s10, 18")
    A("s_sub_u32 s11, s2, s11")
    A("v_and_b32 v4, 31, v1")
    A("s_lshl_b32 s12, s10, 5")
    A("v_add_u32 v4, s12, v4")
    A("s_movk_i32 s13, 1152")
    A("v_mul_lo_u32 v4, v4, s13")
    A("v_lshrrev_b32 v5, 5, v1")
    A("v_lshl_add_u32 v5, v2, 1, v5")
    A("v_lshlrev_b32 v5, 4, v5")
    A("s_lshl_b32 s12, s11, 6")
    A("v_add_u32 v4, v4, v5")
    A("v_add_u32 v4, s12, v4")
    A("s_waitcnt lgkmcnt(0)")
    srd(A, 16, 4, 5, S * D * 2)
    srd(A, 20, 6, 7, S * D * 2)
    srd(A, 24, 8, 9, NPART * PART_BYTES)
    A("buffer_load_dwordx4 v[8:11], v4, s[16:19], 0 offen")
    for n, p in enumerate(parts):
        A("s_mov_b32 s14, %d" % (p * PART_BYTES))
        A("buffer_load_dwordx4 v[%d:%d], v3, s[24:27], s14 offen" % (32 + 4*n, 35 + 4*n))
    A("s_mov_b32 s28, 0x00003f80")
    A("s_mov_b32 s29, 0x3f800000")
    for q in range(8): A("v_mov_b32 v%d, 0" % (16 + q))
    npart = len(parts)
    for n in range(npart):
        A("s_waitcnt vmcnt(%d)" % (npart - 1 - n))
        for q in range(4):
            A("v_dot2_f32_bf16 v%d, v%d, s28, v%d" % (16 + 2*q, 32 + 4*n + q, 16 + 2*q))
            A("v_dot2_f32_bf16 v%d, v%d, s29, v%d" % (17 + 2*q, 32 + 4*n + q, 17 + 2*q))
    A("s_nop 2")
    for q in range(4):
        A("v_permlane32_swap_b32 v%d, v%d" % (16 + q, 20 + q))
    A("s_nop 1")
    for q in range(4):
        A("v_lshlrev_b32 v24, 16, v%d" % (8 + q))
        A("v_and_b32 v25, 0xffff0000, v%d" % (8 + q))
        A("v_add_f32 v%d, v%d, v24" % (16 + 2*q, 16 + 2*q))
        A("v_add_f32 v%d, v%d, v25" % (17 + 2*q, 17 + 2*q))
    for q in range(4):
        A("v_cvt_pk_bf16_f32 v%d, v%d, v%d" % (8 + q, 16 + 2*q, 17 + 2*q))
    A("buffer_store_dwordx4 v[8:11], v4, s[20:23], 0 offen")
    A.label("L_k3_end")
    A("s_endpgm")
    return A

HDR = """; Kernarg layout for this problem (72 bytes, ptrs only, base s[0:1]):
"""

def build_all(path, with_att=False):
    k1 = k1_kernel(with_att=with_att)
    parts = list(range(16)) if with_att else list(range(12))
    k3 = k3_kernel(parts)
    n1, n3 = "fused_main_kernel", "reduce_kernel"
    t1, r1 = kernel_wrap(n1, k1.text(), 256, 96)
    t3, r3 = kernel_wrap(n3, k3.text(), 32 + 4 * len(parts), 40)
    hdr = HDR + "; @launch kernel=%s grid=(256,1,1) block=(512,1,1) lds=163840\n" % n1
    hdr += "; @launch kernel=%s grid=(1152,1,1) block=(128,1,1) lds=0\n" % n3
    txt = hdr + '.amdgcn_target "amdgcn-amd-amdhsa--gfx950"\n' + t1 + t3 + r1 + r3
    open(path, "w").write(txt)
    return txt

if __name__ == "__main__":
    out = sys.argv[1] if len(sys.argv) > 1 else "k.s"
    if "stamps" in sys.argv: STAMPS = True
    if "repeat" in sys.argv: REPEAT = True
    if "dbgt" in sys.argv: DBGT = True
    for a in sys.argv:
        if a.startswith("exp="): EXP = a[4:]
    if "pro" in sys.argv: PRO = True; STAMP_STEPS = (1,)
    for a in sys.argv:
        if a.startswith("steps="): STAMP_STEPS = tuple(int(x) for x in a[6:].split(","))
    build_all(out, with_att=('noatt' not in sys.argv))
    build(out)
    print("built", out)
```

```python
import sys, math
from asmlib import *

NAME = "parallel_sum__linear_attn_block__dense_activation_silu__prompt"
S, D, F = 2048, 576, 4608
PART_BYTES = S * D * 2
NPART = 16
WS_KV = 40 << 20
LOG2E = 0x3fb8aa3b
EPS_LN = 0x3727c5ac
INV576 = 0x3ae38e39

class Ctr:
    def __init__(self, maxv):
        self.ops = []; self.done = 0; self.maxv = maxv
    def issue(self, tag):
        self.ops.append(tag)
    def need(self, tags):
        if not isinstance(tags, (list, set, tuple)) or (isinstance(tags, tuple) and not isinstance(tags[0], tuple)):
            tags = [tags]
        idx = -1
        for i, t in enumerate(self.ops):
            if t in tags: idx = max(idx, i)
        for t in tags:
            assert t in self.ops, ("tag not issued", t)
        if idx < self.done: return None
        n = len(self.ops) - 1 - idx
        n = min(n, self.maxv)
        self.done = max(self.done, len(self.ops) - n)
        return n
    def all(self):
        self.done = len(self.ops)

class K(Asm):
    def __init__(self):
        super().__init__()
        self.vm = Ctr(63); self.lg = Ctr(15)
    def wait(self, vm=None, lg=None):
        a = self.vm.need(vm) if vm else None
        b = self.lg.need(lg) if lg else None
        parts = []
        if a is not None: parts.append("vmcnt(%d)" % a)
        if b is not None: parts.append("lgkmcnt(%d)" % b)
        if parts: self("s_waitcnt " + " ".join(parts))
    def waitall(self):
        self("s_waitcnt vmcnt(0) lgkmcnt(0)"); self.vm.all(); self.lg.all()

def srd(A, sreg, lo, hi, nbytes):
    A("s_mov_b32 s%d, s%d" % (sreg, lo))
    A("s_and_b32 s%d, s%d, 0xffff" % (sreg + 1, hi))
    A("s_mov_b32 s%d, 0x%x" % (sreg + 2, nbytes))
    A("s_mov_b32 s%d, 0x20000" % (sreg + 3))

def srd_off(A, sreg, lo, hi, soff, total, tmp):
    A("s_add_u32 s%d, s%d, s%d" % (sreg, lo, soff))
    A("s_addc_u32 s%d, s%d, 0" % (sreg + 1, hi))
    A("s_and_b32 s%d, s%d, 0xffff" % (sreg + 1, sreg + 1))
    A("s_sub_u32 s%d, 0x%x, s%d" % (sreg + 2, total, soff))
    A("s_mov_b32 s%d, 0x20000" % (sreg + 3))

STAMPS = False
REPEAT = False
DBGT = False
EXP = ''
PRO = False
STAMP_STEPS = (1, 9, 54, 60)
WS_STAMP = 48 << 20
nstamp = [0]
def stamp(A):
    if not STAMPS: return
    k = nstamp[0]; nstamp[0] += 1
    A("s_memtime s[%d:%d]" % (60 + 2*k, 61 + 2*k))
def stamp_flush(A):
    if not STAMPS: return
    k = nstamp[0]
    A("s_memrealtime s[%d:%d]" % (60 + 2*k, 61 + 2*k))
    A("s_waitcnt lgkmcnt(0)")
    A("s_cmp_lg_u32 s%d, 0" % S_WAVE)
    A("s_cbranch_scc1 L_stamp_done%d" % id(A.lines) )
    A("s_lshl_b32 s%d, s2, 7" % S_T0)
    A("s_add_u32 s%d, s%d, %d" % (S_T0, S_T0, WS_STAMP))
    A("s_add_u32 s56, s%d, s%d" % (S_WS, S_T0)); A("s_addc_u32 s57, s%d, 0" % (S_WS + 1))
    A("s_and_b32 s57, s57, 0xffff"); A("s_mov_b32 s58, 128"); A("s_mov_b32 s59, 0x20000")
    A("v_mov_b32 v250, 0")
    for j in range(k + 1):
        A("v_mov_b32 v251, s%d" % (60 + 2*j))
        A("buffer_store_dword v251, v250, s[56:59], 0 offen offset:%d" % (4*j))
    if PRO:
        A("v_mov_b32 v251, s88")
        A("buffer_store_dword v251, v250, s[56:59], 0 offen offset:%d" % (4*(k+2)))
    A("v_mov_b32 v251, s%d" % 92)
    A("buffer_store_dword v251, v250, s[56:59], 0 offen offset:%d" % (4*(k+1)))
    A.label("L_stamp_done%d" % id(A.lines))
    nstamp[0] = 0


def dbgt_end(A, slot):
    if not DBGT: return
    lab = A.newlabel("L_dbgt")
    A("s_memrealtime s[62:63]")
    A("s_waitcnt lgkmcnt(0)")
    A("s_cmp_lg_u32 s%d, 0" % S_WAVE)
    A("s_cbranch_scc1 %s" % lab)
    A("s_add_u32 s64, s%d, %d" % (S_WS, WS_STAMP)); A("s_addc_u32 s65, s%d, 0" % (S_WS + 1)); A("s_and_b32 s65, s65, 0xffff")
    A("s_mov_b32 s66, 4096"); A("s_mov_b32 s67, 0x20000")
    A("s_lshl_b32 s68, s2, 3")
    A("s_mov_b64 exec, 1")
    A("v_mov_b32 v250, s92"); A("v_mov_b32 v251, s62"); A("v_mov_b32 v252, s68")
    A("buffer_store_dwordx2 v[250:251], v252, s[64:67], 0 offen")
    A.label(lab)

S_X, S_WQKV, S_WO, S_W1, S_W2, S_OUT, S_DBG, S_WS = 4, 6, 8, 12, 14, 16, 18, 20
SRD_X, SRD_A, SRD_B, SRD_P = 24, 28, 32, 36
S_WAVE, S_R, S_C, S_ROLE, S_TILE = 40, 41, 42, 43, 44
S_M0B, S_T0, S_T1, S_T2, S_T3 = 45, 46, 47, 48, 49
S_ONES, S_L2E, S_XM0 = 50, 51, 52

def ln_stats(A, regs_list, vsum, vsq, tmp):
    A("v_mov_b32 v%d, 0" % vsum); A("v_mov_b32 v%d, 0" % (vsum + 1))
    A("v_mov_b32 v%d, 0" % vsq); A("v_mov_b32 v%d, 0" % (vsq + 1))
    for n, r in enumerate(regs_list):
        e = n & 1
        A("v_dot2_f32_bf16 v%d, v%d, s%d, v%d" % (vsum + e, r, S_ONES, vsum + e))
        A("v_dot2_f32_bf16 v%d, v%d, v%d, v%d" % (vsq + e, r, r, vsq + e))
    A("s_nop 2")
    A("v_add_f32 v%d, v%d, v%d" % (vsum, vsum, vsum + 1))
    A("v_add_f32 v%d, v%d, v%d" % (vsq, vsq, vsq + 1))

def xsum32(A, r, tmp):
    A("v_mov_b32 v%d, v%d" % (tmp, r))
    A("s_nop 1")
    A("v_permlane32_swap_b32 v%d, v%d" % (r, tmp))
    A("s_nop 1")
    A("v_add_f32 v%d, v%d, v%d" % (r, r, tmp))

def xsum16(A, r, tmp):
    A("v_mov_b32 v%d, v%d" % (tmp, r))
    A("s_nop 1")
    A("v_permlane16_swap_b32 v%d, v%d" % (r, tmp))
    A("s_nop 1")
    A("v_add_f32 v%d, v%d, v%d" % (r, r, tmp))

def ln_coef(A, vsum, vsq, va, vb, tmp, scale_l2e):
    A("v_mul_f32 v%d, 0x%x, v%d" % (vsum, INV576, vsum))
    A("v_mul_f32 v%d, 0x%x, v%d" % (vsq, INV576, vsq))
    A("v_fma_f32 v%d, -v%d, v%d, v%d" % (vsq, vsum, vsum, vsq))
    A("v_max_f32 v%d, 0, v%d" % (vsq, vsq))
    A("v_add_f32 v%d, 0x%x, v%d" % (vsq, EPS_LN, vsq))
    A("v_rsq_f32 v%d, v%d" % (va, vsq))
    A("s_nop 0")
    if scale_l2e:
        A("v_mul_f32 v%d, s%d, v%d" % (va, S_L2E, va))
    A("v_mul_f32 v%d, v%d, v%d" % (vb, vsum, va))
    A("v_sub_f32 v%d, 0, v%d" % (vb, vb))

def ln_apply(A, regs_list, va, vb, temps):
    npair = len(temps) // 2
    pend = []
    for n, r in enumerate(regs_list):
        t0 = temps[(n % npair) * 2]; t1 = t0 + 1
        A("v_lshlrev_b32 v%d, 16, v%d" % (t0, r))
        A("v_and_b32 v%d, 0xffff0000, v%d" % (t1, r))
        A("v_fma_f32 v%d, v%d, v%d, v%d" % (t0, t0, va, vb))
        A("v_fma_f32 v%d, v%d, v%d, v%d" % (t1, t1, va, vb))
        A("v_cvt_pk_bf16_f32 v%d, v%d, v%d" % (r, t0, t1))


XB = 16384
XT = XB + 131072
def x_dma(A, vL, vt0, vt1, vt2):
    A("s_lshl_b32 s%d, s%d, 7" % (S_T0, S_TILE))
    A("s_lshl_b32 s%d, s%d, 4" % (S_T1, S_WAVE))
    A("s_add_u32 s%d, s%d, s%d" % (S_T0, S_T0, S_T1))
    A("s_mul_i32 s%d, s%d, 1152" % (S_T0, S_T0))
    A("s_lshl_b32 s%d, s%d, 14" % (S_T1, S_WAVE))
    A("s_add_u32 s%d, s%d, %d" % (S_T1, S_T1, XB))
    A("v_lshlrev_b32 v%d, 4, v%d" % (vt0, vL))
    for e in range(16):
        A("v_xor_b32 v%d, %d, v%d" % (vt1 + (e & 1), e * 16, vt0))
        A("s_add_u32 m0, s%d, %d" % (S_T1, e * 1024))
        A("s_add_u32 s%d, s%d, %d" % (S_T2, S_T0, e * 1152))
        A("buffer_load_dwordx4 v%d, s[%d:%d], s%d offen lds" % (vt1 + (e & 1), SRD_X, SRD_X + 3, S_T2))
        A.vm.issue(("x", e))
    A("s_lshl_b32 s%d, s%d, 11" % (S_T1, S_WAVE))
    A("s_add_u32 s%d, s%d, %d" % (S_T1, S_T1, XT))
    for q in range(2):
        t = vt1 + q
        A("v_lshrrev_b32 v%d, 4, v%d" % (vt0, vL))
        A("v_add_u32 v%d, %d, v%d" % (vt0, 4 * q, vt0))
        A("v_and_b32 v%d, 7, v%d" % (t, vL))
        A("v_xor_b32 v%d, v%d, v%d" % (t, t, vt0))
        A("v_lshlrev_b32 v%d, 4, v%d" % (t, t))
        A("v_lshrrev_b32 v%d, 3, v%d" % (vt0, vL))
        A("v_mul_u32_u24 v%d, 1152, v%d" % (vt0, vt0))
        A("v_add_u32 v%d, v%d, v%d" % (t, t, vt0))
        A("s_add_u32 m0, s%d, %d" % (S_T1, q * 1024))
        A("s_add_u32 s%d, s%d, %d" % (S_T2, S_T0, q * 8 * 1152 + 1024))
        A("buffer_load_dwordx4 v%d, s[%d:%d], s%d offen lds" % (t, SRD_X, SRD_X + 3, S_T2))
        A.vm.issue(("x", 16 + q))

S_SEL0, S_SEL1 = 53, 54

def x_unit_dma_setup(A, vL, vDX, vT0, vT1, vT2, vT3, XS):
    A("s_lshl_b32 s%d, s%d, 7" % (S_T0, S_TILE))
    A("s_lshl_b32 s%d, s%d, 4" % (S_T1, S_WAVE))
    A("s_add_u32 s%d, s%d, s%d" % (S_T0, S_T0, S_T1))
    A("s_mul_i32 s%d, s%d, 1152" % (S_T0, S_T0))
    A("v_lshrrev_b32 v%d, 3, v%d" % (vT0, vL))
    A("v_mul_u32_u24 v%d, 1152, v%d" % (vT1, vT0))
    A("v_add_u32 v%d, s%d, v%d" % (vT1, S_T0, vT1))
    A("v_lshrrev_b32 v%d, 4, v%d" % (vT2, vL))
    A("v_and_b32 v%d, 7, v%d" % (vT3, vL))
    A("v_xor_b32 v%d, v%d, v%d" % (vDX, vT3, vT2))
    A("v_lshl_add_u32 v%d, v%d, 4, v%d" % (vDX, vDX, vT1))
    A("v_add_u32 v%d, 4, v%d" % (vT2, vT2))
    A("v_xor_b32 v%d, v%d, v%d" % (vDX + 1, vT3, vT2))
    A("v_lshl_add_u32 v%d, v%d, 4, v%d" % (vDX + 1, vDX + 1, vT1))
    A("v_add_u32 v%d, %d, v%d" % (vDX + 1, 8 * 1152, vDX + 1))
    A("s_lshl_b32 s%d, s%d, 11" % (S_XM0, S_WAVE))
    A("s_add_u32 s%d, s%d, %d" % (S_XM0, S_XM0, XS))

def x_unit_dma(A, kb, vDX, nslots=6):
    slot = kb % nslots
    for q in range(2):
        A("s_add_u32 m0, s%d, %d" % (S_XM0, slot * 16384 + q * 1024))
        A("s_movk_i32 s%d, %d" % (S_T3, kb * 128))
        A("buffer_load_dwordx4 v%d, s[%d:%d], s%d offen lds" % (vDX + q, SRD_X, SRD_X + 3, S_T3))
        A.vm.issue(("x", kb, q))

def mlp_role(A, dbg=None):
    XN = 0
    ACC = [144, 160]
    WF = 176
    P = 208
    T = 216
    vD1, vD2 = 224, 225
    vR1, vR2, vHW, vHR, vST, vA, vC2 = 226, 227, 228, 229, 230, 231, 232
    U = 240
    vXR = 240
    vDX = 244
    vS, vQ = 246, 248
    vL, vT0, vT1, vT2, vT3 = 250, 251, 252, 253, 254
    RING = 8
    HBASE = 65536
    XS = HBASE
    NSC = 6
    NU1 = NSC * 9
    NU2 = 9 * 6
    NU = NU1 + NU2
    LOOK = RING - 1

    stamp(A)
    A("v_and_b32 v%d, 63, v0" % vL)
    x_unit_dma_setup(A, vL, vDX, vT0, vT1, vT2, vT3, XS)
    for kb in range(6): x_unit_dma(A, kb, vDX)
    A("s_mul_i32 s%d, s%d, 768" % (S_T0, S_ROLE))
    srd_off(A, SRD_A, S_W1, S_W1 + 1, S_T0, D * F * 2, None)
    A("s_lshl_b32 s%d, s%d, 3" % (S_T0, S_WAVE))
    A("v_add_u32 v%d, s%d, v%d" % (vT0, S_T0, vT0))
    A("v_lshrrev_b32 v%d, 2, v%d" % (vT2, vL)); A("v_and_b32 v%d, 4, v%d" % (vT2, vT2))
    A("v_xor_b32 v%d, v%d, v%d" % (vT2, vT3, vT2))
    A("v_lshlrev_b32 v%d, 4, v%d" % (vT2, vT2))
    A("v_mul_u32_u24 v%d, 9216, v%d" % (vD1, vT0))
    A("v_add_u32 v%d, v%d, v%d" % (vD1, vD1, vT2))
    A("v_mul_u32_u24 v%d, 1152, v%d" % (vD2, vT0))
    A("v_add_u32 v%d, v%d, v%d" % (vD2, vD2, vT2))
    A("s_lshl_b32 s%d, s%d, 10" % (S_M0B, S_WAVE))

    def dma(un):
        if un >= NU: return
        slot = un % RING
        A("s_add_u32 m0, s%d, %d" % (S_M0B, slot * 8192))
        if un < NU1:
            sc, kb = divmod(un, 9)
            A("s_mov_b32 s%d, %d" % (S_T3, kb * 64 * 9216 + sc * 128))
            A("buffer_load_dwordx4 v%d, s[%d:%d], s%d offen lds" % (vD1, SRD_A, SRD_A+3, S_T3))
        else:
            t, fb = divmod(un - NU1, 6)
            A("s_mov_b32 s%d, %d" % (S_T3, fb * 64 * 1152 + t * 128))
            A("buffer_load_dwordx4 v%d, s[%d:%d], s%d offen lds" % (vD2, SRD_B, SRD_B+3, S_T3))
        A.vm.issue(("dma", un))
    dma(0); dma(1)
    A("s_mul_i32 s%d, s%d, %d" % (S_T0, S_ROLE, 384 * 1152))
    srd_off(A, SRD_B, S_W2, S_W2 + 1, S_T0, D * F * 2, None)
    A("s_mul_i32 s%d, s%d, %d" % (S_T0, S_ROLE, PART_BYTES))
    A("s_mul_i32 s%d, s%d, %d" % (S_T1, S_TILE, 4 * 18 * 2048))
    A("s_add_u32 s%d, s%d, s%d" % (S_T0, S_T0, S_T1))
    srd_off(A, SRD_P, S_WS, S_WS + 1, S_T0, NPART * PART_BYTES, None)
    A("v_lshrrev_b32 v%d, 5, v%d" % (vT1, vL))
    A("v_lshrrev_b32 v%d, 2, v%d" % (vT0, vL)); A("v_and_b32 v%d, 3, v%d" % (vT0, vT0))
    A("v_lshrrev_b32 v%d, 4, v%d" % (vT2, vL)); A("v_and_b32 v%d, 1, v%d" % (vT2, vT2))
    A("v_lshlrev_b32 v%d, 1, v%d" % (vT2, vT2))
    A("v_lshrrev_b32 v%d, 1, v%d" % (vT3, vL)); A("v_and_b32 v%d, 1, v%d" % (vT3, vT3))
    A("v_add_u32 v%d, v%d, v%d" % (vT2, vT2, vT3))
    A("s_lshl_b32 s%d, s%d, 2" % (S_T0, S_C))
    A("v_add_u32 v%d, s%d, v%d" % (vT2, S_T0, vT2))
    A("v_lshrrev_b32 v%d, 1, v%d" % (vT3, vT0)); A("v_lshlrev_b32 v%d, 2, v%d" % (vT3, vT3))
    A("v_xor_b32 v%d, v%d, v%d" % (vT2, vT2, vT3))
    A("v_lshlrev_b32 v%d, 4, v%d" % (vT2, vT2))
    A("v_and_b32 v%d, 1, v%d" % (vT3, vL)); A("v_lshlrev_b32 v%d, 3, v%d" % (vT3, vT3))
    A("v_add_u32 v%d, v%d, v%d" % (vT2, vT2, vT3))
    A("v_lshlrev_b32 v%d, 2, v%d" % (vT3, vT1)); A("v_add_u32 v%d, v%d, v%d" % (vT3, vT3, vT0))
    A("v_lshlrev_b32 v%d, 7, v%d" % (vT3, vT3)); A("v_add_u32 v%d, v%d, v%d" % (vR2, vT3, vT2))
    A("v_lshlrev_b32 v%d, 3, v%d" % (vT3, vT1)); A("v_add_u32 v%d, v%d, v%d" % (vT3, vT3, vT0))
    A("v_lshlrev_b32 v%d, 7, v%d" % (vT3, vT3)); A("v_add_u32 v%d, v%d, v%d" % (vR1, vT3, vT2))
    A("v_and_b32 v%d, 31, v%d" % (vT0, vL))
    A("s_lshl_b32 s%d, s%d, 5" % (S_T0, S_R))
    A("v_add_u32 v%d, s%d, v%d" % (vT0, S_T0, vT0))
    A("v_lshrrev_b32 v%d, 1, v%d" % (vT2, vL)); A("v_and_b32 v%d, 7, v%d" % (vT2, vT2))
    A("v_xor_b32 v%d, v%d, v%d" % (vT2, vT2, vT1))
    A("v_lshlrev_b32 v%d, 4, v%d" % (vT2, vT2))
    A("v_lshl_add_u32 v%d, v%d, 7, v%d" % (vT2, vT0, vT2))
    A("v_add_u32 v%d, %d, v%d" % (vXR, XS, vT2))
    for j in range(1, 4):
        A("v_xor_b32 v%d, %d, v%d" % (vXR + j, j * 32, vXR))
    A("s_mul_i32 s%d, s%d, 24576" % (S_T0, S_R))
    A("s_add_u32 s%d, s%d, %d" % (S_T0, S_T0, HBASE))
    A("v_lshlrev_b32 v%d, 4, v%d" % (vT3, vL))
    A("v_add_u32 v%d, s%d, v%d" % (vHR, S_T0, vT3))
    A("s_lshl_b32 s%d, s%d, 11" % (S_T1, S_C))
    A("v_add_u32 v%d, s%d, v%d" % (vHW, S_T1, vHR))
    A("s_mul_i32 s%d, s%d, 18" % (S_T0, S_R))
    A("s_add_u32 s%d, s%d, s%d" % (S_T0, S_T0, S_C))
    A("s_lshl_b32 s%d, s%d, 11" % (S_T0, S_T0))
    A("v_add_u32 v%d, s%d, v%d" % (vST, S_T0, vT3))
    for q in range(2):
        A("v_mov_b32 v%d, 0" % (vS + q)); A("v_mov_b32 v%d, 0" % (vQ + q))
    A("s_mov_b32 s%d, 0x00003f80" % S_SEL0)
    A("s_mov_b32 s%d, 0x3f800000" % S_SEL1)

    def xread(kb, j):
        slot = kb % 6
        rg = XN + 4 * (4 * kb + j)
        if slot < 4:
            A("ds_read_b128 v[%d:%d], v%d offset:%d" % (rg, rg + 3, vXR + j, slot * 16384))
        else:
            A("v_add_u32 v%d, 0x10000, v%d" % (T + j, vXR + j))
            A("ds_read_b128 v[%d:%d], v%d offset:%d" % (rg, rg + 3, T + j, (slot - 4) * 16384))
        A.lg.issue(("xf", kb, j))
    def stats(kb, j):
        for e in range(4):
            rg = XN + 4 * (4 * kb + j) + e
            A("v_dot2_f32_bf16 v%d, v%d, s%d, v%d" % (vS + (e & 1), rg, S_ONES, vS + (e & 1)))
            A("v_dot2_f32_bf16 v%d, v%d, v%d, v%d" % (vQ + (e & 1), rg, rg, vQ + (e & 1)))
    stamp(A)
    for g in range(3):
        A.wait(vm=[("x", 3 * g + 2, 1)])
        A("s_barrier")
        if g == 1:
            for kb in range(6, 9): x_unit_dma(A, kb, vDX)
            for un in range(2, LOOK): dma(un)
        for kb in range(3 * g, 3 * g + 3):
            for j in range(4): xread(kb, j)
        for kb in range(3 * g, 3 * g + 3):
            for j in range(4):
                A.wait(lg=[("xf", kb, j)])
                stats(kb, j)
        if PRO: stamp(A)
    A("s_nop 1")
    A("v_add_f32 v%d, v%d, v%d" % (vS, vS, vS + 1))
    A("v_add_f32 v%d, v%d, v%d" % (vQ, vQ, vQ + 1))
    xsum32(A, vS, vS + 1)
    xsum32(A, vQ, vQ + 1)
    A("v_mul_f32 v%d, 0x%x, v%d" % (vS, INV576, vS))
    A("v_mul_f32 v%d, 0x%x, v%d" % (vQ, INV576, vQ))
    A("v_fma_f32 v%d, -v%d, v%d, v%d" % (vQ, vS, vS, vQ))
    A("v_max_f32 v%d, 0, v%d" % (vQ, vQ))
    A("v_add_f32 v%d, 0x%x, v%d" % (vQ, EPS_LN, vQ))
    A("v_sub_f32 v%d, 0, v%d" % (vS, vS))
    A("v_rsq_f32 v%d, v%d" % (vA, vQ))
    A("v_sqrt_f32 v%d, v%d" % (vC2, vQ))
    A("s_nop 0")
    A("v_mul_f32 v%d, s%d, v%d" % (vA, S_L2E, vA))
    for n in range(0, 144, 4):
        for e in range(4):
            A("v_dot2_f32_bf16 v%d, v%d, s%d, v%d" % (T + 2*e, XN + n + e, S_SEL0, vS))
            A("v_dot2_f32_bf16 v%d, v%d, s%d, v%d" % (T + 2*e + 1, XN + n + e, S_SEL1, vS))
        A("s_nop 0")
        for e in range(4):
            A("v_cvt_pk_bf16_f32 v%d, v%d, v%d" % (XN + n + e, T + 2*e, T + 2*e + 1))

    def wfrag(un, i):
        return WF + 16 * (un & 1) + 4 * i
    def wread(un, i):
        if un >= NU: return
        slot = un % RING
        f = wfrag(un, i)
        off = slot * 8192 + i * 2048
        if un < NU1:
            A("ds_read_b64_tr_b16 v[%d:%d], v%d offset:%d" % (f, f+1, vR1, off))
            A("ds_read_b64_tr_b16 v[%d:%d], v%d offset:%d" % (f+2, f+3, vR1, off + 512))
        else:
            A("ds_read_b64_tr_b16 v[%d:%d], v%d offset:%d" % (f, f+1, vR2, off))
            A("ds_read_b64_tr_b16 v[%d:%d], v%d offset:%d" % (f+2, f+3, vR2, off + 1024))
        A.lg.issue(("w", un, i, 0)); A.lg.issue(("w", un, i, 1))
    def hread(hf):
        A("ds_read_b128 v[%d:%d], v%d offset:%d" % (XN + 4*hf, XN + 4*hf + 3, vHR, hf * 1024))
        A.lg.issue(("hr", hf))
    def hwrite(sc, ks):
        A("ds_write_b128 v%d, v[%d:%d] offset:%d" % (vHW, P + 4*ks, P + 4*ks + 3, sc * 4096 + ks * 1024))
        A.lg.issue(("hw", sc, ks))

    def silu_0(va, t):
        A("v_mul_f32 v%d, v%d, v%d" % (t, va, vA)); A("v_mul_f32 v%d, v%d, v%d" % (t+1, va+1, vA))
    def silu_a(va, t):
        A("v_exp_f32_e64 v%d, -v%d" % (t, t)); A("v_exp_f32_e64 v%d, -v%d" % (t+1, t+1))
    def silu_b(va, t):
        A("v_fma_f32 v%d, v%d, v%d, v%d" % (t, t, vC2, vC2)); A("v_fma_f32 v%d, v%d, v%d, v%d" % (t+1, t+1, vC2, vC2))
        A("v_rcp_f32 v%d, v%d" % (t, t)); A("v_rcp_f32 v%d, v%d" % (t+1, t+1))
    def silu_c(va, t):
        A("v_mul_f32 v%d, v%d, v%d" % (t, va, t)); A("v_mul_f32 v%d, v%d, v%d" % (t+1, va+1, t+1))
    def silu_d(va, t, pidx):
        A("v_cvt_pk_bf16_f32 v%d, v%d, v%d" % (P + pidx, t, t+1))

    stamp(A)
    A.wait(vm=[("dma", 0)])
    A("s_barrier")
    for i in range(4): wread(0, i)

    fill = [[[] for _ in range(4)] for _ in range(NU + 2)]
    pre_barrier_lg = [[] for _ in range(NU + 2)]
    def sched_silu(sc, plan, slots):
        acc = ACC[sc & 1]
        for n, pairs in plan:
            for q, pidx in enumerate(pairs):
                va = acc + 2 * pidx
                t = T + 2 * (q % 4)
                s0, s1, s2, s3, s4 = slots
                fill[n][s0].append(lambda va=va, t=t: silu_0(va, t))
                fill[n][s1].append(lambda va=va, t=t: silu_a(va, t))
                fill[n][s2].append(lambda va=va, t=t: silu_b(va, t))
                fill[n][s3].append(lambda va=va, t=t: silu_c(va, t))
                fill[n][s4].append(lambda va=va, t=t, pidx=pidx: silu_d(va, t, pidx))
                if pidx % 4 == 3:
                    ks = pidx // 4
                    fill[n + 1][0].insert(0, lambda sc=sc, ks=ks: hwrite(sc, ks))
                    pre_barrier_lg[n + 2].append(("hw", sc, ks))
    for sc in range(NSC):
        n0 = 9 * (sc + 1)
        if sc < NSC - 1:
            sched_silu(sc, [(n0 + 1 + q, [q]) for q in range(8)], (0, 0, 1, 2, 3))
        else:
            fill[n0][0].append(lambda: (A('s_nop 7'), A('s_nop 3')))
            sched_silu(sc, [(n0, [0, 1, 2, 3]), (n0 + 1, [4, 5, 6, 7])], (0, 1, 2, 3, 3))
    last_pass = 9 * (NSC - 1)
    nh_early = 4 * (NSC - 2)
    for hf in range(nh_early):
        fill[last_pass + 1 + hf // 4][hf % 4].append(lambda hf=hf: hread(hf))
    for hf in range(nh_early, nh_early + 4):
        fill[NU1 + 2][hf % 4].append(lambda hf=hf: hread(hf))
    for hf in range(nh_early + 4, nh_early + 8):
        fill[NU1 + 4][hf % 4].append(lambda hf=hf: hread(hf))
    def epi(t, half):
        acc = ACC[t & 1] + 8 * half
        for q in range(4):
            A("v_cvt_pk_bf16_f32 v%d, v%d, v%d" % (P + 4*half + q, acc + 2*q, acc + 2*q + 1))
    def epi_store(t, half):
        A("s_mov_b32 s%d, %d" % (S_T2, t * 4096))
        A("buffer_store_dwordx4 v[%d:%d], v%d, s[%d:%d], s%d offen offset:%d" % (P + 4*half, P + 4*half + 3, vST, SRD_P, SRD_P+3, S_T2, half * 1024))
        A.vm.issue(("st", t, half))
    for t in range(8):
        n0 = NU1 + 6 * (t + 1)
        fill[n0 + 1][0].append(lambda t=t: epi(t, 0))
        fill[n0 + 1][1].append(lambda t=t: epi_store(t, 0))
        fill[n0 + 3][0].append(lambda t=t: epi(t, 1))
        fill[n0 + 3][1].append(lambda t=t: epi_store(t, 1))

    DMAPOS = 2
    for n in range(NU):
        A.comment("step %d" % n)
        if n in STAMP_STEPS: stamp(A)
        need_vm = ([("dma", n + 1)] if n + 1 < NU else [])
        A.wait(vm=need_vm or None, lg=pre_barrier_lg[n] or None)
        A("s_barrier")
        for i in range(4):
            tags = [("w", n, i, 1)]
            if n >= NU1:
                t, fb = divmod(n - NU1, 6)
                hf = fb * 4 + i
                if t == 0: tags.append(("hr", hf))
            A.wait(lg=tags)
            f = wfrag(n, i)
            if n < NU1:
                sc, kb = divmod(n, 9)
                acc = ACC[sc & 1]; bop = XN + 4 * (4 * kb + i)
                first = (kb == 0 and i == 0)
            else:
                acc = ACC[t & 1]; bop = XN + 4 * hf
                first = (fb == 0 and i == 0)
            csrc = "0" if first else "v[%d:%d]" % (acc, acc + 15)
            A("v_mfma_f32_32x32x16_bf16 v[%d:%d], v[%d:%d], v[%d:%d], %s" % (acc, acc+15, f, f+3, bop, bop+3, csrc))
            wread(n + 1, i)
            for fn in fill[n][i]: fn()
            if i == DMAPOS: dma(n + LOOK)
    A("s_nop 7"); A("s_nop 7")
    epi(8, 0); epi(8, 1)
    epi_store(8, 0); epi_store(8, 1)
    stamp(A)
    A("s_waitcnt vmcnt(0)")
    stamp(A)
    stamp_flush(A)
    dbgt_end(A, 9)
    A("s_endpgm")


KV_GROUP_BYTES = 36 * 1024
SRD_KV, SRD_D = 8, 16
S_WOP = 56
def att_role(A):
    A.vm = Ctr(63); A.lg = Ctr(15)
    def xf(u, kk): return 4 * (18 * u + kk)
    ACC = 144
    WR = 216
    vDM = 240
    vTR1, vTR3 = 243, 244
    vTR3b = 254
    vCA = 245
    vL, vT0, vT1, vT2, vT3 = 249, 250, 251, 252, 253
    vDX = 254
    XS = 55296
    USZ = 18432
    EX = 73728
    PQ = 82944
    KVF = 119808
    ZF = 133632
    CH = 41472
    stamp(A)
    A("v_and_b32 v%d, 63, v0" % vL)
    A("v_mov_b32 v%d, v0" % ACC)
    x_unit_dma_setup(A, vL, vDX, vT0, vT1, vT2, vT3, XS)
    for kb in range(6): x_unit_dma(A, kb, vDX)
    srd(A, SRD_A, S_WQKV, S_WQKV + 1, D * 3 * D * 2)
    A("s_mul_i32 s%d, s%d, %d" % (S_T0, S_ROLE, 144 * 1152))
    srd_off(A, SRD_B, S_WO, S_WO + 1, S_T0, D * D * 2, None)
    A("s_lshr_b32 s%d, s%d, 1" % (S_T0, S_R)); A("s_lshl_b32 s%d, s%d, 4" % (S_T0, S_T0))
    A("s_and_b32 s%d, s%d, 1" % (S_T1, S_R)); A("s_lshl_b32 s%d, s%d, 2" % (S_T1, S_T1))
    A("s_add_u32 s%d, s%d, s%d" % (S_T0, S_T0, S_T1))
    A("s_mul_i32 s%d, s%d, 288" % (S_T1, S_ROLE))
    for q in range(3):
        A("v_add_u32 v%d, %d, v%d" % (vT0, 48 * q, vL))
        A("v_mul_u32_u24 v%d, 3641, v%d" % (vT1, vT0))
        A("v_lshrrev_b32 v%d, 16, v%d" % (vT1, vT1))
        A("v_mul_u32_u24 v%d, 18, v%d" % (vT2, vT1))
        A("v_sub_u32 v%d, v%d, v%d" % (vT2, vT0, vT2))
        A("v_lshrrev_b32 v%d, 2, v%d" % (vT3, vT1))
        A("v_lshlrev_b32 v%d, 3, v%d" % (vT3, vT3))
        A("v_and_b32 v%d, 3, v%d" % (vT1, vT1))
        A("v_add_u32 v%d, v%d, v%d" % (vT1, vT1, vT3))
        A("v_add_u32 v%d, s%d, v%d" % (vT1, S_T0, vT1))
        A("v_mul_u32_u24 v%d, 3456, v%d" % (vT1, vT1))
        A("v_lshl_add_u32 v%d, v%d, 4, v%d" % (vT1, vT2, vT1))
        A("v_add_u32 v%d, s%d, v%d" % (vDM + q, S_T1, vT1))
    S_MB, S_O1, S_O3 = 58, 59, 55
    A("s_mul_i32 s%d, s%d, 9216" % (S_MB, S_C)); A("s_mul_i32 s%d, s%d, 2304" % (S_T0, S_R)); A("s_add_u32 s%d, s%d, s%d" % (S_MB, S_MB, S_T0))
    A("s_add_u32 s%d, s%d, 1" % (S_O1, S_C)); A("s_mul_i32 s%d, s%d, 1152" % (S_O1, S_O1))
    A("s_mul_i32 s%d, s%d, %d" % (S_O3, S_C, 32 * 3456))
    NUA = 27
    def wdma(un):
        if un >= NUA: return
        slot = un % 4
        if un < 18: A("s_add_u32 s%d, s%d, %d" % (S_T3, S_O1, un * 32 * 3456))
        else: A("s_add_u32 s%d, s%d, %d" % (S_T3, S_O3, (un - 18) * 64 * 3456))
        A("s_mov_b32 exec_hi, 0xffff")
        for q in range(3):
            A("s_add_u32 m0, s%d, %d" % (S_MB, slot * USZ + q * 768))
            A("s_nop 0")
            A("buffer_load_dwordx4 v%d, s[%d:%d], s%d offen lds" % (vDM + q, SRD_A, SRD_A + 3, S_T3))
            A.vm.issue(("wa", un, q))
        A("s_mov_b32 exec_hi, -1")
    for un in range(3): wdma(un)
    A("s_add_u32 s%d, s%d, 12" % (S_T0, S_ROLE))
    A("s_mul_i32 s%d, s%d, %d" % (S_T0, S_T0, PART_BYTES))
    A("s_mul_i32 s%d, s%d, %d" % (S_T1, S_TILE, 4 * 18 * 2048))
    A("s_add_u32 s%d, s%d, s%d" % (S_T0, S_T0, S_T1))
    srd_off(A, SRD_P, S_WS, S_WS + 1, S_T0, NPART * PART_BYTES, None)
    A("s_mul_i32 s%d, s%d, %d" % (S_T0, S_ROLE, KV_GROUP_BYTES))
    A("s_add_u32 s%d, s%d, %d" % (S_T0, S_T0, WS_KV))
    A("s_add_u32 s%d, s%d, s%d" % (SRD_KV, S_WS, S_T0)); A("s_addc_u32 s%d, s%d, 0" % (SRD_KV + 1, S_WS + 1))
    A("s_and_b32 s%d, s%d, 0xffff" % (SRD_KV + 1, SRD_KV + 1)); A("s_mov_b32 s%d, %d" % (SRD_KV + 2, KV_GROUP_BYTES)); A("s_mov_b32 s%d, 0x20000" % (SRD_KV + 3))
    srd(A, SRD_D, S_DBG, S_DBG + 1, 256)
    A("s_cmp_lg_u32 s%d, 0" % S_TILE)
    A("s_cbranch_scc1 L_att_nozero")
    for q in range(4): A("v_mov_b32 v%d, 0" % (ACC + 4 + q))
    A("v_lshlrev_b32 v%d, 4, v%d" % (ACC + 1, ACC))
    for q in range(5):
        A("s_mov_b32 s%d, %d" % (S_T3, q * 8192))
        A("buffer_store_dwordx4 v[%d:%d], v%d, s[%d:%d], s%d offen sc0 sc1" % (ACC + 4, ACC + 7, ACC + 1, SRD_KV, SRD_KV + 3, S_T3))
    A("s_waitcnt vmcnt(0)")
    A("s_barrier")
    A("v_mov_b32 v%d, 1" % (ACC + 2))
    A("s_lshl_b32 s%d, s%d, 2" % (S_T0, S_ROLE)); A("s_add_u32 s%d, s%d, 64" % (S_T0, S_T0))
    A("v_mov_b32 v%d, 0x7fffff00" % (ACC + 3)); A("v_mov_b32 v%d, s%d" % (ACC + 4, S_T0))
    A("v_cmp_eq_u32 vcc, 0, v%d" % ACC)
    A("s_nop 1")
    A("v_cndmask_b32 v%d, v%d, v%d, vcc" % (ACC + 3, ACC + 3, ACC + 4))
    A("buffer_atomic_add v%d, v%d, s[%d:%d], 0 offen sc1" % (ACC + 2, ACC + 3, SRD_D, SRD_D + 3))
    A("s_waitcnt vmcnt(0)")
    A.label("L_att_nozero")
    A("v_lshrrev_b32 v%d, 4, v%d" % (vT0, vL))
    A("v_lshrrev_b32 v%d, 1, v%d" % (vT1, vT0)); A("v_lshlrev_b32 v%d, 4, v%d" % (vT1, vT1))
    A("v_and_b32 v%d, 1, v%d" % (vT2, vT0)); A("v_lshlrev_b32 v%d, 2, v%d" % (vT2, vT2))
    A("v_add_u32 v%d, v%d, v%d" % (vT1, vT1, vT2))
    A("v_lshrrev_b32 v%d, 2, v%d" % (vT2, vL)); A("v_and_b32 v%d, 3, v%d" % (vT2, vT2))
    A("v_add_u32 v%d, v%d, v%d" % (vT1, vT1, vT2))
    A("v_mul_u32_u24 v%d, 288, v%d" % (vT1, vT1))
    A("v_and_b32 v%d, 3, v%d" % (vT2, vL))
    A("v_lshl_add_u32 v%d, v%d, 3, v%d" % (vT1, vT2, vT1))
    A("s_mul_i32 s%d, s%d, 9216" % (S_T0, S_C))
    A("v_add_u32 v%d, s%d, v%d" % (vTR1, S_T0, vT1))
    A("s_lshl_b32 s%d, s%d, 7" % (S_T0, S_C))
    A("v_add_u32 v%d, s%d, v%d" % (vTR3, S_T0, vT1))
    vXR = ACC + 8
    A("v_and_b32 v%d, 15, v%d" % (vT1, vL))
    A("v_lshrrev_b32 v%d, 1, v%d" % (vT2, vT1))
    A("v_xor_b32 v%d, v%d, v%d" % (vT2, vT2, vT0))
    A("v_lshlrev_b32 v%d, 4, v%d" % (vT2, vT2))
    A("s_lshl_b32 s%d, s%d, 5" % (S_T0, S_R))
    A("v_add_u32 v%d, s%d, v%d" % (vT1, S_T0, vT1))
    A("v_lshl_add_u32 v%d, v%d, 7, v%d" % (vT2, vT1, vT2))
    A("v_add_u32 v%d, %d, v%d" % (vXR, XS, vT2))
    A("v_xor_b32 v%d, 64, v%d" % (vXR + 1, vXR))
    A("v_add_u32 v%d, 0x10000, v%d" % (vXR + 2, vXR)); A("v_add_u32 v%d, 0x10000, v%d" % (vXR + 3, vXR + 1))
    vS = ACC + 16
    for q in range(8): A("v_mov_b32 v%d, 0" % (vS + q))
    def xread(kb, e, u):
        slot = kb % 6; kk = 2 * kb + e
        if slot < 4: A("ds_read_b128 v[%d:%d], v%d offset:%d" % (xf(u, kk), xf(u, kk) + 3, vXR + e, slot * 16384 + u * 2048))
        else: A("ds_read_b128 v[%d:%d], v%d offset:%d" % (xf(u, kk), xf(u, kk) + 3, vXR + 2 + e, (slot - 4) * 16384 + u * 2048))
        A.lg.issue(("xf", u, kk))
    def stats(u, kk):
        for e in range(4):
            rg = xf(u, kk) + e
            A("v_dot2_f32_bf16 v%d, v%d, s%d, v%d" % (vS + 4*u + (e & 1), rg, S_ONES, vS + 4*u + (e & 1)))
            A("v_dot2_f32_bf16 v%d, v%d, v%d, v%d" % (vS + 4*u + 2 + (e & 1), rg, rg, vS + 4*u + 2 + (e & 1)))
    stamp(A)
    for g in range(3):
        A.wait(vm=[("x", 3 * g + 2, 1)])
        A("s_barrier")
        if g == 1:
            for kb in range(6, 9): x_unit_dma(A, kb, vDX)
        lst = [(kb, e, u) for kb in range(3 * g, 3 * g + 3) for e in range(2) for u in range(2)]
        for (kb, e, u) in lst: xread(kb, e, u)
        for (kb, e, u) in lst:
            A.wait(lg=[("xf", u, 2 * kb + e)])
            stats(u, 2 * kb + e)
    A("s_nop 2")
    for u in range(2):
        b = vS + 4 * u
        A("v_add_f32 v%d, v%d, v%d" % (b, b, b + 1)); A("v_add_f32 v%d, v%d, v%d" % (b + 2, b + 2, b + 3))
        xsum16(A, b, b + 1); xsum32(A, b, b + 1)
        xsum16(A, b + 2, b + 3); xsum32(A, b + 2, b + 3)
        ln_coef(A, b, b + 2, vCA + 2*u, vCA + 2*u + 1, None, False)
    for u in range(2):
        ln_apply(A, list(range(xf(u, 0), xf(u, 0) + 72)), vCA + 2*u, vCA + 2*u + 1, [ACC + 24 + i for i in range(8)])
    stamp(A)

    seq = []
    for n in range(18):
        for t in range(9): seq.append((n, vTR1, (n % 4) * USZ + 32 * t, 1, t, n))
    for n in range(18, 27):
        for ks in range(2):
            for tau in range(5): seq.append((n, vTR3b if ks else vTR3, (n % 4) * USZ + 32 * tau, 3, tau, 2 * (n - 18) + ks))
    def fread(phi):
        if phi >= len(seq): return
        un, base, off = seq[phi][:3]
        f = WR + 4 * (phi % 6)
        A("ds_read_b64_tr_b16 v[%d:%d], v%d offset:%d" % (f, f + 1, base, off))
        A("ds_read_b64_tr_b16 v[%d:%d], v%d offset:%d" % (f + 2, f + 3, base, off + 2304))
        A.lg.issue(("f", phi, 0)); A.lg.issue(("f", phi, 1))
    A("v_add_u32 v%d, 9216, v%d" % (vTR3b, vTR3))
    A.wait(vm=[("wa", 0, 2)])
    A("s_barrier")
    for phi in range(6): fread(phi)
    def run_steps(n_lo, n_hi, extra=None):
        for n in range(n_lo, n_hi):
            A.comment("att step %d" % n)
            need = [("wa", n + 1, 2)] if n + 1 < NUA else []
            if extra and n in extra.get("vm", {}): need += extra["vm"][n]
            A.wait(vm=need or None)
            A("s_barrier")
            if extra and n in extra.get("post", {}): extra["post"][n]()
            phis = [p for p in range(len(seq)) if seq[p][0] == n]
            for idx, phi in enumerate(phis):
                un, base, off, kind, t, kk = seq[phi]
                f = WR + 4 * (phi % 6)
                A.wait(lg=[("f", phi, 1)])
                for u in range(2):
                    if kind == 1:
                        acc = ACC + 8 * t + 4 * u
                        cs = "0" if kk == 0 else "v[%d:%d]" % (acc, acc + 3)
                        A("v_mfma_f32_16x16x32_bf16 v[%d:%d], v[%d:%d], v[%d:%d], %s" % (acc, acc + 3, xf(u, kk), xf(u, kk) + 3, f, f + 3, cs))
                    else:
                        acc = ACC + 8 * t + 4 * u
                        cs = "0" if kk == 0 else "v[%d:%d]" % (acc, acc + 3)
                        A("v_mfma_f32_16x16x32_bf16 v[%d:%d], v[%d:%d], v[%d:%d], %s" % (acc, acc + 3, f, f + 3, xf(u, kk), xf(u, kk) + 3, cs))
                fread(phi + 6)
                if idx == 3: wdma(n + 3)
    run_steps(0, 18)
    stamp(A)
    C1E6 = 0x358637bd
    def phi_vals(regs, temps):
        nt = len(temps)
        for i0 in range(0, len(regs), nt):
            grp = regs[i0:i0 + nt]
            for r_, t_ in zip(grp, temps): A("v_mul_f32 v%d, s%d, v%d" % (t_, S_L2E, r_))
            for r_, t_ in zip(grp, temps): A("v_min_f32 v%d, 0, v%d" % (t_, t_))
            for r_, t_ in zip(grp, temps): A("v_exp_f32 v%d, v%d" % (t_, t_))
            for r_, t_ in zip(grp, temps): A("v_max_f32 v%d, 0, v%d" % (r_, r_))
            for r_, t_ in zip(grp, temps): A("v_add_f32 v%d, 0x%x, v%d" % (r_, C1E6, r_))
            for r_, t_ in zip(grp, temps): A("v_add_f32 v%d, v%d, v%d" % (r_, r_, t_))
    TP = [vT0, vT1, vT2, vT3, vCA, vCA + 1, vCA + 2, vCA + 3]
    A("s_nop 7"); A("s_nop 1")
    A("s_cmp_lg_u32 s%d, 0" % S_C)
    A("s_cbranch_scc1 L_att_nophi")
    phi_vals(list(range(ACC, ACC + 72)), TP)
    A.label("L_att_nophi")
    vEW = vT0
    A("s_mul_i32 s%d, s%d, 18432" % (S_T0, S_R)); A("s_mul_i32 s%d, s%d, 9216" % (S_T1, S_C))
    A("s_add_u32 s%d, s%d, s%d" % (S_T0, S_T0, S_T1)); A("s_add_u32 s%d, s%d, %d" % (S_T0, S_T0, EX))
    A("v_lshl_add_u32 v%d, v%d, 4, s%d" % (vEW, vL, S_T0))
    for t in range(9):
        b = ACC + 8 * t
        A("v_cvt_pk_bf16_f32 v%d, v%d, v%d" % (b, b, b + 1)); A("v_cvt_pk_bf16_f32 v%d, v%d, v%d" % (b + 1, b + 2, b + 3))
        A("v_cvt_pk_bf16_f32 v%d, v%d, v%d" % (b + 2, b + 4, b + 5)); A("v_cvt_pk_bf16_f32 v%d, v%d, v%d" % (b + 3, b + 6, b + 7))
        A("ds_write_b128 v%d, v[%d:%d] offset:%d" % (vEW, b, b + 3, t * 1024))
        A.lg.issue(("ew", t))
    def poll(dw_off_sreg_expr, target, vreg, vaddr):
        lab = A.newlabel("L_poll"); ok = A.newlabel("L_pollok")
        dw_off_sreg_expr()
        A("v_mov_b32 v%d, s%d" % (vaddr, S_T0))
        A("s_mov_b32 s%d, 0" % S_T1)
        A.label(lab)
        A("buffer_load_dword v%d, v%d, s[%d:%d], 0 offen sc1" % (vreg, vaddr, SRD_D, SRD_D + 3))
        A("s_waitcnt vmcnt(0)")
        A("v_readfirstlane_b32 s%d, v%d" % (S_T0, vreg))
        A("s_add_u32 s%d, s%d, 1" % (S_T1, S_T1))
        A("s_nop 2")
        A("s_cmp_ge_u32 s%d, %d" % (S_T0, target))
        A("s_cbranch_scc1 %s" % ok)
        A("s_sleep 4")
        A("s_cmp_lt_u32 s%d, 50000" % S_T1)
        A("s_cbranch_scc1 %s" % lab)
        A.label(ok)
        A.vm.all()
    poll(lambda: (A("s_lshl_b32 s%d, s%d, 2" % (S_T0, S_ROLE)), A("s_add_u32 s%d, s%d, 64" % (S_T0, S_T0))), 1, vT1, vT2)
    A("s_waitcnt lgkmcnt(0)"); A.lg.all()
    A("s_barrier")
    FA, FB, KA, HD, HE = ACC, ACC + 16, ACC + 32, ACC + 36, ACC + 40
    S_A, S_B = 22, 23
    vER = vT0
    A("v_lshlrev_b32 v%d, 4, v%d" % (vER, vL)); A("v_add_u32 v%d, %d, v%d" % (vER, EX, vER))
    vAT = vT1
    A("v_lshlrev_b32 v%d, 2, v%d" % (vAT, vL))
    vG4x4 = vT2
    A("v_lshrrev_b32 v%d, 4, v%d" % (vG4x4, vL)); A("v_lshlrev_b32 v%d, 2, v%d" % (vG4x4, vG4x4))
    vE16 = vT3
    A("v_and_b32 v%d, 15, v%d" % (vE16, vL))
    ONESF = ACC + 44
    for q in range(4): A("v_mov_b32 v%d, s%d" % (ONESF + q, S_ONES))
    natom = [0]
    def kv_round(tag):
        A("s_lshl_b32 s%d, s%d, 10" % (S_T0, S_A))
        A("v_add_u32 v%d, s%d, v%d" % (ACC + 48, S_T0, vER))
        for r_ in range(4):
            A("ds_read_b128 v[%d:%d], v%d offset:%d" % (FA + 4*r_, FA + 4*r_ + 3, ACC + 48, r_ * 18432))
        A("s_lshl_b32 s%d, s%d, 4" % (S_T0, S_A))
        for rr in range(4):
            A("v_add_u32 v%d, s%d, v%d" % (HD + rr, S_T0, vG4x4))
            if rr: A("v_add_u32 v%d, %d, v%d" % (HD + rr, rr, HD + rr))
            A("v_mul_u32_u24 v%d, 3641, v%d" % (HD + rr, HD + rr))
            A("v_lshrrev_b32 v%d, 16, v%d" % (HD + rr, HD + rr))
        for db in (-1, 0, 1, "z"):
            if db != "z":
                A("s_add_i32 s%d, s%d, %d" % (S_B, S_A, db))
                A("s_max_i32 s%d, s%d, 0" % (S_T1, S_B)); A("s_min_i32 s%d, s%d, 8" % (S_T1, S_T1))
                A("s_cmp_eq_u32 s%d, s%d" % (S_T1, S_B))
                A("s_mul_i32 s%d, s%d, 3" % (S_T2, S_A)); A("s_add_u32 s%d, s%d, %d" % (S_T2, S_T2, db + 1));
                A("s_cmp_eq_u32 s%d, s%d" % (S_T1, S_B))
                A("s_cselect_b32 s%d, s%d, 0x1fffff" % (S_T2, S_T2))
                A("s_lshl_b32 s%d, s%d, 10" % (S_T2, S_T2))
                A("s_add_u32 s%d, s%d, 9" % (S_T0, S_T1)); A("s_lshl_b32 s%d, s%d, 10" % (S_T0, S_T0))
                A("v_add_u32 v%d, s%d, v%d" % (ACC + 48, S_T0, vER))
                for r_ in range(4):
                    A("ds_read_b128 v[%d:%d], v%d offset:%d" % (FB + 4*r_, FB + 4*r_ + 3, ACC + 48, r_ * 18432))
                A("s_lshl_b32 s%d, s%d, 4" % (S_T0, S_T1))
                A("v_add_u32 v%d, s%d, v%d" % (HE, S_T0, vE16))
                A("v_mul_u32_u24 v%d, 3641, v%d" % (HE, HE))
                A("v_lshrrev_b32 v%d, 16, v%d" % (HE, HE))
                A("s_waitcnt lgkmcnt(0)")
                bsrc = lambda r_: FB + 4 * r_
            else:
                A("s_add_u32 s%d, s%d, 27" % (S_T2, S_A)); A("s_lshl_b32 s%d, s%d, 10" % (S_T2, S_T2))
                bsrc = lambda r_: ONESF
            for r_ in range(4):
                cs = "0" if r_ == 0 else "v[%d:%d]" % (KA, KA + 3)
                A("v_mfma_f32_16x16x32_bf16 v[%d:%d], v[%d:%d], v[%d:%d], %s" % (KA, KA + 3, FA + 4*r_, FA + 4*r_ + 3, bsrc(r_), bsrc(r_) + 3, cs))
            A("s_nop 7"); A("s_nop 1")
            if db != "z":
                for rr in range(4):
                    A("v_cmp_eq_u32 vcc, v%d, v%d" % (HD + rr, HE))
                    A("s_nop 1")
                    A("v_cndmask_b32 v%d, 0, v%d, vcc" % (KA + rr, KA + rr))
            for rr in range(4):
                A("buffer_atomic_add_f32 v%d, v%d, s[%d:%d], s%d offen offset:%d" % (KA + rr, vAT, SRD_KV, SRD_KV + 3, S_T2, rr * 256))
                A.vm.issue(("at", tag, db, rr))
            A("s_nop 1")
    A("s_mov_b32 s%d, s%d" % (S_A, S_WAVE))
    kv_round(0)
    A("s_cmp_lg_u32 s%d, 0" % S_WAVE)
    A("s_cbranch_scc1 L_att_kv2")
    A("s_mov_b32 s%d, 8" % S_A)
    sv = (list(A.vm.ops), A.vm.done)
    kv_round(1)
    A("s_waitcnt vmcnt(0)")
    A.vm.ops, A.vm.done = sv
    A.label("L_att_kv2")
    A.lg.all()
    stamp(A)
    def signal_kv():
        A("s_lshl_b32 s%d, s%d, 2" % (S_T0, S_ROLE)); A("s_add_u32 s%d, s%d, 80" % (S_T0, S_T0))
        A("v_mov_b32 v%d, 0x7fffff00" % vT0); A("v_mov_b32 v%d, s%d" % (vT1, S_T0))
        A("s_lshl_b32 s%d, s%d, 6" % (S_T1, S_WAVE))
        A("v_add_u32 v%d, s%d, v%d" % (vT2, S_T1, vL))
        A("v_cmp_eq_u32 vcc, 0, v%d" % vT2)
        A("v_mov_b32 v%d, 1" % vT3)
        A("s_nop 0")
        A("v_cndmask_b32 v%d, v%d, v%d, vcc" % (vT0, vT0, vT1))
        A("buffer_atomic_add v%d, v%d, s[%d:%d], 0 offen sc1" % (vT3, vT0, SRD_D, SRD_D + 3))
        A.vm.issue(("sig",))
    run_steps(18, 27, extra=dict(vm={19: [("at", 0, "z", 3)]}, post={19: signal_kv}))
    stamp(A)
    vWD = vDM
    A("v_mul_u32_u24 v%d, 3641, v%d" % (vT1, vL)); A("v_lshrrev_b32 v%d, 16, v%d" % (vT1, vT1))
    A("v_mul_u32_u24 v%d, 18, v%d" % (vT2, vT1)); A("v_sub_u32 v%d, v%d, v%d" % (vT2, vL, vT2))
    A("s_mul_i32 s%d, s%d, 18" % (S_T0, S_WAVE))
    A("v_add_u32 v%d, s%d, v%d" % (vT1, S_T0, vT1))
    A("v_mul_u32_u24 v%d, 1152, v%d" % (vT1, vT1))
    A("v_lshl_add_u32 v%d, v%d, 4, v%d" % (vWD, vT2, vT1))
    A("s_mul_i32 s%d, s%d, %d" % (S_MB, S_WAVE, 18 * 288))
    def cdma(ch):
        if ch >= 4: return
        A("s_mov_b32 exec_hi, 0x3fffff")
        for q in range(6):
            A("s_add_u32 m0, s%d, %d" % (S_MB, (ch & 1) * CH + q * 864))
            A("s_mov_b32 s%d, %d" % (S_T3, q * 3 * 1152 + ch * 288))
            A("buffer_load_dwordx4 v%d, s[%d:%d], s%d offen lds" % (vWD, SRD_B, SRD_B + 3, S_T3))
            A.vm.issue(("c", ch, q))
        A("s_mov_b32 exec_hi, -1")
    A("s_nop 7")
    TP3 = [ACC + 40 + i for i in range(8)]
    phi_vals(list(range(ACC, ACC + 40)), TP3)
    A("s_waitcnt lgkmcnt(0)"); A.lg.all()
    A("s_barrier")
    cdma(0); cdma(1)
    vPQ = vT0
    A("s_mul_i32 s%d, s%d, %d" % (S_T0, S_R, 2 * 9 * 512)); A("s_lshl_b32 s%d, s%d, 11" % (S_T1, S_C))
    A("s_add_u32 s%d, s%d, s%d" % (S_T0, S_T0, S_T1)); A("s_add_u32 s%d, s%d, %d" % (S_T0, S_T0, PQ))
    A("v_lshl_add_u32 v%d, v%d, 3, s%d" % (vPQ, vL, S_T0))
    for tau in range(5):
        for u in range(2):
            b = ACC + 8 * tau + 4 * u
            A("v_cvt_pk_bf16_f32 v%d, v%d, v%d" % (b, b, b + 1)); A("v_cvt_pk_bf16_f32 v%d, v%d, v%d" % (b + 1, b + 2, b + 3))
            A("ds_write_b64 v%d, v[%d:%d] offset:%d" % (vPQ, b, b + 1, u * 9 * 512 + tau * 512))
    sv_ops = None
    poll(lambda: (A("s_lshl_b32 s%d, s%d, 2" % (S_T0, S_ROLE)), A("s_add_u32 s%d, s%d, 80" % (S_T0, S_T0))), 16, vT1, vT2)
    stamp(A)
    KL, ZL = 0, 16
    HD, HE = 24, 28
    vAT, vG4x4, vE16, vFW = vT1, vT2, vT3, 30
    A("v_lshlrev_b32 v%d, 2, v%d" % (vAT, vL))
    A("v_lshrrev_b32 v%d, 4, v%d" % (vG4x4, vL)); A("v_lshlrev_b32 v%d, 2, v%d" % (vG4x4, vG4x4))
    A("v_and_b32 v%d, 15, v%d" % (vE16, vL))
    def kvf_round():
        A("s_mul_i32 s%d, s%d, 3072" % (S_T2, S_A))
        for j in range(3):
            for rr in range(4):
                A("buffer_load_dword v%d, v%d, s[%d:%d], s%d offen offset:%d sc1" % (KL + 4*j + rr, vAT, SRD_KV, SRD_KV + 3, S_T2, j * 1024 + rr * 256))
        A("s_add_u32 s%d, s%d, 27" % (S_T2, S_A)); A("s_lshl_b32 s%d, s%d, 10" % (S_T2, S_T2))
        for rr in range(4):
            A("buffer_load_dword v%d, v%d, s[%d:%d], s%d offen offset:%d sc1" % (ZL + rr, vAT, SRD_KV, SRD_KV + 3, S_T2, rr * 256))
        A("s_lshl_b32 s%d, s%d, 4" % (S_T0, S_A))
        for rr in range(4):
            A("v_add_u32 v%d, s%d, v%d" % (HD + rr, S_T0, vG4x4))
            if rr: A("v_add_u32 v%d, %d, v%d" % (HD + rr, rr, HD + rr))
            A("v_mul_u32_u24 v%d, 3641, v%d" % (HD + rr, HD + rr))
            A("v_lshrrev_b32 v%d, 16, v%d" % (HD + rr, HD + rr))
        A("s_mul_i32 s%d, s%d, %d" % (S_T0, S_A, 3 * 512)); A("s_add_u32 s%d, s%d, %d" % (S_T0, S_T0, KVF))
        A("v_lshl_add_u32 v%d, v%d, 3, s%d" % (vFW, vL, S_T0))
        A("s_waitcnt vmcnt(0)")
        for j in range(3):
            A("s_add_u32 s%d, s%d, %d" % (S_T0, S_A, j + 15)); A("s_lshl_b32 s%d, s%d, 4" % (S_T0, S_T0)); A("s_sub_u32 s%d, s%d, 256" % (S_T0, S_T0))
            A("v_add_u32 v%d, s%d, v%d" % (HE, S_T0, vE16))
            A("v_and_b32 v%d, 0xff, v%d" % (HE, HE))
            A("v_mul_u32_u24 v%d, 3641, v%d" % (HE, HE))
            A("v_lshrrev_b32 v%d, 16, v%d" % (HE, HE))
            for rr in range(4):
                A("v_cmp_eq_u32 vcc, v%d, v%d" % (HD + rr, HE))
                A("s_nop 1")
                A("v_cndmask_b32 v%d, 0, v%d, vcc" % (32 + rr, ZL + rr))
                A("v_cndmask_b32 v%d, 0, v%d, vcc" % (KL + 4*j + rr, KL + 4*j + rr))
            A("v_cvt_pk_bf16_f32 v36, v%d, v%d" % (KL + 4*j, KL + 4*j + 1)); A("v_cvt_pk_bf16_f32 v37, v%d, v%d" % (KL + 4*j + 2, KL + 4*j + 3))
            A("v_cvt_pk_bf16_f32 v38, v32, v33"); A("v_cvt_pk_bf16_f32 v39, v34, v35")
            A("ds_write_b64 v%d, v[36:37] offset:%d" % (vFW, j * 512))
            A("ds_write_b64 v%d, v[38:39] offset:%d" % (vFW, (ZF - KVF) + j * 512))
            A("s_nop 1")
    A("s_mov_b32 s%d, s%d" % (S_A, S_WAVE))
    kvf_round()
    A("s_cmp_lg_u32 s%d, 0" % S_WAVE)
    A("s_cbranch_scc1 L_att_kvf2")
    A("s_mov_b32 s%d, 8" % S_A)
    kvf_round()
    A.label("L_att_kvf2")
    A("s_waitcnt vmcnt(0) lgkmcnt(0)"); A.vm.all(); A.lg.all()
    A("s_barrier")
    PF = 40
    vPR = vT0
    A("s_lshl_b32 s%d, s%d, 1" % (S_T0, S_R)); A("s_add_u32 s%d, s%d, s%d" % (S_T0, S_T0, S_C))
    A("s_mul_i32 s%d, s%d, %d" % (S_T0, S_T0, 9 * 512)); A("s_add_u32 s%d, s%d, %d" % (S_T0, S_T0, PQ))
    A("v_lshl_add_u32 v%d, v%d, 3, s%d" % (vPR, vL, S_T0))
    for t in range(9):
        A("ds_read_b64 v[%d:%d], v%d offset:%d" % (PF + 2*t, PF + 2*t + 1, vPR, t * 512))
    vKR = vT1
    A("v_lshlrev_b32 v%d, 3, v%d" % (vKR, vL)); A("v_add_u32 v%d, %d, v%d" % (vKR, KVF, vKR))
    KF, ZFr, NUM, DEN, OT = 60, 66, 72, 108, 144
    for b in range(9):
        al = [a for a in (b - 1, b, b + 1) if 0 <= a <= 8]
        for i_, a in enumerate(al):
            j = b - a + 1
            A("ds_read_b64 v[%d:%d], v%d offset:%d" % (KF + 2*i_, KF + 2*i_ + 1, vKR, (a * 3 + j) * 512))
            A("ds_read_b64 v[%d:%d], v%d offset:%d" % (ZFr + 2*i_, ZFr + 2*i_ + 1, vKR, (ZF - KVF) + (a * 3 + j) * 512))
        A("s_waitcnt lgkmcnt(0)")
        for i_, a in enumerate(al):
            cs = "0" if i_ == 0 else "v[%d:%d]" % (NUM + 4*b, NUM + 4*b + 3)
            A("v_mfma_f32_16x16x16_bf16 v[%d:%d], v[%d:%d], v[%d:%d], %s" % (NUM + 4*b, NUM + 4*b + 3, KF + 2*i_, KF + 2*i_ + 1, PF + 2*a, PF + 2*a + 1, cs))
        for i_, a in enumerate(al):
            cs = "0" if i_ == 0 else "v[%d:%d]" % (DEN + 4*b, DEN + 4*b + 3)
            A("v_mfma_f32_16x16x16_bf16 v[%d:%d], v[%d:%d], v[%d:%d], %s" % (DEN + 4*b, DEN + 4*b + 3, ZFr + 2*i_, ZFr + 2*i_ + 1, PF + 2*a, PF + 2*a + 1, cs))
        A("s_nop 1")
    A("s_nop 7"); A("s_nop 1")
    for i_ in range(36): A("v_add_f32 v%d, 0x%x, v%d" % (DEN + i_, C1E6, DEN + i_))
    for i_ in range(36): A("v_rcp_f32 v%d, v%d" % (DEN + i_, DEN + i_))
    A("s_nop 0")
    for i_ in range(36): A("v_mul_f32 v%d, v%d, v%d" % (NUM + i_, NUM + i_, DEN + i_))
    for b in range(9):
        A("v_cvt_pk_bf16_f32 v%d, v%d, v%d" % (OT + 2*b, NUM + 4*b, NUM + 4*b + 1)); A("v_cvt_pk_bf16_f32 v%d, v%d, v%d" % (OT + 2*b + 1, NUM + 4*b + 2, NUM + 4*b + 3))
        A("ds_write_b64 v%d, v[%d:%d] offset:%d" % (vPR, OT + 2*b, OT + 2*b + 1, b * 512))
    A("s_waitcnt vmcnt(0) lgkmcnt(0)")
    A("s_barrier")
    OB = 0
    A("s_mul_i32 s%d, s%d, %d" % (S_T0, S_R, 2 * 9 * 512)); A("s_add_u32 s%d, s%d, %d" % (S_T0, S_T0, PQ))
    A("v_lshl_add_u32 v%d, v%d, 3, s%d" % (vPR, vL, S_T0))
    for u in range(2):
        for b in range(9):
            A("ds_read_b64 v[%d:%d], v%d offset:%d" % (OB + 20*u + 2*b, OB + 20*u + 2*b + 1, vPR, u * 9 * 512 + b * 512))
    stamp(A)
    vCR = [40, 41]
    A("v_lshrrev_b32 v%d, 4, v%d" % (vT1, vL)); A("v_lshlrev_b32 v%d, 2, v%d" % (vT1, vT1))
    A("v_lshrrev_b32 v%d, 2, v%d" % (vT2, vL)); A("v_and_b32 v%d, 3, v%d" % (vT2, vT2))
    A("v_add_u32 v%d, v%d, v%d" % (vT1, vT1, vT2))
    A("v_mul_u32_u24 v%d, 288, v%d" % (vT1, vT1))
    A("v_and_b32 v%d, 3, v%d" % (vT2, vL))
    A("v_lshl_add_u32 v%d, v%d, 3, v%d" % (vT1, vT2, vT1))
    A("s_lshl_b32 s%d, s%d, 7" % (S_T0, S_C))
    A("v_add_u32 v%d, s%d, v%d" % (vCR[0], S_T0, vT1))
    A("v_add_u32 v%d, %d, v%d" % (vCR[1], CH, vCR[0]))
    vSO = 42
    A("v_and_b32 v%d, 15, v%d" % (vT1, vL))
    A("v_lshrrev_b32 v%d, 5, v%d" % (vT2, vL)); A("v_lshl_add_u32 v%d, v%d, 4, v%d" % (vT1, vT2, vT1))
    A("v_lshrrev_b32 v%d, 4, v%d" % (vT2, vL)); A("v_and_b32 v%d, 1, v%d" % (vT2, vT2)); A("v_lshl_add_u32 v%d, v%d, 5, v%d" % (vT1, vT2, vT1))
    A("s_mul_i32 s%d, s%d, %d" % (S_T0, S_R, 18 * 2048))
    A("v_lshl_add_u32 v%d, v%d, 4, s%d" % (vSO, vT1, S_T0))
    A("s_lshl_b32 s%d, s%d, 2" % (S_B, S_C))
    WF5 = 48
    AC5 = 96
    PK5 = 120
    A("s_waitcnt lgkmcnt(0)"); A.lg.all(); A.vm.all()
    def tread(ch, tau):
        st = (ch * 5 + tau) & 1
        f = WF5 + 18 * st
        base = vCR[ch & 1]
        for pb in range(4):
            A("ds_read_b64_tr_b16 v[%d:%d], v%d offset:%d" % (f + 4*pb, f + 4*pb + 1, base, (32 * pb) * 288 + 32 * tau))
            A("ds_read_b64_tr_b16 v[%d:%d], v%d offset:%d" % (f + 4*pb + 2, f + 4*pb + 3, base, (32 * pb + 16) * 288 + 32 * tau))
        A("ds_read_b64_tr_b16 v[%d:%d], v%d offset:%d" % (f + 16, f + 17, base, 128 * 288 + 32 * tau))
        for q in range(9): A.lg.issue(("t", ch, tau, q))
    def tstore(ch, tau):
        st = (ch * 5 + tau) & 1
        ac = AC5 + 8 * st; pk = PK5 + 4 * st
        A("v_cvt_pk_bf16_f32 v%d, v%d, v%d" % (pk, ac, ac + 1)); A("v_cvt_pk_bf16_f32 v%d, v%d, v%d" % (pk + 1, ac + 2, ac + 3))
        A("v_cvt_pk_bf16_f32 v%d, v%d, v%d" % (pk + 2, ac + 4, ac + 5)); A("v_cvt_pk_bf16_f32 v%d, v%d, v%d" % (pk + 3, ac + 6, ac + 7))
        A("s_add_u32 s%d, s%d, %d" % (S_T2, S_B, 9 * ch + tau)); A("s_lshl_b32 s%d, s%d, 10" % (S_T2, S_T2))
        A("v_permlane32_swap_b32 v%d, v%d" % (pk, pk + 2)); A("v_permlane32_swap_b32 v%d, v%d" % (pk + 1, pk + 3))
        A("s_nop 0")
        A("buffer_store_dwordx4 v[%d:%d], v%d, s[%d:%d], s%d offen" % (pk, pk + 3, vSO, SRD_P, SRD_P + 3, S_T2))
        A.vm.issue(("st", ch, tau))
    items = [(ch, tau) for ch in range(4) for tau in range(5)]
    tread(0, 0)
    for idx, (ch, tau) in enumerate(items):
        st = idx & 1
        f = WF5 + 18 * st; ac = AC5 + 8 * st
        nxt = items[idx + 1] if idx + 1 < len(items) else None
        if nxt and nxt[0] != ch:
            A.wait(vm=[("c", nxt[0], 5)] if nxt[0] >= 2 else None, lg=[("t", ch, tau, 8)])
            A("s_barrier")
        if nxt: tread(*nxt)
        A.wait(lg=[("t", ch, tau, 8)])
        for u in range(2):
            for pb in range(4):
                cs = "0" if pb == 0 else "v[%d:%d]" % (ac + 4*u, ac + 4*u + 3)
                A("v_mfma_f32_16x16x32_bf16 v[%d:%d], v[%d:%d], v[%d:%d], %s" % (ac + 4*u, ac + 4*u + 3, f + 4*pb, f + 4*pb + 3, OB + 20*u + 4*pb, OB + 20*u + 4*pb + 3, cs))
        A("s_nop 3")
        for u in range(2):
            A("v_mfma_f32_16x16x16_bf16 v[%d:%d], v[%d:%d], v[%d:%d], v[%d:%d]" % (ac + 4*u, ac + 4*u + 3, f + 16, f + 17, OB + 20*u + 16, OB + 20*u + 17, ac + 4*u, ac + 4*u + 3))
        if idx >= 1: tstore(*items[idx - 1])
        if tau == 0 and ch >= 1 and ch + 1 < 4:
            cdma(ch + 1)
    A("s_nop 7"); A("s_nop 1")
    tstore(*items[-1])
    stamp(A)
    stamp_flush(A)
    dbgt_end(A, 10)
    A("s_endpgm")

def k1_kernel(nmlp=12, with_att=False):
    A = K()
    A("s_cmp_ge_u32 s2, 256")
    A("s_cbranch_scc1 L_k1_end")
    A("s_load_dwordx16 s[4:19], s[0:1], 0")
    A("s_load_dwordx2 s[20:21], s[0:1], 64")
    if STAMPS or DBGT: A("s_memrealtime s[92:93]")
    A("v_lshrrev_b32 v1, 6, v0")
    A("s_nop 0")
    A("v_readfirstlane_b32 s%d, v1" % S_WAVE)
    A("s_mov_b32 s%d, 0x3f803f80" % S_ONES)
    A("s_mov_b32 s%d, 0x%x" % (S_L2E, LOG2E))
    A("s_and_b32 s%d, s%d, 3" % (S_R, S_WAVE))
    A("s_lshr_b32 s%d, s%d, 2" % (S_C, S_WAVE))
    A("s_and_b32 s%d, s2, 7" % S_T0)
    A("s_lshr_b32 s%d, s2, 3" % S_T1)
    A("s_lshr_b32 s%d, s%d, 1" % (S_T2, S_T0))
    A("s_and_b32 s%d, s%d, 1" % (S_T0, S_T0))
    A("s_lshl_b32 s%d, s%d, 3" % (S_T0, S_T0))
    A("s_and_b32 s%d, s%d, 7" % (S_TILE, S_T1))
    A("s_add_u32 s%d, s%d, s%d" % (S_TILE, S_TILE, S_T0))
    A("s_lshr_b32 s%d, s%d, 3" % (S_T1, S_T1))
    A("s_mul_i32 s%d, s%d, 3" % (S_T3, S_T2))
    A("s_add_u32 s%d, s%d, s%d" % (S_ROLE, S_T3, S_T1))
    A("s_waitcnt lgkmcnt(0)")
    srd(A, SRD_X, S_X, S_X + 1, S * D * 2)
    A("s_cmp_lt_u32 s%d, 3" % S_T1)
    A("s_cbranch_scc1 L_mlp")
    A("s_mov_b32 s%d, s%d" % (S_ROLE, S_T2))
    if with_att:
        A("s_branch L_att")
    A.label("L_k1_end")
    A("s_endpgm")
    A.label("L_mlp")
    mlp_role(A)
    if with_att:
        A.label("L_att")
        att_role(A)
    return A

def k3_kernel(parts):
    A = K()
    A("s_cmp_ge_u32 s2, 1152")
    A("s_cbranch_scc1 L_k3_end")
    if DBGT: A("s_memrealtime s[40:41]")
    A("s_load_dwordx2 s[4:5], s[0:1], 0")
    A("s_load_dwordx2 s[6:7], s[0:1], 48")
    A("s_load_dwordx2 s[8:9], s[0:1], 64")
    A("v_and_b32 v1, 63, v0")
    A("v_lshrrev_b32 v2, 6, v0")
    A("s_lshl_b32 s3, s2, 11")
    A("v_lshlrev_b32 v3, 4, v0")
    A("v_add_u32 v3, s3, v3")
    A("s_mul_hi_u32 s10, s2, 0x%x" % ((2**32 + 17) // 18))
    A("s_mul_i32 s11, s10, 18")
    A("s_sub_u32 s11, s2, s11")
    A("v_and_b32 v4, 31, v1")
    A("s_lshl_b32 s12, s10, 5")
    A("v_add_u32 v4, s12, v4")
    A("s_movk_i32 s13, 1152")
    A("v_mul_lo_u32 v4, v4, s13")
    A("v_lshrrev_b32 v5, 5, v1")
    A("v_lshl_add_u32 v5, v2, 1, v5")
    A("v_lshlrev_b32 v5, 4, v5")
    A("s_lshl_b32 s12, s11, 6")
    A("v_add_u32 v4, v4, v5")
    A("v_add_u32 v4, s12, v4")
    A("s_waitcnt lgkmcnt(0)")
    srd(A, 16, 4, 5, S * D * 2)
    srd(A, 20, 6, 7, S * D * 2)
    srd(A, 24, 8, 9, NPART * PART_BYTES)
    A("buffer_load_dwordx4 v[8:11], v4, s[16:19], 0 offen")
    for n, p in enumerate(parts):
        A("s_mov_b32 s14, %d" % (p * PART_BYTES))
        A("buffer_load_dwordx4 v[%d:%d], v3, s[24:27], s14 offen" % (32 + 4*n, 35 + 4*n))
    A("s_mov_b32 s28, 0x00003f80")
    A("s_mov_b32 s29, 0x3f800000")
    for q in range(8): A("v_mov_b32 v%d, 0" % (16 + q))
    npart = len(parts)
    for n in range(npart):
        A("s_waitcnt vmcnt(%d)" % (npart - 1 - n))
        for q in range(4):
            A("v_dot2_f32_bf16 v%d, v%d, s28, v%d" % (16 + 2*q, 32 + 4*n + q, 16 + 2*q))
            A("v_dot2_f32_bf16 v%d, v%d, s29, v%d" % (17 + 2*q, 32 + 4*n + q, 17 + 2*q))
    A("s_nop 2")
    for q in range(4):
        A("v_permlane32_swap_b32 v%d, v%d" % (16 + q, 20 + q))
    A("s_nop 1")
    for q in range(4):
        A("v_lshlrev_b32 v24, 16, v%d" % (8 + q))
        A("v_and_b32 v25, 0xffff0000, v%d" % (8 + q))
        A("v_add_f32 v%d, v%d, v24" % (16 + 2*q, 16 + 2*q))
        A("v_add_f32 v%d, v%d, v25" % (17 + 2*q, 17 + 2*q))
    for q in range(4):
        A("v_cvt_pk_bf16_f32 v%d, v%d, v%d" % (8 + q, 16 + 2*q, 17 + 2*q))
    A("buffer_store_dwordx4 v[8:11], v4, s[20:23], 0 offen")
    if DBGT:
        A("s_memrealtime s[42:43]")
        A("s_load_dwordx2 s[44:45], s[0:1], 56")
        A("s_waitcnt lgkmcnt(0)")
        A("s_mov_b32 s48, s44"); A("s_and_b32 s49, s45, 0xffff"); A("s_mov_b32 s50, 256"); A("s_mov_b32 s51, 0x20000")
        A("s_cmp_lg_u32 s2, 0")
        A("s_cbranch_scc1 L_k3_end")
        A("s_add_u32 s52, s8, %d" % WS_STAMP); A("s_addc_u32 s53, s9, 0"); A("s_and_b32 s53, s53, 0xffff"); A("s_mov_b32 s54, 4096"); A("s_mov_b32 s55, 0x20000")
        A("v_and_b32 v1, 63, v0")
        A("v_lshlrev_b32 v2, 5, v1")
        A("buffer_load_dwordx4 v[12:15], v2, s[52:55], 0 offen")
        A("buffer_load_dwordx4 v[16:19], v2, s[52:55], 0 offen offset:16")
        A("s_waitcnt vmcnt(0)")
        A("v_min_u32 v12, v12, v14"); A("v_min_u32 v16, v16, v18"); A("v_min_u32 v12, v12, v16")
        A("v_max_u32 v13, v13, v15"); A("v_max_u32 v17, v17, v19"); A("v_max_u32 v13, v13, v17")
        A("v_not_b32 v12, v12")
        A("v_mov_b32 v20, 0"); A("v_mov_b32 v21, 4")
        A("buffer_atomic_umax v12, v20, s[48:51], 0 offen")
        A("buffer_atomic_umax v13, v21, s[48:51], 0 offen")
        A("v_mov_b32 v22, s40"); A("v_mov_b32 v23, 8")
        A("buffer_store_dword v22, v23, s[48:51], 0 offen")
        A("v_mov_b32 v22, s42"); A("v_mov_b32 v23, 12")
        A("buffer_store_dword v22, v23, s[48:51], 0 offen")
    A.label("L_k3_end")
    A("s_endpgm")
    return A

HDR = """; Kernarg layout for this problem (72 bytes, ptrs only, base s[0:1]):
"""

def build_all(path, with_att=False):
    k1 = k1_kernel(with_att=with_att)
    parts = list(range(16)) if with_att else list(range(12))
    k3 = k3_kernel(parts)
    n1, n3 = "fused_main_kernel", "reduce_kernel"
    t1, r1 = kernel_wrap(n1, k1.text(), 256, 96)
    t3, r3 = kernel_wrap(n3, k3.text(), 32 + 4 * len(parts), 64)
    hdr = HDR + "; @launch kernel=%s grid=(256,1,1) block=(512,1,1) lds=163840\n" % n1
    hdr += "; @launch kernel=%s grid=(1152,1,1) block=(128,1,1) lds=0\n" % n3
    txt = hdr + '.amdgcn_target "amdgcn-amd-amdhsa--gfx950"\n' + t1 + t3 + r1 + r3
    open(path, "w").write(txt)
    return txt

if __name__ == "__main__":
    out = sys.argv[1] if len(sys.argv) > 1 else "k.s"
    if "stamps" in sys.argv: STAMPS = True
    if "repeat" in sys.argv: REPEAT = True
    if "dbgt" in sys.argv: DBGT = True
    for a in sys.argv:
        if a.startswith("exp="): EXP = a[4:]
    if "pro" in sys.argv: PRO = True; STAMP_STEPS = (1,)
    for a in sys.argv:
        if a.startswith("steps="): STAMP_STEPS = tuple(int(x) for x in a[6:].split(","))
    build_all(out, with_att=('noatt' not in sys.argv))
    build(out)
    print("built", out)
```

```python
from g2_common import *

KV_GROUP_BYTES = 36 * 1024

def att_role(A, c):
    A.reset()
    L = lambda s: "%s_c%d" % (s, c)
    def xf(u, kk): return 4 * (18 * u + kk)
    ACC = 144
    WR = 216; NF = 5
    vTR = 236
    vDM = 244
    vL, vT0, vT1, vT2, vT3 = 247, 248, 249, 250, 251
    vRSl = 252
    vDX = 252
    vPZ, vPA = 254, 255
    XS = 65536
    USZ = 24576; PSZ = 12288
    EX = 73728
    PQ = 98304
    KVF = PQ + 36864
    ZF = KVF + 13824
    STB = ZF + 13824
    assert STB + 1024 == 163840
    CH = 55296
    S_MB = S_E0
    A.comment("---- ATT role, wave group %d ----" % c)
    stamp(A)
    A("v_and_b32 v%d, 63, v0" % vL)
    A("v_mov_b32 v%d, v0" % ACC)
    x_unit_setup(A, vL, vDX, vT0, vT1, vT2, vT3, XS)
    for kb in range(6): x_unit_dma(A, kb, vDX, 6)
    srd(A, SRD_A, S_WQKV, S_WQKV + 1, D * 3 * D * 2)
    A("s_mul_i32 s%d, s%d, %d" % (S_T0, S_ROLE, 144 * 1152))
    srd_off(A, SRD_B, S_WO, S_WO + 1, S_T0, D * D * 2)
    def piece_pattern(q, emit_row):
        A("v_add_u32 v%d, %d, v%d" % (vT0, 64 * q, vL))
        A("v_mul_u32_u24 v%d, 2731, v%d" % (vT1, vT0))
        A("v_lshrrev_b32 v%d, 16, v%d" % (vT1, vT1))
        A("v_mul_u32_u24 v%d, 24, v%d" % (vT2, vT1))
        A("v_sub_u32 v%d, v%d, v%d" % (vT2, vT0, vT2))
        emit_row()
    A("s_lshr_b32 s%d, s%d, 1" % (S_T0, S_R)); A("s_lshl_b32 s%d, s%d, 4" % (S_T0, S_T0))
    A("s_and_b32 s%d, s%d, 1" % (S_T1, S_R)); A("s_lshl_b32 s%d, s%d, 2" % (S_T1, S_T1))
    A("s_add_u32 s%d, s%d, s%d" % (S_T0, S_T0, S_T1))
    A("s_lshl_b32 s%d, s%d, 8" % (S_T1, S_ROLE))
    for q in range(3):
        def row(q=q):
            A("v_and_b32 v%d, 6, v%d" % (vT3, vT1))
            A("v_xor_b32 v%d, v%d, v%d" % (vT2, vT2, vT3))
            A("v_lshrrev_b32 v%d, 2, v%d" % (vT3, vT1))
            A("v_lshlrev_b32 v%d, 3, v%d" % (vT3, vT3))
            A("v_and_b32 v%d, 3, v%d" % (vT1, vT1))
            A("v_add_u32 v%d, v%d, v%d" % (vT1, vT1, vT3))
            A("v_add_u32 v%d, s%d, v%d" % (vT1, S_T0, vT1))
            A("v_mul_u32_u24 v%d, 3456, v%d" % (vT1, vT1))
            A("v_lshl_add_u32 v%d, v%d, 4, v%d" % (vT1, vT2, vT1))
            A("v_add_u32 v%d, s%d, v%d" % (vDM + q, S_T1, vT1))
        piece_pattern(q, row)
    A("s_mul_i32 s%d, s%d, 3072" % (S_MB, S_R))
    if c: A("s_add_u32 s%d, s%d, %d" % (S_MB, S_MB, PSZ))
    NUA = 27
    DPOS = [(0, 2, 4), (1, 3, 5)]
    def wdma1(un, q):
        if un >= NUA: return
        slot = un % 4
        if un < 18: so = un * 32 * 3456 + (1 + c) * 1152
        else: so = (un - 18) * 64 * 3456 + c * 32 * 3456
        A("s_add_u32 m0, s%d, %d" % (S_MB, slot * USZ + q * 1024))
        A("s_mov_b32 s%d, %d" % (S_T3, so))
        A("buffer_load_dwordx4 v%d, s[%d:%d], s%d offen lds" % (vDM + q, SRD_A, SRD_A + 3, S_T3))
        A.vm.issue(("wa", un, q))
    def wdma(un):
        for q in range(3): wdma1(un, q)
    A("s_add_u32 s%d, s%d, 12" % (S_T0, S_ROLE))
    A("s_mul_i32 s%d, s%d, %d" % (S_T0, S_T0, PART_BYTES))
    A("s_mul_i32 s%d, s%d, %d" % (S_T1, S_TILE, 4 * 18 * 2048))
    A("s_add_u32 s%d, s%d, s%d" % (S_T0, S_T0, S_T1))
    srd_off(A, SRD_P, S_WS, S_WS + 1, S_T0, NPART * PART_BYTES)
    A("s_mul_i32 s%d, s%d, %d" % (S_T0, S_ROLE, KV_GROUP_BYTES))
    A("s_add_u32 s%d, s%d, %d" % (S_T0, S_T0, WS_KV))
    A("s_add_u32 s%d, s%d, s%d" % (SRD_KV, S_WS, S_T0)); A("s_addc_u32 s%d, s%d, 0" % (SRD_KV + 1, S_WS + 1))
    A("s_and_b32 s%d, s%d, 0xffff" % (SRD_KV + 1, SRD_KV + 1)); A("s_mov_b32 s%d, %d" % (SRD_KV + 2, KV_GROUP_BYTES)); A("s_mov_b32 s%d, 0x20000" % (SRD_KV + 3))
    srd(A, SRD_D, S_DBG, S_DBG + 1, 256)
    A("s_cmp_lg_u32 s%d, 0" % S_TILE)
    A("s_cbranch_scc1 %s" % L("L_att_nozero"))
    for q in range(4): A("v_mov_b32 v%d, 0" % (ACC + 4 + q))
    A("v_lshlrev_b32 v%d, 4, v%d" % (ACC + 1, ACC))
    for q in range(5):
        A("s_mov_b32 s%d, %d" % (S_T3, q * 8192))
        A("buffer_store_dwordx4 v[%d:%d], v%d, s[%d:%d], s%d offen sc0 sc1" % (ACC + 4, ACC + 7, ACC + 1, SRD_KV, SRD_KV + 3, S_T3))
    A("s_waitcnt vmcnt(0)")
    A("s_barrier")
    A("v_mov_b32 v%d, 1" % (ACC + 2))
    A("s_lshl_b32 s%d, s%d, 2" % (S_T0, S_ROLE)); A("s_add_u32 s%d, s%d, 64" % (S_T0, S_T0))
    A("v_mov_b32 v%d, 0x7fffff00" % (ACC + 3)); A("v_mov_b32 v%d, s%d" % (ACC + 4, S_T0))
    A("v_cmp_eq_u32 vcc, 0, v%d" % ACC)
    A("s_nop 1")
    A("v_cndmask_b32 v%d, v%d, v%d, vcc" % (ACC + 3, ACC + 3, ACC + 4))
    A("buffer_atomic_add v%d, v%d, s[%d:%d], 0 offen sc1" % (ACC + 2, ACC + 3, SRD_D, SRD_D + 3))
    A("s_waitcnt vmcnt(0)")
    A.label(L("L_att_nozero"))
    A("v_lshrrev_b32 v%d, 4, v%d" % (vT0, vL))
    A("v_lshrrev_b32 v%d, 1, v%d" % (vT1, vT0)); A("v_lshlrev_b32 v%d, 4, v%d" % (vT1, vT1))
    A("v_and_b32 v%d, 1, v%d" % (vT2, vT0)); A("v_lshlrev_b32 v%d, 2, v%d" % (vT2, vT2))
    A("v_add_u32 v%d, v%d, v%d" % (vT1, vT1, vT2))
    A("v_lshrrev_b32 v%d, 2, v%d" % (vT2, vL)); A("v_and_b32 v%d, 3, v%d" % (vT2, vT2))
    A("v_add_u32 v%d, v%d, v%d" % (vT1, vT1, vT2))
    A("v_and_b32 v%d, 6, v%d" % (vT3, vT1))
    A("v_mul_u32_u24 v%d, 384, v%d" % (vT1, vT1))
    A("v_and_b32 v%d, 3, v%d" % (vT2, vL))
    A("v_lshl_add_u32 v%d, v%d, 3, v%d" % (vT1, vT2, vT1))
    for j in range(4):
        A("s_lshl_b32 s%d, s%d, 1" % (S_T0, S_ROLE)); A("s_add_u32 s%d, s%d, %d" % (S_T0, S_T0, 2 * j))
        A("s_and_b32 s%d, s%d, 7" % (S_T1, S_T0)); A("s_lshr_b32 s%d, s%d, 3" % (S_T0, S_T0)); A("s_lshl_b32 s%d, s%d, 7" % (S_T0, S_T0))
        A("v_xor_b32 v%d, s%d, v%d" % (vT2, S_T1, vT3))
        A("v_lshl_add_u32 v%d, v%d, 4, v%d" % (vT2, vT2, vT1))
        A("v_add_u32 v%d, s%d, v%d" % (vTR + j, S_T0, vT2))
        A("v_add_u32 v%d, %d, v%d" % (vTR + 4 + j, 2 * USZ, vTR + j))
    vXR = ACC + 8
    A("v_and_b32 v%d, 15, v%d" % (vT1, vL))
    A("v_lshrrev_b32 v%d, 1, v%d" % (vT2, vT1))
    A("v_xor_b32 v%d, v%d, v%d" % (vT2, vT2, vT0))
    A("v_lshlrev_b32 v%d, 4, v%d" % (vT2, vT2))
    A("s_lshl_b32 s%d, s%d, 5" % (S_T0, S_R))
    A("v_add_u32 v%d, s%d, v%d" % (vT3, S_T0, vT1))
    A("v_lshl_add_u32 v%d, v%d, 7, v%d" % (vT2, vT3, vT2))
    A("v_add_u32 v%d, %d, v%d" % (vXR, XS, vT2))
    A("v_xor_b32 v%d, 64, v%d" % (vXR + 1, vXR))
    A("v_add_u32 v%d, 0x10000, v%d" % (vXR + 2, vXR)); A("v_add_u32 v%d, 0x10000, v%d" % (vXR + 3, vXR + 1))
    vSL = ACC + 12
    A("v_lshlrev_b32 v%d, 2, v%d" % (vSL, vT3)); A("v_add_u32 v%d, %d, v%d" % (vSL, STB, vSL))
    vS = ACC + 16
    for q in range(4): A("v_mov_b32 v%d, 0" % (vS + q))
    def xread(kb, e, u):
        slot = kb % 6; kk = 2 * kb + e
        if slot < 4: A("ds_read_b128 v[%d:%d], v%d offset:%d" % (xf(u, kk), xf(u, kk) + 3, vXR + e, slot * 16384 + u * 2048))
        else: A("ds_read_b128 v[%d:%d], v%d offset:%d" % (xf(u, kk), xf(u, kk) + 3, vXR + 2 + e, (slot - 4) * 16384 + u * 2048))
        A.lg.issue(("xf", u, kk))
    def stats(u, kk):
        for e in range(4):
            rg = xf(u, kk) + e
            A("v_dot2_f32_bf16 v%d, v%d, s%d, v%d" % (vS + (e & 1), rg, S_ONES, vS + (e & 1)))
            A("v_dot2_f32_bf16 v%d, v%d, v%d, v%d" % (vS + 2 + (e & 1), rg, rg, vS + 2 + (e & 1)))
    stamp(A)
    for g in range(3):
        A.wait(vm=[("x", 3 * g + 2, 1)])
        A("s_barrier")
        if g == 1:
            for kb in range(6, 9): x_unit_dma(A, kb, vDX, 6)
            wdma(0)
        own = [(kb, e) for kb in range(3 * g, 3 * g + 3) for e in range(2)]
        for kb, e in own: xread(kb, e, c)
        for kb, e in own: xread(kb, e, 1 - c)
        for kb, e in own:
            A.wait(lg=[("xf", c, 2 * kb + e)])
            stats(c, 2 * kb + e)
        A.wait(lg=[("xf", 1 - c, 2 * own[-1][0] + 1)])
        if g == 2:
            wdma(1)
            if opt.touch:
                A("s_and_b32 s%d, s%d, 7" % (S_T0, S_TILE)); A("s_lshl_b32 s%d, s%d, 3" % (S_T0, S_T0)); A("s_add_u32 s%d, s%d, s%d" % (S_T0, S_T0, S_WAVE))
                A("s_mul_i32 s%d, s%d, 9" % (S_T1, S_T0))
                A("v_mul_u32_u24 v%d, 21846, v%d" % (vT0, vL)); A("v_lshrrev_b32 v%d, 16, v%d" % (vT0, vT0))
                A("v_mul_u32_u24 v%d, 3, v%d" % (vT1, vT0)); A("v_sub_u32 v%d, v%d, v%d" % (vT1, vL, vT1))
                A("v_add_u32 v%d, s%d, v%d" % (vT0, S_T1, vT0))
                A("v_mul_u32_u24 v%d, 3456, v%d" % (vT0, vT0))
                A("v_lshl_add_u32 v%d, v%d, 7, v%d" % (vT0, vT1, vT0))
                A("s_lshl_b32 s%d, s%d, 8" % (S_T1, S_ROLE))
                A("v_add_u32 v%d, s%d, v%d" % (vT0, S_T1, vT0))
                A("v_mov_b32 v%d, 0x7fffff00" % vT2)
                A("v_cmp_gt_u32 vcc, 27, v%d" % vL)
                A("s_nop 1")
                A("v_cndmask_b32 v%d, v%d, v%d, vcc" % (vT0, vT2, vT0))
                A("buffer_load_dword v%d, v%d, s[%d:%d], 0 offen" % (vPZ, vT0, SRD_A, SRD_A + 3))
                A.vm.issue(("touch", 0))
                A("s_mul_i32 s%d, s%d, %d" % (S_T0, S_T0, 21 * 128))
                A("v_lshl_add_u32 v%d, v%d, 7, s%d" % (vT0, vL, S_T0))
                A("v_cmp_gt_u32 vcc, 21, v%d" % vL)
                A("s_nop 1")
                A("v_cndmask_b32 v%d, v%d, v%d, vcc" % (vT0, vT2, vT0))
                A("buffer_load_dword v%d, v%d, s[%d:%d], 0 offen" % (vPZ, vT0, SRD_B, SRD_B + 3))
                A.vm.issue(("touch", 1))
    A("s_nop 1")
    A("v_add_f32 v%d, v%d, v%d" % (vS, vS, vS + 1)); A("v_add_f32 v%d, v%d, v%d" % (vS + 2, vS + 2, vS + 3))
    xsum16(A, vS, vS + 1); xsum32(A, vS, vS + 1)
    xsum16(A, vS + 2, vS + 3); xsum32(A, vS + 2, vS + 3)
    A("v_mul_f32 v%d, 0x%x, v%d" % (vS, INV576, vS))
    A("v_mul_f32 v%d, 0x%x, v%d" % (vS + 2, INV576, vS + 2))
    A("v_fma_f32 v%d, -v%d, v%d, v%d" % (vS + 2, vS, vS, vS + 2))
    A("v_max_f32 v%d, 0, v%d" % (vS + 2, vS + 2))
    A("v_add_f32 v%d, 0x%x, v%d" % (vS + 2, EPS_LN, vS + 2))
    A("v_sub_f32 v%d, 0, v%d" % (vS, vS))
    A("v_rsq_f32 v%d, v%d" % (vRSl + c, vS + 2))
    A("s_nop 0")
    A("ds_write_b32 v%d, v%d offset:%d" % (vSL, vS, 64 * c))
    A("ds_write_b32 v%d, v%d offset:%d" % (vSL, vRSl + c, 512 + 64 * c))
    A("s_waitcnt lgkmcnt(0)"); A.lg.all()
    A("s_barrier")
    wdma(2)
    A("ds_read_b32 v%d, v%d offset:%d" % (vS + 1, vSL, 64 * (1 - c)))
    A("ds_read_b32 v%d, v%d offset:%d" % (vRSl + 1 - c, vSL, 512 + 64 * (1 - c)))
    stamp(A)
    TC = ACC + 24
    def center(u, nm):
        for n in range(xf(u, 0), xf(u, 0) + 72, 4):
            for e in range(4):
                A("v_dot2_f32_bf16 v%d, v%d, s%d, v%d" % (TC + 2*e, n + e, S_SEL0, nm))
                A("v_dot2_f32_bf16 v%d, v%d, s%d, v%d" % (TC + 2*e + 1, n + e, S_SEL1, nm))
            A("s_nop 0")
            for e in range(4):
                A("v_cvt_pk_bf16_f32 v%d, v%d, v%d" % (n + e, TC + 2*e, TC + 2*e + 1))
    center(c, vS)
    A("s_waitcnt lgkmcnt(0)")
    center(1 - c, vS + 1)
    stamp(A)

    if c == 0: kvt = [(0, t) for t in range(5)] + [(1, t) for t in range(4)]
    else: kvt = [(0, t) for t in range(5, 9)] + [(1, t) for t in range(4, 9)]
    qt = list(range(5)) if c == 0 else list(range(5, 9))
    def addr(un, part, t):
        slot = un % 4
        base = vTR + (t & 3) + (4 if slot >= 2 else 0)
        return base, (slot & 1) * USZ + part * PSZ + 128 * (t >> 2)
    seq = []
    for n in range(18):
        for i, (part, t) in enumerate(kvt): seq.append((n,) + addr(n, part, t) + (1, i, n))
    for n in range(18, 27):
        for ks in range(2):
            for i, t in enumerate(qt): seq.append((n,) + addr(n, ks, t) + (3, i, 2 * (n - 18) + ks))
    def fread(phi):
        if phi >= len(seq): return
        un, base, off = seq[phi][:3]
        f = WR + 4 * (phi % NF)
        for h in range(2):
            A("ds_read_b64_tr_b16 v[%d:%d], v%d offset:%d" % (f + 2*h, f + 2*h + 1, base, off + 3072 * h))
            A.lg.issue(("f", phi, h))
    A.wait(vm=[("wa", 0, 2)])
    A("s_barrier")
    for phi in range(NF): fread(phi)
    def group(phi):
        def fn():
            un, base, off, kind, i, kk = seq[phi]
            f = WR + 4 * (phi % NF)
            if not (opt.exp == "nord" and kind == 1): A.wait(lg=[("f", phi, 1)])
            for u in range(2):
                acc = ACC + 8 * i + 4 * u
                cs = "0" if kk == 0 else "v[%d:%d]" % (acc, acc + 3)
                if kind == 1:
                    A("v_mfma_f32_16x16x32_bf16 v[%d:%d], v[%d:%d], v[%d:%d], %s" % (acc, acc + 3, xf(u, kk), xf(u, kk) + 3, f, f + 3, cs))
                else:
                    A("v_mfma_f32_16x16x32_bf16 v[%d:%d], v[%d:%d], v[%d:%d], %s" % (acc, acc + 3, f, f + 3, xf(u, kk), xf(u, kk) + 3, cs))
            if phi + NF < len(seq) and seq[phi + NF][3] == kind:
                if opt.exp == "nord" and kind == 1:
                    A.lg.issue(("f", phi + NF, 0)); A.lg.issue(("f", phi + NF, 1))
                else: fread(phi + NF)
        return fn
    def run_steps(n_lo, n_hi, xvm={}, xblk={}, skip=()):
        for n in range(n_lo, n_hi):
            A.comment("att step %d" % n)
            nx = n + 1
            need = ([("wa", nx, 2)] if (nx < NUA and nx not in skip) else []) + xvm.get(n, [])
            phis = [p for p in range(len(seq)) if seq[p][0] == n]
            A.wait(vm=need or None)
            if not (opt.exp == "nobar" and n < 18): A("s_barrier")
            pos = {DPOS[c][q]: q for q in range(3)}
            for idx, p in enumerate(phis):
                group(p)()
                if idx in pos and (n + 3) not in skip:
                    if opt.exp == "nodma" and n < 15: A.vm.issue(("wa", n + 3, pos[idx]))
                    else: wdma1(n + 3, pos[idx])
                if idx == 6:
                    for fn in xblk.get(n, []): fn()
    def zpoll_issue():
        A("s_lshl_b32 s%d, s%d, 2" % (S_T0, S_ROLE)); A("s_add_u32 s%d, s%d, 64" % (S_T0, S_T0))
        A("v_mov_b32 v%d, s%d" % (vPA, S_T0))
        A("buffer_load_dword v%d, v%d, s[%d:%d], 0 offen sc1" % (vPZ, vPA, SRD_D, SRD_D + 3))
        A.vm.issue(("zp",))
    def poll_finish(tag, target):
        lab = A.newlabel("L_poll"); ok = A.newlabel("L_pollok")
        A.wait(vm=[tag])
        A("s_mov_b32 s%d, 0" % S_T1)
        A.label(lab)
        A("v_readfirstlane_b32 s%d, v%d" % (S_T0, vPZ))
        A("s_add_u32 s%d, s%d, 1" % (S_T1, S_T1))
        A("s_nop 2")
        A("s_cmp_ge_u32 s%d, %d" % (S_T0, target))
        A("s_cbranch_scc1 %s" % ok)
        A("s_cmp_ge_u32 s%d, 50000" % S_T1)
        A("s_cbranch_scc1 %s" % ok)
        A("s_sleep 2")
        A("buffer_load_dword v%d, v%d, s[%d:%d], 0 offen sc1" % (vPZ, vPA, SRD_D, SRD_D + 3))
        A("s_waitcnt vmcnt(0)")
        A("s_branch %s" % lab)
        A.label(ok)
    if opt.exp == "rep1":
        A("s_mov_b32 s59, 0")
        A.label(L("L_rep1"))
        A.nstamp -= 1; stamp(A)
    run_steps(0, 18, xblk={14: [zpoll_issue]}, skip=(18, 19))
    if opt.exp == "rep1":
        A("s_add_u32 s59, s59, 1"); A("s_cmp_lt_u32 s59, 2"); A("s_cbranch_scc1 %s" % L("L_rep1"))
    stamp(A)
    def phi_vals(regs, temps, rc=None):
        nt = len(temps)
        for i0 in range(0, len(regs), nt):
            grp = list(zip(regs[i0:i0 + nt], temps, rc[i0:i0 + nt]))
            for r_, t_, (sl, s1) in grp: A("v_mul_f32 v%d, v%d, v%d" % (t_, r_, sl))
            for r_, t_, _ in grp: A("v_min_f32 v%d, 0, v%d" % (t_, t_))
            for r_, t_, _ in grp: A("v_exp_f32 v%d, v%d" % (t_, t_))
            for r_, t_, _ in grp: A("v_max_f32 v%d, 0, v%d" % (r_, r_))
            for r_, t_, _ in grp: A("v_add_f32 v%d, 0x%x, v%d" % (t_, C1E6, t_))
            for r_, t_, (sl, s1) in grp: A("v_fma_f32 v%d, v%d, v%d, v%d" % (r_, r_, s1, t_))
    RC = WR; RL = WR + 8
    TP = [WR + 16 + i for i in range(4)] + [vT1, vT2, vT3, vPA]
    A("v_lshrrev_b32 v%d, 4, v%d" % (vT0, vL)); A("v_lshlrev_b32 v%d, 4, v%d" % (vT0, vT0))
    A("s_lshl_b32 s%d, s%d, 7" % (S_T0, S_R)); A("s_add_u32 s%d, s%d, %d" % (S_T0, S_T0, STB + 512))
    A("v_add_u32 v%d, s%d, v%d" % (vT0, S_T0, vT0))
    A("ds_read_b128 v[%d:%d], v%d" % (RC, RC + 3, vT0))
    A("ds_read_b128 v[%d:%d], v%d offset:64" % (RC + 4, RC + 7, vT0))
    poll_finish(("zp",), 1)
    A("s_waitcnt lgkmcnt(0)"); A.lg.all()
    for q in range(8): A("v_mul_f32 v%d, s%d, v%d" % (RL + q, S_L2E, RC + q))
    nk = 5 if c == 0 else 4
    phi_vals(list(range(ACC, ACC + 8 * nk)), TP, [(RL + (i % 8), RC + (i % 8)) for i in range(8 * nk)])
    for i in range(8 * nk, 72): A("v_mul_f32 v%d, v%d, v%d" % (ACC + i, ACC + i, RC + (i % 8)))
    vEW = vT0
    A("s_mul_i32 s%d, s%d, 18432" % (S_T0, S_R)); A("s_add_u32 s%d, s%d, %d" % (S_T0, S_T0, EX))
    A("v_lshl_add_u32 v%d, v%d, 4, s%d" % (vEW, vL, S_T0))
    for i, (part, t) in enumerate(kvt):
        b = ACC + 8 * i
        A("v_cvt_pk_bf16_f32 v%d, v%d, v%d" % (b, b, b + 1)); A("v_cvt_pk_bf16_f32 v%d, v%d, v%d" % (b + 1, b + 2, b + 3))
        A("v_cvt_pk_bf16_f32 v%d, v%d, v%d" % (b + 2, b + 4, b + 5)); A("v_cvt_pk_bf16_f32 v%d, v%d, v%d" % (b + 3, b + 6, b + 7))
        A("ds_write_b128 v%d, v[%d:%d] offset:%d" % (vEW, b, b + 3, (part * 9 + t) * 1024))
    wdma(18)
    A("s_waitcnt lgkmcnt(0)"); A.lg.all()
    A("s_barrier")
    stamp(A)
    FA, FB = ACC, ACC + 16
    HD, HE, ONESF = WR, WR + 4, WR + 8
    KS = [WR + 12, WR + 16, ACC + 64, ACC + 68]
    vER, vAT, vG4, vE16 = vT0, vT1, vT2, vT3
    A("v_lshlrev_b32 v%d, 4, v%d" % (vER, vL)); A("v_add_u32 v%d, %d, v%d" % (vER, EX, vER))
    A("v_lshlrev_b32 v%d, 2, v%d" % (vAT, vL))
    A("v_lshrrev_b32 v%d, 4, v%d" % (vG4, vL)); A("v_lshlrev_b32 v%d, 2, v%d" % (vG4, vG4))
    A("v_and_b32 v%d, 15, v%d" % (vE16, vL))
    for q in range(4): A("v_mov_b32 v%d, s%d" % (ONESF + q, S_ONES))
    vAD = vPZ
    def head_rows():
        A("s_lshl_b32 s%d, s%d, 4" % (S_T0, S_A))
        for rr in range(4):
            A("v_add_u32 v%d, s%d, v%d" % (HD + rr, S_T0, vG4))
            if rr: A("v_add_u32 v%d, %d, v%d" % (HD + rr, rr, HD + rr))
            A("v_mul_u32_u24 v%d, 3641, v%d" % (HD + rr, HD + rr))
            A("v_lshrrev_b32 v%d, 16, v%d" % (HD + rr, HD + rr))
    def read_a():
        A("s_lshl_b32 s%d, s%d, 10" % (S_T0, S_A))
        A("v_add_u32 v%d, s%d, v%d" % (vAD, S_T0, vER))
        for r_ in range(4): A("ds_read_b128 v[%d:%d], v%d offset:%d" % (FA + 4*r_, FA + 4*r_ + 3, vAD, r_ * 18432))
    def read_b(sreg_b, dst):
        A("s_add_u32 s%d, s%d, 9" % (S_T0, sreg_b)); A("s_lshl_b32 s%d, s%d, 10" % (S_T0, S_T0))
        A("v_add_u32 v%d, s%d, v%d" % (vAD + 1, S_T0, vER))
        for r_ in range(4): A("ds_read_b128 v[%d:%d], v%d offset:%d" % (dst + 4*r_, dst + 4*r_ + 3, vAD + 1, r_ * 18432))
    def mm(dst, bsrc):
        for r_ in range(4):
            cs = "0" if r_ == 0 else "v[%d:%d]" % (dst, dst + 3)
            A("v_mfma_f32_16x16x32_bf16 v[%d:%d], v[%d:%d], v[%d:%d], %s" % (dst, dst + 3, FA + 4*r_, FA + 4*r_ + 3, bsrc(r_), bsrc(r_) + 3, cs))
    def mask_add(src, sreg_b, sreg_off, masked, tag):
        if masked:
            A("s_lshl_b32 s%d, s%d, 4" % (S_T0, sreg_b))
            A("v_add_u32 v%d, s%d, v%d" % (HE, S_T0, vE16))
            A("v_mul_u32_u24 v%d, 3641, v%d" % (HE, HE))
            A("v_lshrrev_b32 v%d, 16, v%d" % (HE, HE))
            for rr in range(4):
                A("v_cmp_eq_u32 vcc, v%d, v%d" % (HD + rr, HE))
                A("s_nop 1")
                A("v_cndmask_b32 v%d, 0, v%d, vcc" % (src + rr, src + rr))
        for rr in range(4):
            A("buffer_atomic_add_f32 v%d, v%d, s[%d:%d], s%d offen offset:%d" % (src + rr, vAT, SRD_KV, SRD_KV + 3, sreg_off, rr * 256))
            A.vm.issue(("at", tag, rr))
    SB = [S_B, S_E3, 59]
    SO = [93, 94, 95]
    A("s_mov_b32 s%d, s%d" % (S_A, S_WAVE))
    read_a()
    for j, db in enumerate((-1, 0, 1)):
        A("s_add_i32 s%d, s%d, %d" % (S_T2, S_A, db))
        A("s_max_i32 s%d, s%d, 0" % (SB[j], S_T2))
        A("s_mul_i32 s%d, s%d, 3" % (SO[j], S_A)); A("s_add_u32 s%d, s%d, %d" % (SO[j], SO[j], j))
        A("s_cmp_eq_u32 s%d, s%d" % (SB[j], S_T2))
        A("s_cselect_b32 s%d, s%d, 0x1fffff" % (SO[j], SO[j]))
        A("s_lshl_b32 s%d, s%d, 10" % (SO[j], SO[j]))
        read_b(SB[j], FB + 16 * j)
    head_rows()
    A("s_waitcnt lgkmcnt(12)")
    mm(KS[3], lambda r_: ONESF)
    A("s_waitcnt lgkmcnt(0)")
    for j in range(3): mm(KS[j], lambda r_, j=j: FB + 16 * j + 4 * r_)
    A("s_add_u32 s%d, s%d, 27" % (S_T2, S_A)); A("s_lshl_b32 s%d, s%d, 10" % (S_T2, S_T2))
    A("s_nop 4")
    mask_add(KS[3], None, S_T2, False, "z")
    for j in range(3): mask_add(KS[j], SB[j], SO[j], True, j)
    if c == 1:
        A("s_cmp_eq_u32 s%d, 0" % S_R)
        A("s_cbranch_scc1 %s" % L("L_kv8_rd"))
        A("s_mov_b32 s%d, 8" % S_A)
        read_a()
        A("s_add_u32 s%d, s%d, 6" % (SB[0], S_R)); A("s_min_u32 s%d, s%d, 8" % (SB[0], SB[0]))
        read_b(SB[0], FB)
        A("s_waitcnt lgkmcnt(0)")
        A.label(L("L_kv8_rd"))
    A("s_barrier")
    wdma(19)
    if c == 1:
        A("s_cmp_eq_u32 s%d, 0" % S_R)
        A("s_cbranch_scc1 %s" % L("L_kv8_done"))
        head_rows()
        sv = (list(A.vm.ops), A.vm.done)
        A("s_cmp_eq_u32 s%d, 3" % S_R)
        A("s_cbranch_scc1 %s" % L("L_kv8_z"))
        A("s_add_u32 s%d, s%d, 23" % (SO[0], S_R)); A("s_lshl_b32 s%d, s%d, 10" % (SO[0], SO[0]))
        mm(KS[0], lambda r_: FB + 4 * r_)
        A("s_nop 7"); A("s_nop 1")
        mask_add(KS[0], SB[0], SO[0], True, "x")
        A("s_branch %s" % L("L_kv8_drain"))
        A.label(L("L_kv8_z"))
        mm(KS[0], lambda r_: ONESF)
        A("s_mov_b32 s%d, %d" % (SO[0], 35 << 10))
        A("s_nop 7"); A("s_nop 1")
        mask_add(KS[0], None, SO[0], False, "y")
        A.label(L("L_kv8_drain"))
        A("s_waitcnt vmcnt(0)")
        A.vm.ops, A.vm.done = sv
        A.label(L("L_kv8_done"))
    A.lg.all()
    stamp(A)
    first_q = [p for p in range(len(seq)) if seq[p][3] == 3][0]
    A.wait(vm=[("wa", 18, 2)])
    A("s_barrier")
    for phi in range(first_q, first_q + NF): fread(phi)
    def signal_kv():
        A("s_lshl_b32 s%d, s%d, 2" % (S_T0, S_ROLE)); A("s_add_u32 s%d, s%d, 80" % (S_T0, S_T0))
        A("v_mov_b32 v%d, 0x7fffff00" % vT0); A("v_mov_b32 v%d, s%d" % (vPA, S_T0))
        A("s_lshl_b32 s%d, s%d, 6" % (S_T1, S_WAVE))
        A("v_add_u32 v%d, s%d, v%d" % (vT2, S_T1, vL))
        A("v_cmp_eq_u32 vcc, 0, v%d" % vT2)
        A("v_mov_b32 v%d, 1" % vT3)
        A("s_nop 0")
        A("v_cndmask_b32 v%d, v%d, v%d, vcc" % (vT0, vT0, vPA))
        A("buffer_atomic_add v%d, v%d, s[%d:%d], 0 offen sc1" % (vT3, vT0, SRD_D, SRD_D + 3))
        A.vm.issue(("sig",))
    def kpoll_issue():
        A("buffer_load_dword v%d, v%d, s[%d:%d], 0 offen sc1" % (vPZ, vPA, SRD_D, SRD_D + 3))
        A.vm.issue(("kp",))
    run_steps(18, 27, xvm={20: [("at", 2, 3)]}, xblk={20: [signal_kv], 25: [kpoll_issue]})
    stamp(A)
    A("s_and_b32 s%d, s%d, 3" % (S_T1, S_WAVE))
    A("s_mul_i32 s%d, s%d, 18" % (S_T0, S_WAVE))
    for q in range(3):
        def row(q=q):
            A("v_lshrrev_b32 v%d, 1, v%d" % (vT3, vT1))
            A("v_add_u32 v%d, s%d, v%d" % (vT3, S_T1, vT3))
            A("v_and_b32 v%d, 3, v%d" % (vT3, vT3)); A("v_lshlrev_b32 v%d, 1, v%d" % (vT3, vT3))
            A("v_xor_b32 v%d, v%d, v%d" % (vT2, vT2, vT3))
            A("v_add_u32 v%d, s%d, v%d" % (vT1, S_T0, vT1))
            A("v_mul_u32_u24 v%d, 1152, v%d" % (vT1, vT1))
            A("v_lshl_add_u32 v%d, v%d, 4, v%d" % (vDM + q, vT2, vT1))
        piece_pattern(q, row)
    A("s_mul_i32 s%d, s%d, %d" % (S_MB, S_WAVE, 18 * 384))
    def cdma1(ch, q):
        last = (q == 6)
        if last: A("s_mov_b32 exec_hi, 0xffff")
        A("s_add_u32 m0, s%d, %d" % (S_MB, (ch & 1) * CH + q * 1024))
        A("s_mov_b32 s%d, %d" % (S_T3, (q // 3) * 8 * 1152 + ch * 384))
        A("buffer_load_dwordx4 v%d, s[%d:%d], s%d offen lds" % (vDM + q % 3, SRD_B, SRD_B + 3, S_T3))
        if last: A("s_mov_b32 exec_hi, -1")
        A.vm.issue(("c", ch, q))
    A("s_waitcnt lgkmcnt(0)"); A.lg.all()
    A("s_barrier")
    poll_finish(("kp",), 16)
    KL, ZL = WR, WR + 12
    KL8, ZL8 = 200, 212
    def kv_loads(sreg_a, kl, zl):
        A("s_mul_i32 s%d, s%d, 3072" % (S_T2, sreg_a))
        for j in range(3):
            for rr in range(4):
                A("buffer_load_dword v%d, v%d, s[%d:%d], s%d offen offset:%d sc1" % (kl + 4*j + rr, vT0, SRD_KV, SRD_KV + 3, S_T2, j * 1024 + rr * 256))
        A("s_add_u32 s%d, s%d, 27" % (S_T2, sreg_a)); A("s_lshl_b32 s%d, s%d, 10" % (S_T2, S_T2))
        for rr in range(4):
            A("buffer_load_dword v%d, v%d, s[%d:%d], s%d offen offset:%d sc1" % (zl + rr, vT0, SRD_KV, SRD_KV + 3, S_T2, rr * 256))
    A("v_lshlrev_b32 v%d, 2, v%d" % (vT0, vL))
    kv_loads(S_WAVE, KL, ZL)
    if c == 0:
        A("s_cmp_lg_u32 s%d, 0" % S_R)
        A("s_cbranch_scc1 %s" % L("L_kvl8"))
        A("s_mov_b32 s%d, 8" % S_A)
        kv_loads(S_A, KL8, ZL8)
        A.label(L("L_kvl8"))
    nq = len(qt)
    RLQ = ACC + 40
    for u in range(2): A("v_mul_f32 v%d, s%d, v%d" % (RLQ + u, S_L2E, vRSl + u))
    TP3 = [ACC + 42 + i for i in range(8)]
    vPQ = vT1
    A("s_mul_i32 s%d, s%d, %d" % (S_T0, S_R, 2 * 9 * 512)); A("s_add_u32 s%d, s%d, %d" % (S_T0, S_T0, PQ))
    A("v_lshl_add_u32 v%d, v%d, 3, s%d" % (vPQ, vL, S_T0))
    cq = list(range(7))
    for i, t in enumerate(qt):
        regs = list(range(ACC + 8 * i, ACC + 8 * i + 8))
        phi_vals(regs, TP3, [(RLQ + (k // 4), vRSl + (k // 4)) for k in range(8)])
        for u in range(2):
            b = ACC + 8 * i + 4 * u
            A("v_cvt_pk_bf16_f32 v%d, v%d, v%d" % (b, b, b + 1)); A("v_cvt_pk_bf16_f32 v%d, v%d, v%d" % (b + 1, b + 2, b + 3))
            A("ds_write_b64 v%d, v[%d:%d] offset:%d" % (vPQ, b, b + 1, u * 9 * 512 + t * 512))
        for _ in range(2):
            if cq: cdma1(0, cq.pop(0))
    while cq: cdma1(0, cq.pop(0))
    stamp(A)
    HD, HE, ZT, PKT, vFW = 24, 28, 32, 36, 30
    vG4, vE16 = vT2, vT3
    A("v_lshrrev_b32 v%d, 4, v%d" % (vG4, vL)); A("v_lshlrev_b32 v%d, 2, v%d" % (vG4, vG4))
    A("v_and_b32 v%d, 15, v%d" % (vE16, vL))
    def kvf(sreg_a, kl, zl):
        A("s_lshl_b32 s%d, s%d, 4" % (S_T0, sreg_a))
        for rr in range(4):
            A("v_add_u32 v%d, s%d, v%d" % (HD + rr, S_T0, vG4))
            if rr: A("v_add_u32 v%d, %d, v%d" % (HD + rr, rr, HD + rr))
            A("v_mul_u32_u24 v%d, 3641, v%d" % (HD + rr, HD + rr))
            A("v_lshrrev_b32 v%d, 16, v%d" % (HD + rr, HD + rr))
        A("s_mul_i32 s%d, s%d, %d" % (S_T0, sreg_a, 3 * 512)); A("s_add_u32 s%d, s%d, %d" % (S_T0, S_T0, KVF))
        A("v_lshl_add_u32 v%d, v%d, 3, s%d" % (vFW, vL, S_T0))
        for j in range(3):
            A("s_add_u32 s%d, s%d, %d" % (S_T0, sreg_a, j + 15)); A("s_lshl_b32 s%d, s%d, 4" % (S_T0, S_T0)); A("s_sub_u32 s%d, s%d, 256" % (S_T0, S_T0))
            A("v_add_u32 v%d, s%d, v%d" % (HE, S_T0, vE16))
            A("v_and_b32 v%d, 0xff, v%d" % (HE, HE))
            A("v_mul_u32_u24 v%d, 3641, v%d" % (HE, HE))
            A("v_lshrrev_b32 v%d, 16, v%d" % (HE, HE))
            for rr in range(4):
                A("v_cmp_eq_u32 vcc, v%d, v%d" % (HD + rr, HE))
                A("s_nop 1")
                A("v_cndmask_b32 v%d, 0, v%d, vcc" % (ZT + rr, zl + rr))
            A("v_cvt_pk_bf16_f32 v%d, v%d, v%d" % (PKT, kl + 4*j, kl + 4*j + 1)); A("v_cvt_pk_bf16_f32 v%d, v%d, v%d" % (PKT + 1, kl + 4*j + 2, kl + 4*j + 3))
            A("v_cvt_pk_bf16_f32 v%d, v%d, v%d" % (PKT + 2, ZT, ZT + 1)); A("v_cvt_pk_bf16_f32 v%d, v%d, v%d" % (PKT + 3, ZT + 2, ZT + 3))
            A("ds_write_b64 v%d, v[%d:%d] offset:%d" % (vFW, PKT, PKT + 1, j * 512))
            A("ds_write_b64 v%d, v[%d:%d] offset:%d" % (vFW, PKT + 2, PKT + 3, (ZF - KVF) + j * 512))
            A("s_nop 1")
    A("s_waitcnt vmcnt(7)")
    kvf(S_WAVE, KL, ZL)
    if c == 0:
        A("s_cmp_lg_u32 s%d, 0" % S_R)
        A("s_cbranch_scc1 %s" % L("L_kvf8"))
        kvf(S_A, KL8, ZL8)
        A.label(L("L_kvf8"))
    A("s_waitcnt lgkmcnt(0)"); A.lg.all()
    A("s_barrier")
    PF = 40
    vPR = vT0
    A("s_lshl_b32 s%d, s%d, 1" % (S_T0, S_R)); A("s_add_u32 s%d, s%d, %d" % (S_T0, S_T0, c))
    A("s_mul_i32 s%d, s%d, %d" % (S_T0, S_T0, 9 * 512)); A("s_add_u32 s%d, s%d, %d" % (S_T0, S_T0, PQ))
    A("v_lshl_add_u32 v%d, v%d, 3, s%d" % (vPR, vL, S_T0))
    for t in range(9):
        A("ds_read_b64 v[%d:%d], v%d offset:%d" % (PF + 2*t, PF + 2*t + 1, vPR, t * 512))
    vKR = vT1
    A("v_lshlrev_b32 v%d, 3, v%d" % (vKR, vL)); A("v_add_u32 v%d, %d, v%d" % (vKR, KVF, vKR))
    KF = [60, 72]
    NUM, DEN, OT = 84, 120, 156
    def oread(b):
        st = KF[b & 1]
        al = [a for a in (b - 1, b, b + 1) if 0 <= a <= 8]
        for i_, a in enumerate(al):
            j = b - a + 1
            A("ds_read_b64 v[%d:%d], v%d offset:%d" % (st + 2*i_, st + 2*i_ + 1, vKR, (a * 3 + j) * 512))
            A("ds_read_b64 v[%d:%d], v%d offset:%d" % (st + 6 + 2*i_, st + 6 + 2*i_ + 1, vKR, (ZF - KVF) + (a * 3 + j) * 512))
        return 2 * len(al)
    oread(0)
    for b in range(9):
        st = KF[b & 1]
        al = [a for a in (b - 1, b, b + 1) if 0 <= a <= 8]
        nn = oread(b + 1) if b + 1 < 9 else 0
        A("s_waitcnt lgkmcnt(%d)" % nn)
        for i_, a in enumerate(al):
            cs = "0" if i_ == 0 else "v[%d:%d]" % (NUM + 4*b, NUM + 4*b + 3)
            A("v_mfma_f32_16x16x16_bf16 v[%d:%d], v[%d:%d], v[%d:%d], %s" % (NUM + 4*b, NUM + 4*b + 3, st + 2*i_, st + 2*i_ + 1, PF + 2*a, PF + 2*a + 1, cs))
        for i_, a in enumerate(al):
            cs = "0" if i_ == 0 else "v[%d:%d]" % (DEN + 4*b, DEN + 4*b + 3)
            A("v_mfma_f32_16x16x16_bf16 v[%d:%d], v[%d:%d], v[%d:%d], %s" % (DEN + 4*b, DEN + 4*b + 3, st + 6 + 2*i_, st + 6 + 2*i_ + 1, PF + 2*a, PF + 2*a + 1, cs))
        if b >= 2:
            bb = b - 2
            for i_ in range(4): A("v_add_f32 v%d, 0x%x, v%d" % (DEN + 4*bb + i_, C1E6, DEN + 4*bb + i_))
            for i_ in range(4): A("v_rcp_f32 v%d, v%d" % (DEN + 4*bb + i_, DEN + 4*bb + i_))
    A("s_nop 7"); A("s_nop 3")
    for bb in (7, 8):
        for i_ in range(4): A("v_add_f32 v%d, 0x%x, v%d" % (DEN + 4*bb + i_, C1E6, DEN + 4*bb + i_))
        for i_ in range(4): A("v_rcp_f32 v%d, v%d" % (DEN + 4*bb + i_, DEN + 4*bb + i_))
    A("s_nop 0")
    for b in range(9):
        for i_ in range(4): A("v_mul_f32 v%d, v%d, v%d" % (NUM + 4*b + i_, NUM + 4*b + i_, DEN + 4*b + i_))
        A("v_cvt_pk_bf16_f32 v%d, v%d, v%d" % (OT + 2*b, NUM + 4*b, NUM + 4*b + 1)); A("v_cvt_pk_bf16_f32 v%d, v%d, v%d" % (OT + 2*b + 1, NUM + 4*b + 2, NUM + 4*b + 3))
        A("ds_write_b64 v%d, v[%d:%d] offset:%d" % (vPR, OT + 2*b, OT + 2*b + 1, b * 512))
    vCR = 40
    A("v_lshrrev_b32 v%d, 4, v%d" % (vT1, vL)); A("v_lshlrev_b32 v%d, 2, v%d" % (vT1, vT1))
    A("v_lshrrev_b32 v%d, 2, v%d" % (vT2, vL)); A("v_and_b32 v%d, 3, v%d" % (vT2, vT2))
    A("v_add_u32 v%d, v%d, v%d" % (vT1, vT1, vT2))
    A("v_and_b32 v%d, 6, v%d" % (vT3, vT1))
    A("v_mul_u32_u24 v%d, 384, v%d" % (vT1, vT1))
    A("v_and_b32 v%d, 3, v%d" % (vT2, vL))
    A("v_lshl_add_u32 v%d, v%d, 3, v%d" % (vT1, vT2, vT1))
    A("s_waitcnt vmcnt(0) lgkmcnt(0)"); A.vm.all(); A.lg.all()
    A("s_barrier")
    OB = 0
    A("s_mul_i32 s%d, s%d, %d" % (S_T0, S_R, 2 * 9 * 512)); A("s_add_u32 s%d, s%d, %d" % (S_T0, S_T0, PQ))
    A("v_lshl_add_u32 v%d, v%d, 3, s%d" % (vPR, vL, S_T0))
    for u in range(2):
        for b in range(9):
            A("ds_read_b64 v[%d:%d], v%d offset:%d" % (OB + 20*u + 2*b, OB + 20*u + 2*b + 1, vPR, u * 9 * 512 + b * 512))
    for j in range(4):
        A("v_xor_b32 v%d, %d, v%d" % (vT2, 2 * j, vT3))
        A("v_lshl_add_u32 v%d, v%d, 4, v%d" % (vCR + j, vT2, vT1))
        A("v_add_u32 v%d, %d, v%d" % (vCR + 4 + j, CH, vCR + j))
    vSO = 48
    A("v_and_b32 v%d, 15, v%d" % (vT1, vL))
    A("v_lshrrev_b32 v%d, 5, v%d" % (vT2, vL)); A("v_lshl_add_u32 v%d, v%d, 4, v%d" % (vT1, vT2, vT1))
    A("v_lshrrev_b32 v%d, 4, v%d" % (vT2, vL)); A("v_and_b32 v%d, 1, v%d" % (vT2, vT2)); A("v_lshl_add_u32 v%d, v%d, 5, v%d" % (vT1, vT2, vT1))
    A("s_mul_i32 s%d, s%d, %d" % (S_T0, S_R, 18 * 2048))
    A("v_lshl_add_u32 v%d, v%d, 4, s%d" % (vSO, vT1, S_T0))
    stamp(A)
    WF5 = 52
    AC5 = 108
    PK5 = 124
    tl = list(range(6)) if c == 0 else list(range(6, 12))
    items = [(ch, t) for ch in range(3) for t in tl]
    def tread(idx, part):
        ch, t = items[idx]
        f = WF5 + 18 * (idx % 3); base = vCR + (t & 3) + 4 * (ch & 1)
        rd = []
        for pb in range(4):
            rd.append((f + 4*pb, (32 * pb) * 384 + 128 * (t >> 2))); rd.append((f + 4*pb + 2, (32 * pb + 16) * 384 + 128 * (t >> 2)))
        rd.append((f + 16, 128 * 384 + 128 * (t >> 2)))
        for q, (rg, off) in enumerate(rd):
            if (q < 5) == (part == 0):
                A("ds_read_b64_tr_b16 v[%d:%d], v%d offset:%d" % (rg, rg + 1, base, off))
                A.lg.issue(("t", idx, q))
    def tstore(idx):
        ch, t = items[idx]
        ac = AC5 + 8 * (idx & 1); pk = PK5 + 4 * (idx & 1)
        A("v_cvt_pk_bf16_f32 v%d, v%d, v%d" % (pk, ac, ac + 1)); A("v_cvt_pk_bf16_f32 v%d, v%d, v%d" % (pk + 1, ac + 2, ac + 3))
        A("v_cvt_pk_bf16_f32 v%d, v%d, v%d" % (pk + 2, ac + 4, ac + 5)); A("v_cvt_pk_bf16_f32 v%d, v%d, v%d" % (pk + 3, ac + 6, ac + 7))
        A("s_mov_b32 s%d, %d" % (S_T2, (12 * ch + t) * 1024)); A("s_nop 0")
        A("v_permlane32_swap_b32 v%d, v%d" % (pk, pk + 2)); A("v_permlane32_swap_b32 v%d, v%d" % (pk + 1, pk + 3))
        A("s_nop 0")
        A("buffer_store_dwordx4 v[%d:%d], v%d, s[%d:%d], s%d offen%s" % (pk, pk + 3, vSO, SRD_P, SRD_P + 3, S_T2, opt.stf))
        A.vm.issue(("st", idx))
    tread(0, 0); tread(0, 1)
    A("s_waitcnt lgkmcnt(9)")
    A("s_barrier")
    dq = [(1, q) for q in range(7)]
    for idx, (ch, t) in enumerate(items):
        f = WF5 + 18 * (idx % 3); ac = AC5 + 8 * (idx & 1)
        nxt = idx + 1 if idx + 1 < len(items) else None
        cross = nxt is not None and items[nxt][0] != ch
        if cross:
            A.wait(vm=[("c", items[nxt][0], 6)], lg=[("t", idx, 8)])
            A("s_barrier")
            if ch + 2 < 3: dq = [(ch + 2, q) for q in range(7)]
        A.wait(lg=[("t", idx, 8)])
        for u in range(2):
            for pb in range(4):
                cs = "0" if pb == 0 else "v[%d:%d]" % (ac + 4*u, ac + 4*u + 3)
                A("v_mfma_f32_16x16x32_bf16 v[%d:%d], v[%d:%d], v[%d:%d], %s" % (ac + 4*u, ac + 4*u + 3, f + 4*pb, f + 4*pb + 3, OB + 20*u + 4*pb, OB + 20*u + 4*pb + 3, cs))
                if nxt is not None and u == 0 and pb == 1: tread(nxt, 0)
                if nxt is not None and u == 1 and pb == 1: tread(nxt, 1)
        A("s_nop 1")
        for u in range(2):
            A("v_mfma_f32_16x16x16_bf16 v[%d:%d], v[%d:%d], v[%d:%d], v[%d:%d]" % (ac + 4*u, ac + 4*u + 3, f + 16, f + 17, OB + 20*u + 16, OB + 20*u + 17, ac + 4*u, ac + 4*u + 3))
        if idx >= 1: tstore(idx - 1)
        for _ in range(2):
            if dq: cdma1(*dq.pop(0))
    A("s_nop 7"); A("s_nop 1")
    tstore(len(items) - 1)
    stamp(A)
    stamp_flush(A)
    A("s_endpgm")
```

```python
import sys
from asmlib import *

S, D, F = 2048, 576, 4608
PART_BYTES = S * D * 2
NPART = 16
WS_KV = 40 << 20
WS_STAMP = 48 << 20
LOG2E = 0x3fb8aa3b
EPS_LN = 0x3727c5ac
INV576 = 0x3ae38e39
C1E6 = 0x358637bd

class Opt:
    stamps = False
    stamp_steps = ()
    dbgt = False
    stf = ""
    exp = ""
    touch = True
opt = Opt()

class Ctr:
    def __init__(self, maxv):
        self.ops = []; self.done = 0; self.maxv = maxv
    def issue(self, tag):
        self.ops.append(tag)
    def need(self, tags):
        idx = -1
        pos = {}
        for i, t in enumerate(self.ops): pos[t] = i
        for t in tags:
            assert t in pos, ("tag not issued", t)
            idx = max(idx, pos[t])
        if idx < self.done: return None
        n = min(len(self.ops) - 1 - idx, self.maxv)
        self.done = max(self.done, len(self.ops) - n)
        return n
    def all(self):
        self.done = len(self.ops)

class K(Asm):
    def __init__(self):
        super().__init__()
        self.reset()
        self.nstamp = 0
    def reset(self):
        self.vm = Ctr(63); self.lg = Ctr(15)
    def wait(self, vm=None, lg=None):
        a = self.vm.need(vm) if vm else None
        b = self.lg.need(lg) if lg else None
        parts = []
        if a is not None: parts.append("vmcnt(%d)" % a)
        if b is not None: parts.append("lgkmcnt(%d)" % b)
        if parts: self("s_waitcnt " + " ".join(parts))
    def waitall(self):
        self("s_waitcnt vmcnt(0) lgkmcnt(0)"); self.vm.all(); self.lg.all()

S_X, S_WQKV, S_WO, S_W1, S_W2, S_OUT, S_DBG, S_WS = 4, 6, 8, 12, 14, 16, 18, 20
S_A, S_B = 22, 23
SRD_X, SRD_A, SRD_B, SRD_P = 24, 28, 32, 36
S_WAVE, S_R, S_C, S_ROLE, S_TILE = 40, 41, 42, 43, 44
S_M0B, S_T0, S_T1, S_T2, S_T3 = 45, 46, 47, 48, 49
S_ONES, S_L2E, S_XM0, S_SEL0, S_SEL1 = 50, 51, 52, 53, 54
S_E0, S_E1, S_E2, S_E3 = 55, 56, 57, 58
SRD_KV, SRD_D = 8, 16
STAMP0 = 60

def stamp(A):
    if not opt.stamps: return
    k = A.nstamp; A.nstamp += 1
    assert STAMP0 + 2 * k + 1 < 90
    A("s_memtime s[%d:%d]" % (STAMP0 + 2*k, STAMP0 + 1 + 2*k))
def stamp_flush(A):
    if opt.stamps:
        k = A.nstamp
        A("s_memrealtime s[90:91]")
        A("s_waitcnt lgkmcnt(0)")
        A("s_cmp_lg_u32 s%d, 0" % S_WAVE)
        lab = A.newlabel("L_stamp_done")
        A("s_cbranch_scc1 %s" % lab)
        A("s_lshl_b32 s%d, s2, 7" % S_T0)
        A("s_add_u32 s%d, s%d, %d" % (S_T0, S_T0, WS_STAMP))
        A("s_add_u32 s56, s%d, s%d" % (S_WS, S_T0)); A("s_addc_u32 s57, s%d, 0" % (S_WS + 1))
        A("s_and_b32 s57, s57, 0xffff"); A("s_mov_b32 s58, 128"); A("s_mov_b32 s59, 0x20000")
        A("v_mov_b32 v250, 0")
        for j in range(k):
            A("v_mov_b32 v251, s%d" % (STAMP0 + 2*j))
            A("buffer_store_dword v251, v250, s[56:59], 0 offen offset:%d" % (4*j))
        A("v_mov_b32 v251, s90"); A("buffer_store_dword v251, v250, s[56:59], 0 offen offset:%d" % (4*k))
        A("v_mov_b32 v251, s92"); A("buffer_store_dword v251, v250, s[56:59], 0 offen offset:%d" % (4*(k+1)))
        A.label(lab)
    if opt.dbgt:
        lab = A.newlabel("L_dbgt")
        A("s_memrealtime s[62:63]")
        A("s_waitcnt lgkmcnt(0)")
        A("s_cmp_lg_u32 s%d, 0" % S_WAVE)
        A("s_cbranch_scc1 %s" % lab)
        A("s_add_u32 s64, s%d, %d" % (S_WS, WS_STAMP)); A("s_addc_u32 s65, s%d, 0" % (S_WS + 1)); A("s_and_b32 s65, s65, 0xffff")
        A("s_mov_b32 s66, 4096"); A("s_mov_b32 s67, 0x20000")
        A("s_lshl_b32 s68, s2, 3")
        A("s_mov_b64 exec, 1")
        A("v_mov_b32 v250, s92"); A("v_mov_b32 v251, s62"); A("v_mov_b32 v252, s68")
        A("buffer_store_dwordx2 v[250:251], v252, s[64:67], 0 offen")
        A.label(lab)
    A.nstamp = 0

def srd(A, sreg, lo, hi, nbytes):
    A("s_mov_b32 s%d, s%d" % (sreg, lo))
    A("s_and_b32 s%d, s%d, 0xffff" % (sreg + 1, hi))
    A("s_mov_b32 s%d, 0x%x" % (sreg + 2, nbytes))
    A("s_mov_b32 s%d, 0x20000" % (sreg + 3))

def srd_off(A, sreg, lo, hi, soff, total):
    A("s_add_u32 s%d, s%d, s%d" % (sreg, lo, soff))
    A("s_addc_u32 s%d, s%d, 0" % (sreg + 1, hi))
    A("s_and_b32 s%d, s%d, 0xffff" % (sreg + 1, sreg + 1))
    A("s_sub_u32 s%d, 0x%x, s%d" % (sreg + 2, total, soff))
    A("s_mov_b32 s%d, 0x20000" % (sreg + 3))

def xsum32(A, r, tmp):
    A("v_mov_b32 v%d, v%d" % (tmp, r)); A("s_nop 1")
    A("v_permlane32_swap_b32 v%d, v%d" % (r, tmp)); A("s_nop 1")
    A("v_add_f32 v%d, v%d, v%d" % (r, r, tmp))
def xsum16(A, r, tmp):
    A("v_mov_b32 v%d, v%d" % (tmp, r)); A("s_nop 1")
    A("v_permlane16_swap_b32 v%d, v%d" % (r, tmp)); A("s_nop 1")
    A("v_add_f32 v%d, v%d, v%d" % (r, r, tmp))

def x_unit_setup(A, vL, vDX, vT0, vT1, vT2, vT3, XS):
    A("s_lshl_b32 s%d, s%d, 7" % (S_T0, S_TILE))
    A("s_lshl_b32 s%d, s%d, 4" % (S_T1, S_WAVE))
    A("s_add_u32 s%d, s%d, s%d" % (S_T0, S_T0, S_T1))
    A("s_mul_i32 s%d, s%d, 1152" % (S_T0, S_T0))
    A("v_lshrrev_b32 v%d, 3, v%d" % (vT0, vL))
    A("v_mul_u32_u24 v%d, 1152, v%d" % (vT1, vT0))
    A("v_add_u32 v%d, s%d, v%d" % (vT1, S_T0, vT1))
    A("v_lshrrev_b32 v%d, 4, v%d" % (vT2, vL))
    A("v_and_b32 v%d, 7, v%d" % (vT3, vL))
    A("v_xor_b32 v%d, v%d, v%d" % (vDX, vT3, vT2))
    A("v_lshl_add_u32 v%d, v%d, 4, v%d" % (vDX, vDX, vT1))
    A("v_add_u32 v%d, 4, v%d" % (vT2, vT2))
    A("v_xor_b32 v%d, v%d, v%d" % (vDX + 1, vT3, vT2))
    A("v_lshl_add_u32 v%d, v%d, 4, v%d" % (vDX + 1, vDX + 1, vT1))
    A("v_add_u32 v%d, %d, v%d" % (vDX + 1, 8 * 1152, vDX + 1))
    A("s_lshl_b32 s%d, s%d, 11" % (S_XM0, S_WAVE))
    A("s_add_u32 s%d, s%d, %d" % (S_XM0, S_XM0, XS))

def x_unit_dma(A, kb, vDX, nslots):
    slot = kb % nslots
    for q in range(2):
        A("s_add_u32 m0, s%d, %d" % (S_XM0, slot * 16384 + q * 1024))
        A("s_movk_i32 s%d, %d" % (S_T3, kb * 128))
        A("buffer_load_dwordx4 v%d, s[%d:%d], s%d offen lds" % (vDX + q, SRD_X, SRD_X + 3, S_T3))
        A.vm.issue(("x", kb, q))

def emit_step(A, c, groups, block, pre_vm=None, pre_lg=None, head=None):
    A.wait(vm=pre_vm or None, lg=pre_lg or None)
    A("s_barrier")
    if head:
        for fn in head: fn()
    if c == 0:
        for g in groups: g()
        for fn in block: fn()
    else:
        for fn in block: fn()
        for g in groups: g()
```

```python
from g2_common import *

def mlp_role(A, c):
    A.reset()
    XN = 0
    ACC = [144, 160]
    WF = 176
    P = 208
    T = 216
    vD1, vD2 = 224, 225
    vR1, vR2, vHW, vHR, vST, vA, vC2 = 226, 227, 228, 229, 230, 231, 232
    vXR = 240
    vDX = 244
    vS, vQ = 246, 248
    vL, vT0, vT1, vT2, vT3 = 250, 251, 252, 253, 254
    vSX = 255
    U = 233
    RING = 8
    XSL = 6
    HBASE = 65536
    XS = HBASE
    SXB = 7 * 8192
    NSC = 6
    NU1 = NSC * 9
    NU = NU1 + 54

    A.comment("---- MLP role, wave group %d ----" % c)
    stamp(A, 9)
    A("v_and_b32 v%d, 63, v0" % vL)
    x_unit_setup(A, vL, vDX, vT0, vT1, vT2, vT3, XS)
    for kb in range(3): x_unit_dma(A, kb, vDX, XSL)
    A("s_mul_i32 s%d, s%d, 768" % (S_T0, S_ROLE))
    srd_off(A, SRD_A, S_W1, S_W1 + 1, S_T0, D * F * 2)
    A("s_lshl_b32 s%d, s%d, 3" % (S_T0, S_WAVE))
    A("v_add_u32 v%d, s%d, v%d" % (vT0, S_T0, vT0))
    A("v_lshrrev_b32 v%d, 2, v%d" % (vT2, vL)); A("v_and_b32 v%d, 4, v%d" % (vT2, vT2))
    A("v_xor_b32 v%d, v%d, v%d" % (vT2, vT3, vT2))
    A("v_lshlrev_b32 v%d, 4, v%d" % (vT2, vT2))
    A("v_mul_u32_u24 v%d, 9216, v%d" % (vD1, vT0))
    A("v_add_u32 v%d, v%d, v%d" % (vD1, vD1, vT2))
    A("v_mul_u32_u24 v%d, 1152, v%d" % (vD2, vT0))
    A("v_add_u32 v%d, v%d, v%d" % (vD2, vD2, vT2))
    A("s_lshl_b32 s%d, s%d, 10" % (S_M0B, S_WAVE))
    for kb in range(3, 6): x_unit_dma(A, kb, vDX, XSL)

    def dma(un):
        if un >= NU: return
        slot = un % RING
        A("s_add_u32 m0, s%d, %d" % (S_M0B, slot * 8192))
        if un < NU1:
            sc, kb = divmod(un, 9)
            A("s_mov_b32 s%d, %d" % (S_T3, kb * 64 * 9216 + sc * 128))
            A("buffer_load_dwordx4 v%d, s[%d:%d], s%d offen lds" % (vD1, SRD_A, SRD_A+3, S_T3))
        else:
            t, fb = divmod(un - NU1, 6)
            A("s_mov_b32 s%d, %d" % (S_T3, fb * 64 * 1152 + t * 128))
            A("buffer_load_dwordx4 v%d, s[%d:%d], s%d offen lds" % (vD2, SRD_B, SRD_B+3, S_T3))
        A.vm.issue(("dma", un))
    A("s_mul_i32 s%d, s%d, %d" % (S_T0, S_ROLE, 384 * 1152))
    srd_off(A, SRD_B, S_W2, S_W2 + 1, S_T0, D * F * 2)
    A("s_mul_i32 s%d, s%d, %d" % (S_T0, S_ROLE, PART_BYTES))
    A("s_mul_i32 s%d, s%d, %d" % (S_T1, S_TILE, 4 * 18 * 2048))
    A("s_add_u32 s%d, s%d, s%d" % (S_T0, S_T0, S_T1))
    srd_off(A, SRD_P, S_WS, S_WS + 1, S_T0, NPART * PART_BYTES)
    A("v_lshrrev_b32 v%d, 5, v%d" % (vT1, vL))
    A("v_lshrrev_b32 v%d, 2, v%d" % (vT0, vL)); A("v_and_b32 v%d, 3, v%d" % (vT0, vT0))
    A("v_lshrrev_b32 v%d, 4, v%d" % (vT2, vL)); A("v_and_b32 v%d, 1, v%d" % (vT2, vT2))
    A("v_lshlrev_b32 v%d, 1, v%d" % (vT2, vT2))
    A("v_lshrrev_b32 v%d, 1, v%d" % (vT3, vL)); A("v_and_b32 v%d, 1, v%d" % (vT3, vT3))
    A("v_add_u32 v%d, v%d, v%d" % (vT2, vT2, vT3))
    if c: A("v_add_u32 v%d, 4, v%d" % (vT2, vT2))
    A("v_lshrrev_b32 v%d, 1, v%d" % (vT3, vT0)); A("v_lshlrev_b32 v%d, 2, v%d" % (vT3, vT3))
    A("v_xor_b32 v%d, v%d, v%d" % (vT2, vT2, vT3))
    A("v_lshlrev_b32 v%d, 4, v%d" % (vT2, vT2))
    A("v_and_b32 v%d, 1, v%d" % (vT3, vL)); A("v_lshlrev_b32 v%d, 3, v%d" % (vT3, vT3))
    A("v_add_u32 v%d, v%d, v%d" % (vT2, vT2, vT3))
    A("v_lshlrev_b32 v%d, 2, v%d" % (vT3, vT1)); A("v_add_u32 v%d, v%d, v%d" % (vT3, vT3, vT0))
    A("v_lshlrev_b32 v%d, 7, v%d" % (vT3, vT3)); A("v_add_u32 v%d, v%d, v%d" % (vR2, vT3, vT2))
    A("v_lshlrev_b32 v%d, 3, v%d" % (vT3, vT1)); A("v_add_u32 v%d, v%d, v%d" % (vT3, vT3, vT0))
    A("v_lshlrev_b32 v%d, 7, v%d" % (vT3, vT3)); A("v_add_u32 v%d, v%d, v%d" % (vR1, vT3, vT2))
    A("v_and_b32 v%d, 31, v%d" % (vT0, vL))
    A("s_lshl_b32 s%d, s%d, 5" % (S_T0, S_R))
    A("v_add_u32 v%d, s%d, v%d" % (vT0, S_T0, vT0))
    A("v_lshrrev_b32 v%d, 1, v%d" % (vT2, vL)); A("v_and_b32 v%d, 7, v%d" % (vT2, vT2))
    A("v_xor_b32 v%d, v%d, v%d" % (vT2, vT2, vT1))
    A("v_lshlrev_b32 v%d, 4, v%d" % (vT2, vT2))
    A("v_lshl_add_u32 v%d, v%d, 7, v%d" % (vT2, vT0, vT2))
    A("v_add_u32 v%d, %d, v%d" % (vXR, XS, vT2))
    for j in range(1, 4): A("v_xor_b32 v%d, %d, v%d" % (vXR + j, j * 32, vXR))
    A("s_mul_i32 s%d, s%d, 24576" % (S_T0, S_R))
    A("s_add_u32 s%d, s%d, %d" % (S_T0, S_T0, HBASE))
    A("v_lshlrev_b32 v%d, 4, v%d" % (vT3, vL))
    A("v_add_u32 v%d, s%d, v%d" % (vHR, S_T0, vT3))
    A("v_add_u32 v%d, %d, v%d" % (vHW, 2048 * c, vHR))
    A("s_mul_i32 s%d, s%d, 18" % (S_T0, S_R))
    A("s_add_u32 s%d, s%d, %d" % (S_T0, S_T0, c))
    A("s_lshl_b32 s%d, s%d, 11" % (S_T0, S_T0))
    A("v_add_u32 v%d, s%d, v%d" % (vST, S_T0, vT3))
    A("v_and_b32 v%d, 31, v%d" % (vT0, vL))
    A("s_lshl_b32 s%d, s%d, 8" % (S_T0, S_WAVE))
    A("s_add_u32 s%d, s%d, %d" % (S_T0, S_T0, SXB))
    A("v_lshl_add_u32 v%d, v%d, 3, s%d" % (vSX, vT0, S_T0))
    for q in range(2):
        A("v_mov_b32 v%d, 0" % (vS + q)); A("v_mov_b32 v%d, 0" % (vQ + q))

    def xread(kb, j):
        slot = kb % XSL
        rg = XN + 4 * (4 * kb + j)
        if slot < 4:
            A("ds_read_b128 v[%d:%d], v%d offset:%d" % (rg, rg + 3, vXR + j, slot * 16384))
        else:
            A("v_add_u32 v%d, 0x10000, v%d" % (T + j, vXR + j))
            A("ds_read_b128 v[%d:%d], v%d offset:%d" % (rg, rg + 3, T + j, (slot - 4) * 16384))
        A.lg.issue(("xf", kb, j))
    def stats(kb, j):
        for e in range(4):
            rg = XN + 4 * (4 * kb + j) + e
            A("v_dot2_f32_bf16 v%d, v%d, s%d, v%d" % (vS + (e & 1), rg, S_ONES, vS + (e & 1)))
            A("v_dot2_f32_bf16 v%d, v%d, v%d, v%d" % (vQ + (e & 1), rg, rg, vQ + (e & 1)))
    stamp(A)
    for g in range(3):
        A.wait(vm=[("x", 3 * g + 2, 1)])
        A("s_barrier")
        if g == 1:
            for kb in range(6, 9): x_unit_dma(A, kb, vDX, XSL)
            dma(0); dma(1)
        own = [(kb, j) for kb in range(3 * g, 3 * g + 3) for j in (2 * c, 2 * c + 1)]
        oth = [(kb, j) for kb in range(3 * g, 3 * g + 3) for j in (2 - 2 * c, 3 - 2 * c)]
        for kb, j in own: xread(kb, j)
        for kb, j in oth: xread(kb, j)
        for kb, j in own:
            A.wait(lg=[("xf", kb, j)])
            stats(kb, j)
        A.wait(lg=[("xf",) + oth[-1]])
        if g == 2:
            for un in range(2, RING - 1): dma(un)
            if opt.touch:
                A("s_and_b32 s%d, s%d, 7" % (S_T0, S_TILE)); A("s_lshl_b32 s%d, s%d, 3" % (S_T0, S_T0)); A("s_add_u32 s%d, s%d, s%d" % (S_T0, S_T0, S_WAVE))
                A("s_mul_i32 s%d, s%d, %d" % (S_T0, S_T0, 54 * 128))
                A("v_lshl_add_u32 v%d, v%d, 7, s%d" % (vT0, vL, S_T0))
                A("v_mov_b32 v%d, 0x7fffff00" % vT2)
                A("v_cmp_gt_u32 vcc, 54, v%d" % vL)
                A("s_nop 1")
                A("v_cndmask_b32 v%d, v%d, v%d, vcc" % (vT0, vT2, vT0))
                A("buffer_load_dword v%d, v%d, s[%d:%d], 0 offen" % (U, vT0, SRD_B, SRD_B + 3))
                A.vm.issue(("touch",))
    A("s_nop 1")
    A("v_add_f32 v%d, v%d, v%d" % (vS, vS, vS + 1))
    A("v_add_f32 v%d, v%d, v%d" % (vQ, vQ, vQ + 1))
    xsum32(A, vS, vS + 1)
    xsum32(A, vQ, vQ + 1)
    A("v_mov_b32 v%d, v%d" % (vS + 1, vQ))
    A("ds_write_b64 v%d, v[%d:%d]" % (vSX, vS, vS + 1))
    A("v_xor_b32 v%d, 1024, v%d" % (vT0, vSX))
    A("s_waitcnt lgkmcnt(0)"); A.lg.all()
    A("s_barrier")
    A("ds_read_b64 v[%d:%d], v%d" % (T, T + 1, vT0))
    A("s_waitcnt lgkmcnt(0)")
    A("v_add_f32 v%d, v%d, v%d" % (vS, vS, T))
    A("v_add_f32 v%d, v%d, v%d" % (vQ, vQ, T + 1))
    A("v_mul_f32 v%d, 0x%x, v%d" % (vS, INV576, vS))
    A("v_mul_f32 v%d, 0x%x, v%d" % (vQ, INV576, vQ))
    A("v_fma_f32 v%d, -v%d, v%d, v%d" % (vQ, vS, vS, vQ))
    A("v_max_f32 v%d, 0, v%d" % (vQ, vQ))
    A("v_add_f32 v%d, 0x%x, v%d" % (vQ, EPS_LN, vQ))
    A("v_sub_f32 v%d, 0, v%d" % (vS, vS))
    A("v_rsq_f32 v%d, v%d" % (vA, vQ))
    A("v_sqrt_f32 v%d, v%d" % (vC2, vQ))
    A("s_nop 0")
    A("v_mul_f32 v%d, s%d, v%d" % (vA, S_L2E, vA))
    stamp(A)
    for n in range(0, 144, 4):
        for e in range(4):
            A("v_dot2_f32_bf16 v%d, v%d, s%d, v%d" % (T + 2*e, XN + n + e, S_SEL0, vS))
            A("v_dot2_f32_bf16 v%d, v%d, s%d, v%d" % (T + 2*e + 1, XN + n + e, S_SEL1, vS))
        A("s_nop 0")
        for e in range(4):
            A("v_cvt_pk_bf16_f32 v%d, v%d, v%d" % (XN + n + e, T + 2*e, T + 2*e + 1))

    def wfrag(un, i): return WF + 16 * (un & 1) + 4 * i
    def wread(un, i):
        if un >= NU: return
        slot = un % RING
        f = wfrag(un, i)
        off = slot * 8192 + i * 2048
        if un < NU1:
            A("ds_read_b64_tr_b16 v[%d:%d], v%d offset:%d" % (f, f+1, vR1, off))
            A("ds_read_b64_tr_b16 v[%d:%d], v%d offset:%d" % (f+2, f+3, vR1, off + 512))
        else:
            A("ds_read_b64_tr_b16 v[%d:%d], v%d offset:%d" % (f, f+1, vR2, off))
            A("ds_read_b64_tr_b16 v[%d:%d], v%d offset:%d" % (f+2, f+3, vR2, off + 1024))
        A.lg.issue(("w", un, i, 0)); A.lg.issue(("w", un, i, 1))
    def hread(hf):
        A("ds_read_b128 v[%d:%d], v%d offset:%d" % (XN + 4*hf, XN + 4*hf + 3, vHR, hf * 1024))
        A.lg.issue(("hr", hf))
    def hwrite(sc, ks):
        A("ds_write_b128 v%d, v[%d:%d] offset:%d" % (vHW, P + 4*ks, P + 4*ks + 3, sc * 4096 + ks * 1024))
        A.lg.issue(("hw", sc, ks))
    def silu_a(va, t):
        A("v_mul_f32 v%d, v%d, v%d" % (t, va, vA)); A("v_mul_f32 v%d, v%d, v%d" % (t+1, va+1, vA))
        A("v_exp_f32_e64 v%d, -v%d" % (t, t))
    def silu_a2(t):
        A("v_exp_f32_e64 v%d, -v%d" % (t+1, t+1))
        A("v_fma_f32 v%d, v%d, v%d, v%d" % (t, t, vC2, vC2))
    def silu_b(t):
        A("v_fma_f32 v%d, v%d, v%d, v%d" % (t+1, t+1, vC2, vC2))
        A("v_rcp_f32 v%d, v%d" % (t, t))
    def silu_b2(t):
        A("v_rcp_f32 v%d, v%d" % (t+1, t+1))
    def silu_c(va, t, pidx):
        A("v_mul_f32 v%d, v%d, v%d" % (t, va, t)); A("v_mul_f32 v%d, v%d, v%d" % (t+1, va+1, t+1))
        A("v_cvt_pk_bf16_f32 v%d, v%d, v%d" % (P + pidx, t, t+1))

    stamp(A)
    A.wait(vm=[("dma", 0)])
    A("s_barrier")
    for i in range(4): wread(0, i)

    N = NU + 3
    shadow = [[[] for _ in range(4)] for _ in range(N)]
    block = [[] for _ in range(N)]
    post = [[] for _ in range(N)]
    pre_lg = [[] for _ in range(N)]
    def vis(m, tag): pre_lg[m + 1 + c].append(tag)
    def sched_silu(sc, plan):
        acc = ACC[sc & 1]
        for n, pairs in plan:
            for q, pidx in enumerate(pairs):
                va = acc + 2 * pidx
                t = T + 2 * (q % 4)
                shadow[n][0].append(lambda va=va, t=t: silu_a(va, t))
                shadow[n][1].append(lambda t=t: silu_a2(t))
                shadow[n][2].append(lambda t=t: silu_b(t))
                shadow[n][3].append(lambda t=t: silu_b2(t))
                post[n].append(lambda va=va, t=t, pidx=pidx: silu_c(va, t, pidx))
                if pidx % 4 == 3:
                    ks = pidx // 4
                    post[n].append(lambda sc=sc, ks=ks: hwrite(sc, ks))
                    vis(n, ("hw", sc, ks))
    for n in range(NU):
        if n + RING - 1 < NU: block[n].append(lambda u=n + RING - 1: dma(u))
    for sc in range(NSC):
        n0 = 9 * (sc + 1)
        if sc < NSC - 1:
            sched_silu(sc, [(n0 + 1 + q, [q]) for q in range(8)])
        else:
            shadow[n0][0].append(lambda: (A("s_nop 7"), A("s_nop 3")))
            sched_silu(sc, [(n0, [0, 1, 2, 3]), (n0 + 1, [4, 5, 6, 7])])
    for hf in range(16): shadow[46 + hf // 4][hf % 4].append(lambda hf=hf: hread(hf))
    for hf in range(16, 20): shadow[56][hf % 4].append(lambda hf=hf: hread(hf))
    for hf in range(20, 24): shadow[58][hf % 4].append(lambda hf=hf: hread(hf))
    def epi(t, half):
        acc = ACC[t & 1] + 8 * half
        for q in range(4):
            A("v_cvt_pk_bf16_f32 v%d, v%d, v%d" % (P + 4*half + q, acc + 2*q, acc + 2*q + 1))
        A("s_mov_b32 s%d, %d" % (S_T2, t * 4096))
        A("buffer_store_dwordx4 v[%d:%d], v%d, s[%d:%d], s%d offen offset:%d%s" % (P + 4*half, P + 4*half + 3, vST, SRD_P, SRD_P+3, S_T2, half * 1024, opt.stf))
        A.vm.issue(("st", t, half))
    for t in range(8):
        n0 = NU1 + 6 * (t + 1)
        block[n0 + 1].append(lambda t=t: epi(t, 0))
        block[n0 + 3].append(lambda t=t: epi(t, 1))

    def group(n, i):
        def fn():
            tags = [("w", n, i, 1)]
            if n >= NU1:
                t, fb = divmod(n - NU1, 6); hf = fb * 4 + i
                if t == 0: tags.append(("hr", hf))
                acc = ACC[t & 1]; bop = XN + 4 * hf; first = (fb == 0 and i == 0)
            else:
                sc, kb = divmod(n, 9)
                acc = ACC[sc & 1]; bop = XN + 4 * (4 * kb + i); first = (kb == 0 and i == 0)
            A.wait(lg=tags)
            f = wfrag(n, i)
            csrc = "0" if first else "v[%d:%d]" % (acc, acc + 15)
            A("v_mfma_f32_32x32x16_bf16 v[%d:%d], v[%d:%d], v[%d:%d], %s" % (acc, acc+15, f, f+3, bop, bop+3, csrc))
            wread(n + 1, i)
            for fn2 in shadow[n][i]: fn2()
        return fn
    for n in range(NU):
        A.comment("step %d" % n)
        if opt.exp == "rep2" and n in (18, 60):
            A("s_mov_b32 s59, 0")
            A.label("L_rep%d_c%d" % (n, c))
        if opt.exp == "rep2" and n in (45, 102):
            A("s_add_u32 s59, s59, 1"); A("s_cmp_lt_u32 s59, 2"); A("s_cbranch_scc1 L_rep%d_c%d" % (18 if n == 45 else 60, c))
        if n in opt.stamp_steps: stamp(A, opt.lvl)
        pv = ([("dma", n + 1)] if n + 1 < NU else [])
        if c == 0: blk = post[n] + block[n]
        else: blk = (post[n - 1] if n else []) + block[n]
        emit_step(A, c, [group(n, i) for i in range(4)], blk, pv, pre_lg[n])
    assert not post[NU - 1]
    A("s_nop 7"); A("s_nop 7")
    epi(8, 0); epi(8, 1)
    stamp(A, 9)
    mlp_tail(A, "m%d" % c)
    stamp(A, 9)
    stamp_flush(A)
    A("s_endpgm")
```

```python
import sys
from g2_common import *
from g2_mlp import mlp_role
try:
    from g2_att import att_role
except ImportError:
    att_role = None

def k1_kernel(with_att=True):
    A = K()
    A("s_cmp_ge_u32 s2, 256")
    A("s_cbranch_scc1 L_k1_end")
    A("s_load_dwordx16 s[4:19], s[0:1], 0")
    A("s_load_dwordx2 s[20:21], s[0:1], 64")
    if opt.stamps or opt.dbgt: A("s_memrealtime s[92:93]")
    A("v_lshrrev_b32 v1, 6, v0")
    A("s_nop 0")
    A("v_readfirstlane_b32 s%d, v1" % S_WAVE)
    A("s_mov_b32 s%d, 0x3f803f80" % S_ONES)
    A("s_mov_b32 s%d, 0x%x" % (S_L2E, LOG2E))
    A("s_mov_b32 s%d, 0x00003f80" % S_SEL0)
    A("s_mov_b32 s%d, 0x3f800000" % S_SEL1)
    A("s_and_b32 s%d, s%d, 3" % (S_R, S_WAVE))
    A("s_lshr_b32 s%d, s%d, 2" % (S_C, S_WAVE))
    A("s_and_b32 s%d, s2, 7" % S_T0)
    A("s_lshr_b32 s%d, s2, 3" % S_T1)
    A("s_lshr_b32 s%d, s%d, 1" % (S_T2, S_T0))
    A("s_and_b32 s%d, s%d, 1" % (S_T0, S_T0))
    A("s_lshl_b32 s%d, s%d, 3" % (S_T0, S_T0))
    A("s_and_b32 s%d, s%d, 7" % (S_TILE, S_T1))
    A("s_add_u32 s%d, s%d, s%d" % (S_TILE, S_TILE, S_T0))
    A("s_lshr_b32 s%d, s%d, 3" % (S_T1, S_T1))
    A("s_mul_i32 s%d, s%d, 3" % (S_T3, S_T2))
    A("s_add_u32 s%d, s%d, s%d" % (S_ROLE, S_T3, S_T1))
    A("s_waitcnt lgkmcnt(0)")
    srd(A, SRD_X, S_X, S_X + 1, S * D * 2)
    A("s_cmp_lt_u32 s%d, 3" % S_T1)
    A("s_cbranch_scc1 L_mlp")
    A("s_mov_b32 s%d, s%d" % (S_ROLE, S_T2))
    if with_att:
        A("s_cmp_eq_u32 s%d, 0" % S_C)
        A("s_cbranch_scc1 L_att0_j")
        A("s_branch L_att1_j")
    A.label("L_k1_end")
    A("s_endpgm")
    A.label("L_mlp")
    A("s_cmp_eq_u32 s%d, 0" % S_C)
    A("s_cbranch_scc1 L_mlp0")
    A("s_branch L_mlp1_j")
    if with_att:
        A.label("L_att0_j"); A("s_branch L_att0_j2")
        A.label("L_att1_j"); A("s_branch L_att1_j2")
    A.label("L_mlp1_j"); A("s_branch L_mlp1")
    A.label("L_mlp0")
    mlp_role(A, 0)
    A.label("L_mlp1")
    mlp_role(A, 1)
    if with_att:
        A.label("L_att0_j2"); A("s_branch L_att0")
        A.label("L_att1_j2"); A("s_branch L_att1")
        A.label("L_att0")
        att_role(A, 0)
        A.label("L_att1")
        att_role(A, 1)
    return A

def k3_kernel(parts):
    A = K()
    A("s_cmp_ge_u32 s2, 1152")
    A("s_cbranch_scc1 L_k3_end")
    if opt.dbgt: A("s_memrealtime s[40:41]")
    A("s_load_dwordx2 s[4:5], s[0:1], 0")
    A("s_load_dwordx2 s[6:7], s[0:1], 48")
    A("s_load_dwordx2 s[8:9], s[0:1], 64")
    A("v_and_b32 v1, 63, v0")
    A("v_lshrrev_b32 v2, 6, v0")
    A("s_lshl_b32 s3, s2, 11")
    A("v_lshlrev_b32 v3, 4, v0")
    A("v_add_u32 v3, s3, v3")
    A("s_mul_hi_u32 s10, s2, 0x%x" % ((2**32 + 17) // 18))
    A("s_mul_i32 s11, s10, 18")
    A("s_sub_u32 s11, s2, s11")
    A("v_and_b32 v4, 31, v1")
    A("s_lshl_b32 s12, s10, 5")
    A("v_add_u32 v4, s12, v4")
    A("s_movk_i32 s13, 1152")
    A("v_mul_lo_u32 v4, v4, s13")
    A("v_lshrrev_b32 v5, 5, v1")
    A("v_lshl_add_u32 v5, v2, 1, v5")
    A("v_lshlrev_b32 v5, 4, v5")
    A("s_lshl_b32 s12, s11, 6")
    A("v_add_u32 v4, v4, v5")
    A("v_add_u32 v4, s12, v4")
    A("s_waitcnt lgkmcnt(0)")
    srd(A, 16, 4, 5, S * D * 2)
    srd(A, 20, 6, 7, S * D * 2)
    srd(A, 24, 8, 9, NPART * PART_BYTES)
    A("buffer_load_dwordx4 v[8:11], v4, s[16:19], 0 offen")
    for n, p in enumerate(parts):
        A("s_mov_b32 s14, %d" % (p * PART_BYTES))
        A("buffer_load_dwordx4 v[%d:%d], v3, s[24:27], s14 offen" % (32 + 4*n, 35 + 4*n))
    A("s_mov_b32 s28, 0x00003f80")
    A("s_mov_b32 s29, 0x3f800000")
    for q in range(8): A("v_mov_b32 v%d, 0" % (16 + q))
    npart = len(parts)
    for n in range(npart):
        A("s_waitcnt vmcnt(%d)" % (npart - 1 - n))
        for q in range(4):
            A("v_dot2_f32_bf16 v%d, v%d, s28, v%d" % (16 + 2*q, 32 + 4*n + q, 16 + 2*q))
            A("v_dot2_f32_bf16 v%d, v%d, s29, v%d" % (17 + 2*q, 32 + 4*n + q, 17 + 2*q))
    A("s_nop 2")
    for q in range(4):
        A("v_permlane32_swap_b32 v%d, v%d" % (16 + q, 20 + q))
    A("s_nop 1")
    for q in range(4):
        A("v_lshlrev_b32 v24, 16, v%d" % (8 + q))
        A("v_and_b32 v25, 0xffff0000, v%d" % (8 + q))
        A("v_add_f32 v%d, v%d, v24" % (16 + 2*q, 16 + 2*q))
        A("v_add_f32 v%d, v%d, v25" % (17 + 2*q, 17 + 2*q))
    for q in range(4):
        A("v_cvt_pk_bf16_f32 v%d, v%d, v%d" % (8 + q, 16 + 2*q, 17 + 2*q))
    A("buffer_store_dwordx4 v[8:11], v4, s[20:23], 0 offen")
    if opt.dbgt:
        A("s_memrealtime s[42:43]")
        A("s_load_dwordx2 s[44:45], s[0:1], 56")
        A("s_waitcnt lgkmcnt(0)")
        A("s_mov_b32 s48, s44"); A("s_and_b32 s49, s45, 0xffff"); A("s_mov_b32 s50, 256"); A("s_mov_b32 s51, 0x20000")
        A("s_cmp_lg_u32 s2, 0")
        A("s_cbranch_scc1 L_k3_end")
        A("s_add_u32 s52, s8, %d" % WS_STAMP); A("s_addc_u32 s53, s9, 0"); A("s_and_b32 s53, s53, 0xffff"); A("s_mov_b32 s54, 4096"); A("s_mov_b32 s55, 0x20000")
        A("v_and_b32 v1, 63, v0")
        A("v_lshlrev_b32 v2, 5, v1")
        A("buffer_load_dwordx4 v[12:15], v2, s[52:55], 0 offen")
        A("buffer_load_dwordx4 v[16:19], v2, s[52:55], 0 offen offset:16")
        A("s_waitcnt vmcnt(0)")
        A("v_min_u32 v12, v12, v14"); A("v_min_u32 v16, v16, v18"); A("v_min_u32 v12, v12, v16")
        A("v_max_u32 v13, v13, v15"); A("v_max_u32 v17, v17, v19"); A("v_max_u32 v13, v13, v17")
        A("v_not_b32 v12, v12")
        A("v_mov_b32 v20, 0"); A("v_mov_b32 v21, 4")
        A("buffer_atomic_umax v12, v20, s[48:51], 0 offen")
        A("buffer_atomic_umax v13, v21, s[48:51], 0 offen")
        A("v_mov_b32 v22, s40"); A("v_mov_b32 v23, 8")
        A("buffer_store_dword v22, v23, s[48:51], 0 offen")
        A("v_mov_b32 v22, s42"); A("v_mov_b32 v23, 12")
        A("buffer_store_dword v22, v23, s[48:51], 0 offen")
    A.label("L_k3_end")
    A("s_endpgm")
    return A

HDR = """; Kernarg layout for this problem (72 bytes, ptrs only, base s[0:1]):
"""

def build_all(path, with_att=True):
    k1 = k1_kernel(with_att)
    parts = list(range(16)) if with_att else list(range(12))
    k3 = k3_kernel(parts)
    n1, n3 = "fused_main_kernel", "reduce_kernel"
    t1, r1 = kernel_wrap(n1, k1.text(), 256, 96)
    t3, r3 = kernel_wrap(n3, k3.text(), 32 + 4 * len(parts), 64)
    hdr = HDR + "; @launch kernel=%s grid=(256,1,1) block=(512,1,1) lds=163840\n" % n1
    hdr += "; @launch kernel=%s grid=(1152,1,1) block=(128,1,1) lds=0\n" % n3
    open(path, "w").write(hdr + '.amdgcn_target "amdgcn-amd-amdhsa--gfx950"\n' + t1 + t3 + r1 + r3)

if __name__ == "__main__":
    out = sys.argv[1]
    for a in sys.argv[2:]:
        if a == "stamps": opt.stamps = True
        elif a == "dbgt": opt.dbgt = True
        elif a == "notouch": opt.touch = False
        elif a.startswith("steps="): opt.stamp_steps = tuple(int(x) for x in a[6:].split(","))
        elif a.startswith("stf="): opt.stf = " " + a[4:].replace("+", " ")
        elif a.startswith("exp="): opt.exp = a[4:]
    build_all(out, with_att=("noatt" not in sys.argv and att_role is not None))
    build(out)
    print("built", out)
```

```python
from g2_common import *

KV_GROUP_BYTES = 36 * 1024

def att_role(A, c):
    A.reset()
    L = lambda s: "%s_c%d" % (s, c)
    def xf(u, kk): return 4 * (18 * u + kk)
    ACC = 144
    WR = 216; NF = 5
    vTR = 236
    vDM = 244
    vL, vT0, vT1, vT2, vT3 = 247, 248, 249, 250, 251
    vRSl = 252
    vDX = 252
    vPZ, vPA = 254, 255
    XS = 65536
    USZ = 24576; PSZ = 12288
    EX = 73728
    PQ = 98304
    KVF = PQ + 36864
    ZF = KVF + 13824
    STB = ZF + 13824
    assert STB + 1024 == 163840
    CH = 55296
    S_MB = S_E0
    A.comment("---- ATT role, wave group %d ----" % c)
    stamp(A, 9)
    A("v_and_b32 v%d, 63, v0" % vL)
    A("v_mov_b32 v%d, v0" % ACC)
    x_unit_setup(A, vL, vDX, vT0, vT1, vT2, vT3, XS)
    for kb in range(6): x_unit_dma(A, kb, vDX, 6)
    srd(A, SRD_A, S_WQKV, S_WQKV + 1, D * 3 * D * 2)
    def piece_pattern(q, emit_row):
        A("v_add_u32 v%d, %d, v%d" % (vT0, 64 * q, vL))
        A("v_mul_u32_u24 v%d, 2731, v%d" % (vT1, vT0))
        A("v_lshrrev_b32 v%d, 16, v%d" % (vT1, vT1))
        A("v_mul_u32_u24 v%d, 24, v%d" % (vT2, vT1))
        A("v_sub_u32 v%d, v%d, v%d" % (vT2, vT0, vT2))
        emit_row()
    A("s_lshr_b32 s%d, s%d, 1" % (S_T0, S_R)); A("s_lshl_b32 s%d, s%d, 4" % (S_T0, S_T0))
    A("s_and_b32 s%d, s%d, 1" % (S_T1, S_R)); A("s_lshl_b32 s%d, s%d, 2" % (S_T1, S_T1))
    A("s_add_u32 s%d, s%d, s%d" % (S_T0, S_T0, S_T1))
    A("s_lshl_b32 s%d, s%d, 8" % (S_T1, S_ROLE))
    for q in range(3):
        def row(q=q):
            A("v_and_b32 v%d, 6, v%d" % (vT3, vT1))
            A("v_xor_b32 v%d, v%d, v%d" % (vT2, vT2, vT3))
            A("v_lshrrev_b32 v%d, 2, v%d" % (vT3, vT1))
            A("v_lshlrev_b32 v%d, 3, v%d" % (vT3, vT3))
            A("v_and_b32 v%d, 3, v%d" % (vT1, vT1))
            A("v_add_u32 v%d, v%d, v%d" % (vT1, vT1, vT3))
            A("v_add_u32 v%d, s%d, v%d" % (vT1, S_T0, vT1))
            A("v_mul_u32_u24 v%d, 3456, v%d" % (vT1, vT1))
            A("v_lshl_add_u32 v%d, v%d, 4, v%d" % (vT1, vT2, vT1))
            A("v_add_u32 v%d, s%d, v%d" % (vDM + q, S_T1, vT1))
        piece_pattern(q, row)
    A("s_mul_i32 s%d, s%d, 3072" % (S_MB, S_R))
    if c: A("s_add_u32 s%d, s%d, %d" % (S_MB, S_MB, PSZ))
    NUA = 27
    DPOS = [(0, 2, 4), (1, 3, 5)]
    def wdma1(un, q):
        if un >= NUA: return
        slot = un % 4
        if un < 18: so = un * 32 * 3456 + (1 + c) * 1152
        else: so = (un - 18) * 64 * 3456 + c * 32 * 3456
        A("s_add_u32 m0, s%d, %d" % (S_MB, slot * USZ + q * 1024))
        A("s_mov_b32 s%d, %d" % (S_T3, so))
        A("buffer_load_dwordx4 v%d, s[%d:%d], s%d offen lds" % (vDM + q, SRD_A, SRD_A + 3, S_T3))
        A.vm.issue(("wa", un, q))
    def wdma(un):
        for q in range(3): wdma1(un, q)
    A("s_mul_i32 s%d, s%d, %d" % (S_T0, S_TILE, 4 * 36 * 1024))
    A("s_add_u32 s%d, s%d, %d" % (S_T0, S_T0, WS_OF))
    A("s_add_u32 s%d, s%d, s%d" % (SRD_P, S_WS, S_T0)); A("s_addc_u32 s%d, s%d, 0" % (SRD_P + 1, S_WS + 1))
    A("s_and_b32 s%d, s%d, 0xffff" % (SRD_P + 1, SRD_P + 1)); A("s_mov_b32 s%d, %d" % (SRD_P + 2, 4 * 36 * 1024)); A("s_mov_b32 s%d, 0x20000" % (SRD_P + 3))
    A("s_mul_i32 s%d, s%d, %d" % (S_T0, S_ROLE, KV_GROUP_BYTES))
    A("s_add_u32 s%d, s%d, %d" % (S_T0, S_T0, WS_KV))
    A("s_add_u32 s%d, s%d, s%d" % (SRD_KV, S_WS, S_T0)); A("s_addc_u32 s%d, s%d, 0" % (SRD_KV + 1, S_WS + 1))
    A("s_and_b32 s%d, s%d, 0xffff" % (SRD_KV + 1, SRD_KV + 1)); A("s_mov_b32 s%d, %d" % (SRD_KV + 2, KV_GROUP_BYTES)); A("s_mov_b32 s%d, 0x20000" % (SRD_KV + 3))
    srd(A, SRD_D, S_DBG, S_DBG + 1, 256)
    A("s_cmp_lg_u32 s%d, 0" % S_TILE)
    A("s_cbranch_scc1 %s" % L("L_att_nozero"))
    for q in range(4): A("v_mov_b32 v%d, 0" % (ACC + 4 + q))
    A("v_lshlrev_b32 v%d, 4, v%d" % (ACC + 1, ACC))
    for q in range(5):
        A("s_mov_b32 s%d, %d" % (S_T3, q * 8192))
        A("buffer_store_dwordx4 v[%d:%d], v%d, s[%d:%d], s%d offen sc0 sc1" % (ACC + 4, ACC + 7, ACC + 1, SRD_KV, SRD_KV + 3, S_T3))
    A("s_waitcnt vmcnt(0)")
    A("s_barrier")
    A("v_mov_b32 v%d, 1" % (ACC + 2))
    A("s_lshl_b32 s%d, s%d, 2" % (S_T0, S_ROLE)); A("s_add_u32 s%d, s%d, 64" % (S_T0, S_T0))
    A("v_mov_b32 v%d, 0x7fffff00" % (ACC + 3)); A("v_mov_b32 v%d, s%d" % (ACC + 4, S_T0))
    A("v_cmp_eq_u32 vcc, 0, v%d" % ACC)
    A("s_nop 1")
    A("v_cndmask_b32 v%d, v%d, v%d, vcc" % (ACC + 3, ACC + 3, ACC + 4))
    A("buffer_atomic_add v%d, v%d, s[%d:%d], 0 offen sc1" % (ACC + 2, ACC + 3, SRD_D, SRD_D + 3))
    A("s_waitcnt vmcnt(0)")
    A.label(L("L_att_nozero"))
    A("v_lshrrev_b32 v%d, 4, v%d" % (vT0, vL))
    A("v_lshrrev_b32 v%d, 1, v%d" % (vT1, vT0)); A("v_lshlrev_b32 v%d, 4, v%d" % (vT1, vT1))
    A("v_and_b32 v%d, 1, v%d" % (vT2, vT0)); A("v_lshlrev_b32 v%d, 2, v%d" % (vT2, vT2))
    A("v_add_u32 v%d, v%d, v%d" % (vT1, vT1, vT2))
    A("v_lshrrev_b32 v%d, 2, v%d" % (vT2, vL)); A("v_and_b32 v%d, 3, v%d" % (vT2, vT2))
    A("v_add_u32 v%d, v%d, v%d" % (vT1, vT1, vT2))
    A("v_and_b32 v%d, 6, v%d" % (vT3, vT1))
    A("v_mul_u32_u24 v%d, 384, v%d" % (vT1, vT1))
    A("v_and_b32 v%d, 3, v%d" % (vT2, vL))
    A("v_lshl_add_u32 v%d, v%d, 3, v%d" % (vT1, vT2, vT1))
    for j in range(4):
        A("s_lshl_b32 s%d, s%d, 1" % (S_T0, S_ROLE)); A("s_add_u32 s%d, s%d, %d" % (S_T0, S_T0, 2 * j))
        A("s_and_b32 s%d, s%d, 7" % (S_T1, S_T0)); A("s_lshr_b32 s%d, s%d, 3" % (S_T0, S_T0)); A("s_lshl_b32 s%d, s%d, 7" % (S_T0, S_T0))
        A("v_xor_b32 v%d, s%d, v%d" % (vT2, S_T1, vT3))
        A("v_lshl_add_u32 v%d, v%d, 4, v%d" % (vT2, vT2, vT1))
        A("v_add_u32 v%d, s%d, v%d" % (vTR + j, S_T0, vT2))
        A("v_add_u32 v%d, %d, v%d" % (vTR + 4 + j, 2 * USZ, vTR + j))
    vXR = ACC + 8
    A("v_and_b32 v%d, 15, v%d" % (vT1, vL))
    A("v_lshrrev_b32 v%d, 1, v%d" % (vT2, vT1))
    A("v_xor_b32 v%d, v%d, v%d" % (vT2, vT2, vT0))
    A("v_lshlrev_b32 v%d, 4, v%d" % (vT2, vT2))
    A("s_lshl_b32 s%d, s%d, 5" % (S_T0, S_R))
    A("v_add_u32 v%d, s%d, v%d" % (vT3, S_T0, vT1))
    A("v_lshl_add_u32 v%d, v%d, 7, v%d" % (vT2, vT3, vT2))
    A("v_add_u32 v%d, %d, v%d" % (vXR, XS, vT2))
    A("v_xor_b32 v%d, 64, v%d" % (vXR + 1, vXR))
    A("v_add_u32 v%d, 0x10000, v%d" % (vXR + 2, vXR)); A("v_add_u32 v%d, 0x10000, v%d" % (vXR + 3, vXR + 1))
    vSL = ACC + 12
    A("v_lshlrev_b32 v%d, 2, v%d" % (vSL, vT3)); A("v_add_u32 v%d, %d, v%d" % (vSL, STB, vSL))
    vS = ACC + 16
    for q in range(4): A("v_mov_b32 v%d, 0" % (vS + q))
    def xread(kb, e, u):
        slot = kb % 6; kk = 2 * kb + e
        if slot < 4: A("ds_read_b128 v[%d:%d], v%d offset:%d" % (xf(u, kk), xf(u, kk) + 3, vXR + e, slot * 16384 + u * 2048))
        else: A("ds_read_b128 v[%d:%d], v%d offset:%d" % (xf(u, kk), xf(u, kk) + 3, vXR + 2 + e, (slot - 4) * 16384 + u * 2048))
        A.lg.issue(("xf", u, kk))
    def stats(u, kk):
        for e in range(4):
            rg = xf(u, kk) + e
            A("v_dot2_f32_bf16 v%d, v%d, s%d, v%d" % (vS + (e & 1), rg, S_ONES, vS + (e & 1)))
            A("v_dot2_f32_bf16 v%d, v%d, v%d, v%d" % (vS + 2 + (e & 1), rg, rg, vS + 2 + (e & 1)))
    stamp(A)
    for g in range(3):
        A.wait(vm=[("x", 3 * g + 2, 1)])
        A("s_barrier")
        if g == 1:
            for kb in range(6, 9): x_unit_dma(A, kb, vDX, 6)
            wdma(0)
        own = [(kb, e) for kb in range(3 * g, 3 * g + 3) for e in range(2)]
        for kb, e in own: xread(kb, e, c)
        for kb, e in own: xread(kb, e, 1 - c)
        for kb, e in own:
            A.wait(lg=[("xf", c, 2 * kb + e)])
            stats(c, 2 * kb + e)
        A.wait(lg=[("xf", 1 - c, 2 * own[-1][0] + 1)])
        if g == 2:
            wdma(1)
            if opt.touch:
                A("s_and_b32 s%d, s%d, 7" % (S_T0, S_TILE)); A("s_lshl_b32 s%d, s%d, 3" % (S_T0, S_T0)); A("s_add_u32 s%d, s%d, s%d" % (S_T0, S_T0, S_WAVE))
                A("s_mul_i32 s%d, s%d, 9" % (S_T1, S_T0))
                A("v_mul_u32_u24 v%d, 21846, v%d" % (vT0, vL)); A("v_lshrrev_b32 v%d, 16, v%d" % (vT0, vT0))
                A("v_mul_u32_u24 v%d, 3, v%d" % (vT1, vT0)); A("v_sub_u32 v%d, v%d, v%d" % (vT1, vL, vT1))
                A("v_add_u32 v%d, s%d, v%d" % (vT0, S_T1, vT0))
                A("v_mul_u32_u24 v%d, 3456, v%d" % (vT0, vT0))
                A("v_lshl_add_u32 v%d, v%d, 7, v%d" % (vT0, vT1, vT0))
                A("s_lshl_b32 s%d, s%d, 8" % (S_T1, S_ROLE))
                A("v_add_u32 v%d, s%d, v%d" % (vT0, S_T1, vT0))
                A("v_mov_b32 v%d, 0x7fffff00" % vT2)
                A("v_cmp_gt_u32 vcc, 27, v%d" % vL)
                A("s_nop 1")
                A("v_cndmask_b32 v%d, v%d, v%d, vcc" % (vT0, vT2, vT0))
                A("buffer_load_dword v%d, v%d, s[%d:%d], 0 offen" % (vPZ, vT0, SRD_A, SRD_A + 3))
                A.vm.issue(("touch", 0))
    A("s_nop 1")
    A("v_add_f32 v%d, v%d, v%d" % (vS, vS, vS + 1)); A("v_add_f32 v%d, v%d, v%d" % (vS + 2, vS + 2, vS + 3))
    xsum16(A, vS, vS + 1); xsum32(A, vS, vS + 1)
    xsum16(A, vS + 2, vS + 3); xsum32(A, vS + 2, vS + 3)
    A("v_mul_f32 v%d, 0x%x, v%d" % (vS, INV576, vS))
    A("v_mul_f32 v%d, 0x%x, v%d" % (vS + 2, INV576, vS + 2))
    A("v_fma_f32 v%d, -v%d, v%d, v%d" % (vS + 2, vS, vS, vS + 2))
    A("v_max_f32 v%d, 0, v%d" % (vS + 2, vS + 2))
    A("v_add_f32 v%d, 0x%x, v%d" % (vS + 2, EPS_LN, vS + 2))
    A("v_sub_f32 v%d, 0, v%d" % (vS, vS))
    A("v_rsq_f32 v%d, v%d" % (vRSl + c, vS + 2))
    A("s_nop 0")
    A("ds_write_b32 v%d, v%d offset:%d" % (vSL, vS, 64 * c))
    A("ds_write_b32 v%d, v%d offset:%d" % (vSL, vRSl + c, 512 + 64 * c))
    A("s_waitcnt lgkmcnt(0)"); A.lg.all()
    A("s_barrier")
    wdma(2)
    A("ds_read_b32 v%d, v%d offset:%d" % (vS + 1, vSL, 64 * (1 - c)))
    A("ds_read_b32 v%d, v%d offset:%d" % (vRSl + 1 - c, vSL, 512 + 64 * (1 - c)))
    stamp(A)
    TC = ACC + 24
    def center(u, nm):
        for n in range(xf(u, 0), xf(u, 0) + 72, 4):
            for e in range(4):
                A("v_dot2_f32_bf16 v%d, v%d, s%d, v%d" % (TC + 2*e, n + e, S_SEL0, nm))
                A("v_dot2_f32_bf16 v%d, v%d, s%d, v%d" % (TC + 2*e + 1, n + e, S_SEL1, nm))
            A("s_nop 0")
            for e in range(4):
                A("v_cvt_pk_bf16_f32 v%d, v%d, v%d" % (n + e, TC + 2*e, TC + 2*e + 1))
    center(c, vS)
    A("s_waitcnt lgkmcnt(0)")
    center(1 - c, vS + 1)
    stamp(A)

    if c == 0: kvt = [(0, t) for t in range(5)] + [(1, t) for t in range(4)]
    else: kvt = [(0, t) for t in range(5, 9)] + [(1, t) for t in range(4, 9)]
    qt = list(range(5)) if c == 0 else list(range(5, 9))
    def addr(un, part, t):
        slot = un % 4
        base = vTR + (t & 3) + (4 if slot >= 2 else 0)
        return base, (slot & 1) * USZ + part * PSZ + 128 * (t >> 2)
    seq = []
    for n in range(18):
        for i, (part, t) in enumerate(kvt): seq.append((n,) + addr(n, part, t) + (1, i, n))
    for n in range(18, 27):
        for ks in range(2):
            for i, t in enumerate(qt): seq.append((n,) + addr(n, ks, t) + (3, i, 2 * (n - 18) + ks))
    def fread(phi):
        if phi >= len(seq): return
        un, base, off = seq[phi][:3]
        f = WR + 4 * (phi % NF)
        for h in range(2):
            A("ds_read_b64_tr_b16 v[%d:%d], v%d offset:%d" % (f + 2*h, f + 2*h + 1, base, off + 3072 * h))
            A.lg.issue(("f", phi, h))
    A.wait(vm=[("wa", 0, 2)])
    A("s_barrier")
    for phi in range(NF): fread(phi)
    def group(phi):
        def fn():
            un, base, off, kind, i, kk = seq[phi]
            f = WR + 4 * (phi % NF)
            if not (opt.exp == "nord" and kind == 1): A.wait(lg=[("f", phi, 1)])
            for u in range(2):
                acc = ACC + 8 * i + 4 * u
                cs = "0" if kk == 0 else "v[%d:%d]" % (acc, acc + 3)
                if kind == 1:
                    A("v_mfma_f32_16x16x32_bf16 v[%d:%d], v[%d:%d], v[%d:%d], %s" % (acc, acc + 3, xf(u, kk), xf(u, kk) + 3, f, f + 3, cs))
                else:
                    A("v_mfma_f32_16x16x32_bf16 v[%d:%d], v[%d:%d], v[%d:%d], %s" % (acc, acc + 3, f, f + 3, xf(u, kk), xf(u, kk) + 3, cs))
            if phi + NF < len(seq) and seq[phi + NF][3] == kind:
                if opt.exp == "nord" and kind == 1:
                    A.lg.issue(("f", phi + NF, 0)); A.lg.issue(("f", phi + NF, 1))
                else: fread(phi + NF)
        return fn
    def run_steps(n_lo, n_hi, xvm={}, xblk={}, skip=()):
        for n in range(n_lo, n_hi):
            A.comment("att step %d" % n)
            nx = n + 1
            need = ([("wa", nx, 2)] if (nx < NUA and nx not in skip) else []) + xvm.get(n, [])
            phis = [p for p in range(len(seq)) if seq[p][0] == n]
            A.wait(vm=need or None)
            if not (opt.exp == "nobar" and n < 18): A("s_barrier")
            pos = {DPOS[c][q]: q for q in range(3)}
            for idx, p in enumerate(phis):
                group(p)()
                if idx in pos and (n + 3) not in skip:
                    if opt.exp == "nodma" and n < 15: A.vm.issue(("wa", n + 3, pos[idx]))
                    else: wdma1(n + 3, pos[idx])
                if idx == 6:
                    for fn in xblk.get(n, []): fn()
    def zpoll_issue():
        A("s_lshl_b32 s%d, s%d, 2" % (S_T0, S_ROLE)); A("s_add_u32 s%d, s%d, 64" % (S_T0, S_T0))
        A("v_mov_b32 v%d, s%d" % (vPA, S_T0))
        A("buffer_load_dword v%d, v%d, s[%d:%d], 0 offen sc1" % (vPZ, vPA, SRD_D, SRD_D + 3))
        A.vm.issue(("zp",))
    def poll_finish(tag, target):
        lab = A.newlabel("L_poll"); ok = A.newlabel("L_pollok")
        A.wait(vm=[tag])
        A("s_mov_b32 s%d, 0" % S_T1)
        A.label(lab)
        A("v_readfirstlane_b32 s%d, v%d" % (S_T0, vPZ))
        A("s_add_u32 s%d, s%d, 1" % (S_T1, S_T1))
        A("s_nop 2")
        A("s_cmp_ge_u32 s%d, %d" % (S_T0, target))
        A("s_cbranch_scc1 %s" % ok)
        A("s_cmp_ge_u32 s%d, 50000" % S_T1)
        A("s_cbranch_scc1 %s" % ok)
        A("s_sleep 2")
        A("buffer_load_dword v%d, v%d, s[%d:%d], 0 offen sc1" % (vPZ, vPA, SRD_D, SRD_D + 3))
        A("s_waitcnt vmcnt(0)")
        A("s_branch %s" % lab)
        A.label(ok)
    if opt.exp == "rep1":
        A("s_mov_b32 s59, 0")
        A.label(L("L_rep1"))
        A.nstamp -= 1; stamp(A)
    run_steps(0, 18, xblk={14: [zpoll_issue]}, skip=(19,))
    if opt.exp == "rep1":
        A("s_add_u32 s59, s59, 1"); A("s_cmp_lt_u32 s59, 2"); A("s_cbranch_scc1 %s" % L("L_rep1"))
    stamp(A)
    stamp(A, 1)
    def phi_vals(regs, temps, rc=None):
        nt = len(temps)
        for i0 in range(0, len(regs), nt):
            grp = list(zip(regs[i0:i0 + nt], temps, rc[i0:i0 + nt]))
            for r_, t_, (sl, s1) in grp: A("v_mul_f32 v%d, v%d, v%d" % (t_, r_, sl))
            for r_, t_, _ in grp: A("v_min_f32 v%d, 0, v%d" % (t_, t_))
            for r_, t_, _ in grp: A("v_exp_f32 v%d, v%d" % (t_, t_))
            for r_, t_, _ in grp: A("v_max_f32 v%d, 0, v%d" % (r_, r_))
            for r_, t_, _ in grp: A("v_add_f32 v%d, 0x%x, v%d" % (t_, C1E6, t_))
            for r_, t_, (sl, s1) in grp: A("v_fma_f32 v%d, v%d, v%d, v%d" % (r_, r_, s1, t_))
    RC = WR; RL = WR + 8
    TP = [WR + 16 + i for i in range(4)] + [vT1, vT2, vT3, vPA]
    A("v_lshrrev_b32 v%d, 4, v%d" % (vT0, vL)); A("v_lshlrev_b32 v%d, 4, v%d" % (vT0, vT0))
    A("s_lshl_b32 s%d, s%d, 7" % (S_T0, S_R)); A("s_add_u32 s%d, s%d, %d" % (S_T0, S_T0, STB + 512))
    A("v_add_u32 v%d, s%d, v%d" % (vT0, S_T0, vT0))
    A("ds_read_b128 v[%d:%d], v%d" % (RC, RC + 3, vT0))
    A("ds_read_b128 v[%d:%d], v%d offset:64" % (RC + 4, RC + 7, vT0))
    poll_finish(("zp",), 1)
    A("s_waitcnt lgkmcnt(0)"); A.lg.all()
    stamp(A, 1)
    for q in range(8): A("v_mul_f32 v%d, s%d, v%d" % (RL + q, S_L2E, RC + q))
    nk = 5 if c == 0 else 4
    phi_vals(list(range(ACC, ACC + 8 * nk)), TP, [(RL + (i % 8), RC + (i % 8)) for i in range(8 * nk)])
    for i in range(8 * nk, 72): A("v_mul_f32 v%d, v%d, v%d" % (ACC + i, ACC + i, RC + (i % 8)))
    stamp(A, 1)
    vEW = vT0
    A("s_mul_i32 s%d, s%d, 18432" % (S_T0, S_R)); A("s_add_u32 s%d, s%d, %d" % (S_T0, S_T0, EX))
    A("v_lshl_add_u32 v%d, v%d, 4, s%d" % (vEW, vL, S_T0))
    for i, (part, t) in enumerate(kvt):
        b = ACC + 8 * i
        A("v_cvt_pk_bf16_f32 v%d, v%d, v%d" % (b, b, b + 1)); A("v_cvt_pk_bf16_f32 v%d, v%d, v%d" % (b + 1, b + 2, b + 3))
        A("v_cvt_pk_bf16_f32 v%d, v%d, v%d" % (b + 2, b + 4, b + 5)); A("v_cvt_pk_bf16_f32 v%d, v%d, v%d" % (b + 3, b + 6, b + 7))
        A("ds_write_b128 v%d, v[%d:%d] offset:%d" % (vEW, b, b + 3, (part * 9 + t) * 1024))
    A("s_waitcnt lgkmcnt(0)"); A.lg.all()
    stamp(A, 1)
    A("s_barrier")
    stamp(A); stamp(A, 1)
    FA, FB = ACC, ACC + 16
    HD, HE, ONESF = WR, WR + 4, WR + 8
    KS = [WR + 12, WR + 16, ACC + 64, ACC + 68]
    vER, vAT, vG4, vE16 = vT0, vT1, vT2, vT3
    A("v_lshlrev_b32 v%d, 4, v%d" % (vER, vL)); A("v_add_u32 v%d, %d, v%d" % (vER, EX, vER))
    A("v_lshlrev_b32 v%d, 2, v%d" % (vAT, vL))
    A("v_lshrrev_b32 v%d, 4, v%d" % (vG4, vL)); A("v_lshlrev_b32 v%d, 2, v%d" % (vG4, vG4))
    A("v_and_b32 v%d, 15, v%d" % (vE16, vL))
    for q in range(4): A("v_mov_b32 v%d, s%d" % (ONESF + q, S_ONES))
    vAD = vPZ
    def head_rows():
        A("s_lshl_b32 s%d, s%d, 4" % (S_T0, S_A))
        for rr in range(4):
            A("v_add_u32 v%d, s%d, v%d" % (HD + rr, S_T0, vG4))
            if rr: A("v_add_u32 v%d, %d, v%d" % (HD + rr, rr, HD + rr))
            A("v_mul_u32_u24 v%d, 3641, v%d" % (HD + rr, HD + rr))
            A("v_lshrrev_b32 v%d, 16, v%d" % (HD + rr, HD + rr))
    def read_a():
        A("s_lshl_b32 s%d, s%d, 10" % (S_T0, S_A))
        A("v_add_u32 v%d, s%d, v%d" % (vAD, S_T0, vER))
        for r_ in range(4): A("ds_read_b128 v[%d:%d], v%d offset:%d" % (FA + 4*r_, FA + 4*r_ + 3, vAD, r_ * 18432))
    def read_b(sreg_b, dst):
        A("s_add_u32 s%d, s%d, 9" % (S_T0, sreg_b)); A("s_lshl_b32 s%d, s%d, 10" % (S_T0, S_T0))
        A("v_add_u32 v%d, s%d, v%d" % (vAD + 1, S_T0, vER))
        for r_ in range(4): A("ds_read_b128 v[%d:%d], v%d offset:%d" % (dst + 4*r_, dst + 4*r_ + 3, vAD + 1, r_ * 18432))
    def mm(dst, bsrc):
        for r_ in range(4):
            cs = "0" if r_ == 0 else "v[%d:%d]" % (dst, dst + 3)
            A("v_mfma_f32_16x16x32_bf16 v[%d:%d], v[%d:%d], v[%d:%d], %s" % (dst, dst + 3, FA + 4*r_, FA + 4*r_ + 3, bsrc(r_), bsrc(r_) + 3, cs))
    def mask_add(src, sreg_b, sreg_off, tag):
        if sreg_b is not None:
            A("s_lshl_b32 s%d, s%d, 4" % (S_T0, sreg_b))
            A("v_add_u32 v%d, s%d, v%d" % (HE, S_T0, vE16))
            A("v_mul_u32_u24 v%d, 3641, v%d" % (HE, HE))
            A("v_lshrrev_b32 v%d, 16, v%d" % (HE, HE))
            for rr in range(4):
                A("v_cmp_eq_u32 s[%d:%d], v%d, v%d" % (84 + 2 * (rr & 1), 85 + 2 * (rr & 1), HD + rr, HE)) if False else None
            for rr in range(4):
                A("v_cmp_eq_u32 vcc, v%d, v%d" % (HD + rr, HE))
                A("s_nop 1")
                A("v_cndmask_b32 v%d, 0, v%d, vcc" % (src + rr, src + rr))
        for rr in range(4):
            A("buffer_atomic_add_f32 v%d, v%d, s[%d:%d], s%d offen offset:%d" % (src + rr, vAT, SRD_KV, SRD_KV + 3, sreg_off, rr * 256))
            A.vm.issue(("at", tag, rr))
    SB = [S_B, S_E3, 59]
    SO = [93, 94, 95]
    A("s_mov_b32 s%d, s%d" % (S_A, S_WAVE))
    read_a()
    for j, db in enumerate((-1, 0, 1)):
        A("s_add_i32 s%d, s%d, %d" % (S_T2, S_A, db))
        A("s_max_i32 s%d, s%d, 0" % (SB[j], S_T2))
        A("s_mul_i32 s%d, s%d, 3" % (SO[j], S_A)); A("s_add_u32 s%d, s%d, %d" % (SO[j], SO[j], j))
        A("s_cmp_eq_u32 s%d, s%d" % (SB[j], S_T2))
        A("s_cselect_b32 s%d, s%d, 0x1fffff" % (SO[j], SO[j]))
        A("s_lshl_b32 s%d, s%d, 10" % (SO[j], SO[j]))
        read_b(SB[j], FB + 16 * j)
    head_rows()
    A("s_waitcnt lgkmcnt(12)")
    mm(KS[3], lambda r_: ONESF)
    A("s_waitcnt lgkmcnt(0)")
    for j in range(3): mm(KS[j], lambda r_, j=j: FB + 16 * j + 4 * r_)
    stamp(A, 1)
    A("s_add_u32 s%d, s%d, 27" % (S_T2, S_A)); A("s_lshl_b32 s%d, s%d, 10" % (S_T2, S_T2))
    A("s_nop 4")
    mask_add(KS[3], None, S_T2, "z")
    for j in range(3): mask_add(KS[j], SB[j], SO[j], j)
    if c == 1:
        A("s_cmp_eq_u32 s%d, 0" % S_R)
        A("s_cbranch_scc1 %s" % L("L_kv8_rd"))
        A("s_mov_b32 s%d, 8" % S_A)
        read_a()
        A("s_add_u32 s%d, s%d, 6" % (SB[0], S_R)); A("s_min_u32 s%d, s%d, 8" % (SB[0], SB[0]))
        read_b(SB[0], FB)
        A("s_waitcnt lgkmcnt(0)")
        A.label(L("L_kv8_rd"))
    stamp(A, 1)
    A("s_barrier")
    stamp(A, 1)
    wdma(19)
    if c == 1:
        A("s_cmp_eq_u32 s%d, 0" % S_R)
        A("s_cbranch_scc1 %s" % L("L_kv8_done"))
        head_rows()
        sv = (list(A.vm.ops), A.vm.done)
        A("s_cmp_eq_u32 s%d, 3" % S_R)
        A("s_cbranch_scc1 %s" % L("L_kv8_z"))
        A("s_add_u32 s%d, s%d, 23" % (SO[0], S_R)); A("s_lshl_b32 s%d, s%d, 10" % (SO[0], SO[0]))
        mm(KS[0], lambda r_: FB + 4 * r_)
        A("s_nop 7"); A("s_nop 1")
        mask_add(KS[0], SB[0], SO[0], "x")
        A("s_branch %s" % L("L_kv8_drain"))
        A.label(L("L_kv8_z"))
        mm(KS[0], lambda r_: ONESF)
        A("s_mov_b32 s%d, %d" % (SO[0], 35 << 10))
        A("s_nop 7"); A("s_nop 1")
        mask_add(KS[0], None, SO[0], "y")
        A.label(L("L_kv8_drain"))
        A("s_waitcnt vmcnt(0)")
        A.vm.ops, A.vm.done = sv
        A.label(L("L_kv8_done"))
    A.lg.all()
    stamp(A); stamp(A, 1)
    first_q = [p for p in range(len(seq)) if seq[p][3] == 3][0]
    for phi in range(first_q, first_q + NF): fread(phi)
    def signal_kv():
        A("s_lshl_b32 s%d, s%d, 2" % (S_T0, S_ROLE)); A("s_add_u32 s%d, s%d, 80" % (S_T0, S_T0))
        A("v_mov_b32 v%d, 0x7fffff00" % vT0); A("v_mov_b32 v%d, s%d" % (vPA, S_T0))
        A("s_lshl_b32 s%d, s%d, 6" % (S_T1, S_WAVE))
        A("v_add_u32 v%d, s%d, v%d" % (vT2, S_T1, vL))
        A("v_cmp_eq_u32 vcc, 0, v%d" % vT2)
        A("v_mov_b32 v%d, 1" % vT3)
        A("s_nop 0")
        A("v_cndmask_b32 v%d, v%d, v%d, vcc" % (vT0, vT0, vPA))
        A("buffer_atomic_add v%d, v%d, s[%d:%d], 0 offen sc1" % (vT3, vT0, SRD_D, SRD_D + 3))
        A.vm.issue(("sig",))
    def kpoll_issue():
        A("buffer_load_dword v%d, v%d, s[%d:%d], 0 offen sc1" % (vPZ, vPA, SRD_D, SRD_D + 3))
        A.vm.issue(("kp",))
    KL, ZL, KL8, ZL8 = ACC + 40, ACC + 52, ACC + 56, ACC + 68
    def kv_loads(sreg_a, kl, zl, voff):
        A("s_mul_i32 s%d, s%d, 3072" % (S_T2, sreg_a))
        for j in range(3):
            for rr in range(4):
                A("buffer_load_dword v%d, v%d, s[%d:%d], s%d offen offset:%d sc1" % (kl + 4*j + rr, voff, SRD_KV, SRD_KV + 3, S_T2, j * 1024 + rr * 256))
        A("s_add_u32 s%d, s%d, 27" % (S_T2, sreg_a)); A("s_lshl_b32 s%d, s%d, 10" % (S_T2, S_T2))
        for rr in range(4):
            A("buffer_load_dword v%d, v%d, s[%d:%d], s%d offen offset:%d sc1" % (zl + rr, voff, SRD_KV, SRD_KV + 3, S_T2, rr * 256))
    def kv_loads_all(sfx):
        A("v_lshlrev_b32 v%d, 2, v%d" % (vT0, vL))
        kv_loads(S_WAVE, KL, ZL, vT0)
        if c == 0:
            A("s_cmp_lg_u32 s%d, 0" % S_R)
            A("s_cbranch_scc1 %s" % L("L_kvl8" + sfx))
            A("s_mov_b32 s%d, 8" % S_A)
            kv_loads(S_A, KL8, ZL8, vT0)
            A.label(L("L_kvl8" + sfx))
    S_KVOK = S_E1
    def kpoll_early():
        A.wait(vm=[("kp",)])
        A("v_readfirstlane_b32 s%d, v%d" % (S_T0, vPZ))
        A("s_mov_b32 s%d, 0" % S_KVOK)
        A("s_nop 2")
        A("s_cmp_lt_u32 s%d, 16" % S_T0)
        A("s_cbranch_scc1 %s" % L("L_kv_late"))
        A("s_mov_b32 s%d, 1" % S_KVOK)
        kv_loads_all("a")
        A.label(L("L_kv_late"))
    run_steps(18, 27, xvm={20: [("at", 2, 3)]}, xblk={20: [signal_kv], 23: [kpoll_issue], 25: [kpoll_early]})
    stamp(A)
    stamp(A, 2)
    A("s_cmp_eq_u32 s%d, 1" % S_KVOK)
    A("s_cbranch_scc1 %s" % L("L_kv_have"))
    A.vm.issue(("kp2",)); A.vm.all()
    A("s_waitcnt vmcnt(0)")
    A("buffer_load_dword v%d, v%d, s[%d:%d], 0 offen sc1" % (vPZ, vPA, SRD_D, SRD_D + 3))
    A("s_waitcnt vmcnt(0)")
    lab = A.newlabel("L_poll"); ok = A.newlabel("L_pollok")
    A("s_mov_b32 s%d, 0" % S_T1)
    A.label(lab)
    A("v_readfirstlane_b32 s%d, v%d" % (S_T0, vPZ))
    A("s_add_u32 s%d, s%d, 1" % (S_T1, S_T1))
    A("s_nop 2")
    A("s_cmp_ge_u32 s%d, 16" % S_T0)
    A("s_cbranch_scc1 %s" % ok)
    A("s_cmp_ge_u32 s%d, 50000" % S_T1)
    A("s_cbranch_scc1 %s" % ok)
    A("s_sleep 2")
    A("buffer_load_dword v%d, v%d, s[%d:%d], 0 offen sc1" % (vPZ, vPA, SRD_D, SRD_D + 3))
    A("s_waitcnt vmcnt(0)")
    A("s_branch %s" % lab)
    A.label(ok)
    kv_loads_all("b")
    A.label(L("L_kv_have"))
    stamp(A, 2)
    nq = len(qt)
    RLQ = WR
    for u in range(2): A("v_mul_f32 v%d, s%d, v%d" % (RLQ + u, S_L2E, vRSl + u))
    TP3 = [WR + 2 + i for i in range(8)]
    vPQ = vT1
    A("s_mul_i32 s%d, s%d, %d" % (S_T0, S_R, 2 * 9 * 512)); A("s_add_u32 s%d, s%d, %d" % (S_T0, S_T0, PQ))
    A("v_lshl_add_u32 v%d, v%d, 3, s%d" % (vPQ, vL, S_T0))
    for i, t in enumerate(qt):
        regs = list(range(ACC + 8 * i, ACC + 8 * i + 8))
        phi_vals(regs, TP3, [(RLQ + (k // 4), vRSl + (k // 4)) for k in range(8)])
        for u in range(2):
            b = ACC + 8 * i + 4 * u
            A("v_cvt_pk_bf16_f32 v%d, v%d, v%d" % (b, b, b + 1)); A("v_cvt_pk_bf16_f32 v%d, v%d, v%d" % (b + 1, b + 2, b + 3))
            A("ds_write_b64 v%d, v[%d:%d] offset:%d" % (vPQ, b, b + 1, u * 9 * 512 + t * 512))
    stamp(A); stamp(A, 2)
    HD, HE, ZT, PKT, vFW = 24, 28, 32, 36, 30
    vG4, vE16 = vT2, vT3
    A("v_lshrrev_b32 v%d, 4, v%d" % (vG4, vL)); A("v_lshlrev_b32 v%d, 2, v%d" % (vG4, vG4))
    A("v_and_b32 v%d, 15, v%d" % (vE16, vL))
    def kvf(sreg_a, kl, zl):
        A("s_lshl_b32 s%d, s%d, 4" % (S_T0, sreg_a))
        for rr in range(4):
            A("v_add_u32 v%d, s%d, v%d" % (HD + rr, S_T0, vG4))
            if rr: A("v_add_u32 v%d, %d, v%d" % (HD + rr, rr, HD + rr))
            A("v_mul_u32_u24 v%d, 3641, v%d" % (HD + rr, HD + rr))
            A("v_lshrrev_b32 v%d, 16, v%d" % (HD + rr, HD + rr))
        A("s_mul_i32 s%d, s%d, %d" % (S_T0, sreg_a, 3 * 512)); A("s_add_u32 s%d, s%d, %d" % (S_T0, S_T0, KVF))
        A("v_lshl_add_u32 v%d, v%d, 3, s%d" % (vFW, vL, S_T0))
        for j in range(3):
            A("s_add_u32 s%d, s%d, %d" % (S_T0, sreg_a, j + 15)); A("s_lshl_b32 s%d, s%d, 4" % (S_T0, S_T0)); A("s_sub_u32 s%d, s%d, 256" % (S_T0, S_T0))
            A("v_add_u32 v%d, s%d, v%d" % (HE, S_T0, vE16))
            A("v_and_b32 v%d, 0xff, v%d" % (HE, HE))
            A("v_mul_u32_u24 v%d, 3641, v%d" % (HE, HE))
            A("v_lshrrev_b32 v%d, 16, v%d" % (HE, HE))
            for rr in range(4):
                A("v_cmp_eq_u32 vcc, v%d, v%d" % (HD + rr, HE))
                A("s_nop 1")
                A("v_cndmask_b32 v%d, 0, v%d, vcc" % (ZT + rr, zl + rr))
            A("v_cvt_pk_bf16_f32 v%d, v%d, v%d" % (PKT, kl + 4*j, kl + 4*j + 1)); A("v_cvt_pk_bf16_f32 v%d, v%d, v%d" % (PKT + 1, kl + 4*j + 2, kl + 4*j + 3))
            A("v_cvt_pk_bf16_f32 v%d, v%d, v%d" % (PKT + 2, ZT, ZT + 1)); A("v_cvt_pk_bf16_f32 v%d, v%d, v%d" % (PKT + 3, ZT + 2, ZT + 3))
            A("ds_write_b64 v%d, v[%d:%d] offset:%d" % (vFW, PKT, PKT + 1, j * 512))
            A("ds_write_b64 v%d, v[%d:%d] offset:%d" % (vFW, PKT + 2, PKT + 3, (ZF - KVF) + j * 512))
            A("s_nop 1")
    A("s_waitcnt vmcnt(0)"); A.vm.all()
    stamp(A, 2)
    kvf(S_WAVE, KL, ZL)
    if c == 0:
        A("s_cmp_lg_u32 s%d, 0" % S_R)
        A("s_cbranch_scc1 %s" % L("L_kvf8"))
        kvf(S_A, KL8, ZL8)
        A.label(L("L_kvf8"))
    A("s_waitcnt lgkmcnt(0)"); A.lg.all()
    stamp(A, 2)
    A("s_barrier")
    stamp(A, 2)
    PF = 40
    vPR = vT0
    A("s_lshl_b32 s%d, s%d, 1" % (S_T0, S_R)); A("s_add_u32 s%d, s%d, %d" % (S_T0, S_T0, c))
    A("s_mul_i32 s%d, s%d, %d" % (S_T0, S_T0, 9 * 512)); A("s_add_u32 s%d, s%d, %d" % (S_T0, S_T0, PQ))
    A("v_lshl_add_u32 v%d, v%d, 3, s%d" % (vPR, vL, S_T0))
    for t in range(9):
        A("ds_read_b64 v[%d:%d], v%d offset:%d" % (PF + 2*t, PF + 2*t + 1, vPR, t * 512))
    vKR = vT1
    A("v_lshlrev_b32 v%d, 3, v%d" % (vKR, vL)); A("v_add_u32 v%d, %d, v%d" % (vKR, KVF, vKR))
    KF = [60, 72]
    NUM, DEN, OT = 84, 120, 156
    def oread(b):
        st = KF[b & 1]
        al = [a for a in (b - 1, b, b + 1) if 0 <= a <= 8]
        for i_, a in enumerate(al):
            j = b - a + 1
            A("ds_read_b64 v[%d:%d], v%d offset:%d" % (st + 2*i_, st + 2*i_ + 1, vKR, (a * 3 + j) * 512))
            A("ds_read_b64 v[%d:%d], v%d offset:%d" % (st + 6 + 2*i_, st + 6 + 2*i_ + 1, vKR, (ZF - KVF) + (a * 3 + j) * 512))
        return 2 * len(al)
    oread(0)
    for b in range(9):
        st = KF[b & 1]
        al = [a for a in (b - 1, b, b + 1) if 0 <= a <= 8]
        nn = oread(b + 1) if b + 1 < 9 else 0
        A("s_waitcnt lgkmcnt(%d)" % nn)
        for i_, a in enumerate(al):
            cs = "0" if i_ == 0 else "v[%d:%d]" % (NUM + 4*b, NUM + 4*b + 3)
            A("v_mfma_f32_16x16x16_bf16 v[%d:%d], v[%d:%d], v[%d:%d], %s" % (NUM + 4*b, NUM + 4*b + 3, st + 2*i_, st + 2*i_ + 1, PF + 2*a, PF + 2*a + 1, cs))
        for i_, a in enumerate(al):
            cs = "0" if i_ == 0 else "v[%d:%d]" % (DEN + 4*b, DEN + 4*b + 3)
            A("v_mfma_f32_16x16x16_bf16 v[%d:%d], v[%d:%d], v[%d:%d], %s" % (DEN + 4*b, DEN + 4*b + 3, st + 6 + 2*i_, st + 6 + 2*i_ + 1, PF + 2*a, PF + 2*a + 1, cs))
        if b >= 2:
            bb = b - 2
            for i_ in range(4): A("v_add_f32 v%d, 0x%x, v%d" % (DEN + 4*bb + i_, C1E6, DEN + 4*bb + i_))
            for i_ in range(4): A("v_rcp_f32 v%d, v%d" % (DEN + 4*bb + i_, DEN + 4*bb + i_))
    stamp(A, 2)
    A("s_nop 7"); A("s_nop 3")
    for bb in (7, 8):
        for i_ in range(4): A("v_add_f32 v%d, 0x%x, v%d" % (DEN + 4*bb + i_, C1E6, DEN + 4*bb + i_))
        for i_ in range(4): A("v_rcp_f32 v%d, v%d" % (DEN + 4*bb + i_, DEN + 4*bb + i_))
    A("s_nop 0")
    vSO = 30
    A("v_and_b32 v%d, 15, v%d" % (vT1, vL))
    A("v_lshrrev_b32 v%d, 5, v%d" % (vT2, vL)); A("v_lshl_add_u32 v%d, v%d, 5, v%d" % (vT1, vT2, vT1))
    A("v_lshlrev_b32 v%d, 4, v%d" % (vT1, vT1))
    A("v_lshrrev_b32 v%d, 4, v%d" % (vT2, vL)); A("v_and_b32 v%d, 1, v%d" % (vT2, vT2)); A("v_lshl_add_u32 v%d, v%d, 3, v%d" % (vT1, vT2, vT1))
    A("s_mul_i32 s%d, s%d, 36" % (S_T0, S_R)); A("s_mul_i32 s%d, s%d, 9" % (S_T1, S_ROLE)); A("s_add_u32 s%d, s%d, s%d" % (S_T0, S_T0, S_T1))
    A("s_lshl_b32 s%d, s%d, 10" % (S_T0, S_T0)); A("s_add_u32 s%d, s%d, %d" % (S_T0, S_T0, 256 * c))
    A("v_add_u32 v%d, s%d, v%d" % (vSO, S_T0, vT1))
    for b in range(9):
        for i_ in range(4): A("v_mul_f32 v%d, v%d, v%d" % (NUM + 4*b + i_, NUM + 4*b + i_, DEN + 4*b + i_))
        A("v_cvt_pk_bf16_f32 v%d, v%d, v%d" % (OT + 2*b, NUM + 4*b, NUM + 4*b + 1)); A("v_cvt_pk_bf16_f32 v%d, v%d, v%d" % (OT + 2*b + 1, NUM + 4*b + 2, NUM + 4*b + 3))
        if b < 4: A("buffer_store_dwordx2 v[%d:%d], v%d, s[%d:%d], 0 offen offset:%d" % (OT + 2*b, OT + 2*b + 1, vSO, SRD_P, SRD_P + 3, b * 1024))
        else:
            A("s_movk_i32 s%d, %d" % (S_T2, b * 1024))
            A("buffer_store_dwordx2 v[%d:%d], v%d, s[%d:%d], s%d offen" % (OT + 2*b, OT + 2*b + 1, vSO, SRD_P, SRD_P + 3, S_T2))
    stamp(A, 9)
    stamp_flush(A)
    A("s_endpgm")
```

```python
import sys
from asmlib import *

S, D, F = 2048, 576, 4608
PART_BYTES = S * D * 2
NPART = 12
WS_KV = 40 << 20
WS_STAMP = 48 << 20
WS_OF = 32 << 20
LOG2E = 0x3fb8aa3b
EPS_LN = 0x3727c5ac
INV576 = 0x3ae38e39
C1E6 = 0x358637bd

class Opt:
    stamps = False
    stamp_steps = ()
    dbgt = False
    stf = ""
    exp = ""
    touch = True
    lvl = 0
    swave = 0
opt = Opt()

class Ctr:
    def __init__(self, maxv):
        self.ops = []; self.done = 0; self.maxv = maxv
    def issue(self, tag):
        self.ops.append(tag)
    def need(self, tags):
        idx = -1
        pos = {}
        for i, t in enumerate(self.ops): pos[t] = i
        for t in tags:
            assert t in pos, ("tag not issued", t)
            idx = max(idx, pos[t])
        if idx < self.done: return None
        n = min(len(self.ops) - 1 - idx, self.maxv)
        self.done = max(self.done, len(self.ops) - n)
        return n
    def all(self):
        self.done = len(self.ops)

class K(Asm):
    def __init__(self):
        super().__init__()
        self.reset()
        self.nstamp = 0
    def reset(self):
        self.vm = Ctr(63); self.lg = Ctr(15)
    def wait(self, vm=None, lg=None):
        a = self.vm.need(vm) if vm else None
        b = self.lg.need(lg) if lg else None
        parts = []
        if a is not None: parts.append("vmcnt(%d)" % a)
        if b is not None: parts.append("lgkmcnt(%d)" % b)
        if parts: self("s_waitcnt " + " ".join(parts))
    def waitall(self):
        self("s_waitcnt vmcnt(0) lgkmcnt(0)"); self.vm.all(); self.lg.all()

S_X, S_WQKV, S_WO, S_W1, S_W2, S_OUT, S_DBG, S_WS = 4, 6, 8, 12, 14, 16, 18, 20
S_A, S_B = 22, 23
SRD_X, SRD_A, SRD_B, SRD_P = 24, 28, 32, 36
S_WAVE, S_R, S_C, S_ROLE, S_TILE = 40, 41, 42, 43, 44
S_M0B, S_T0, S_T1, S_T2, S_T3 = 45, 46, 47, 48, 49
S_ONES, S_L2E, S_XM0, S_SEL0, S_SEL1 = 50, 51, 52, 53, 54
S_E0, S_E1, S_E2, S_E3 = 55, 56, 57, 58
SRD_KV, SRD_D = 8, 16
STAMP0 = 60

def stamp(A, lvl=0):
    if not opt.stamps: return
    if lvl != opt.lvl and not (lvl == 0 and opt.lvl == 0):
        if lvl != 9: return
    k = A.nstamp; A.nstamp += 1
    assert STAMP0 + 2 * k + 1 < 90
    A("s_memtime s[%d:%d]" % (STAMP0 + 2*k, STAMP0 + 1 + 2*k))
def stamp_flush(A):
    if opt.stamps:
        k = A.nstamp
        A("s_memrealtime s[90:91]")
        A("s_waitcnt lgkmcnt(0)")
        A("s_cmp_lg_u32 s%d, %d" % (S_WAVE, opt.swave))
        lab = A.newlabel("L_stamp_done")
        A("s_cbranch_scc1 %s" % lab)
        A("s_lshl_b32 s%d, s2, 7" % S_T0)
        A("s_add_u32 s%d, s%d, %d" % (S_T0, S_T0, WS_STAMP))
        A("s_add_u32 s56, s%d, s%d" % (S_WS, S_T0)); A("s_addc_u32 s57, s%d, 0" % (S_WS + 1))
        A("s_and_b32 s57, s57, 0xffff"); A("s_mov_b32 s58, 128"); A("s_mov_b32 s59, 0x20000")
        A("v_mov_b32 v250, 0")
        for j in range(k):
            A("v_mov_b32 v251, s%d" % (STAMP0 + 2*j))
            A("buffer_store_dword v251, v250, s[56:59], 0 offen offset:%d" % (4*j))
        A("v_mov_b32 v251, s90"); A("buffer_store_dword v251, v250, s[56:59], 0 offen offset:%d" % (4*k))
        A("v_mov_b32 v251, s92"); A("buffer_store_dword v251, v250, s[56:59], 0 offen offset:%d" % (4*(k+1)))
        A.label(lab)
    if opt.dbgt:
        lab = A.newlabel("L_dbgt")
        A("s_memrealtime s[62:63]")
        A("s_waitcnt lgkmcnt(0)")
        A("s_cmp_lg_u32 s%d, 0" % S_WAVE)
        A("s_cbranch_scc1 %s" % lab)
        A("s_add_u32 s64, s%d, %d" % (S_WS, WS_STAMP)); A("s_addc_u32 s65, s%d, 0" % (S_WS + 1)); A("s_and_b32 s65, s65, 0xffff")
        A("s_mov_b32 s66, 4096"); A("s_mov_b32 s67, 0x20000")
        A("s_lshl_b32 s68, s2, 3")
        A("s_mov_b64 exec, 1")
        A("v_mov_b32 v250, s92"); A("v_mov_b32 v251, s62"); A("v_mov_b32 v252, s68")
        A("buffer_store_dwordx2 v[250:251], v252, s[64:67], 0 offen")
        A.label(lab)
    A.nstamp = 0

def srd(A, sreg, lo, hi, nbytes):
    A("s_mov_b32 s%d, s%d" % (sreg, lo))
    A("s_and_b32 s%d, s%d, 0xffff" % (sreg + 1, hi))
    A("s_mov_b32 s%d, 0x%x" % (sreg + 2, nbytes))
    A("s_mov_b32 s%d, 0x20000" % (sreg + 3))

def srd_off(A, sreg, lo, hi, soff, total):
    A("s_add_u32 s%d, s%d, s%d" % (sreg, lo, soff))
    A("s_addc_u32 s%d, s%d, 0" % (sreg + 1, hi))
    A("s_and_b32 s%d, s%d, 0xffff" % (sreg + 1, sreg + 1))
    A("s_sub_u32 s%d, 0x%x, s%d" % (sreg + 2, total, soff))
    A("s_mov_b32 s%d, 0x20000" % (sreg + 3))

def xsum32(A, r, tmp):
    A("v_mov_b32 v%d, v%d" % (tmp, r)); A("s_nop 1")
    A("v_permlane32_swap_b32 v%d, v%d" % (r, tmp)); A("s_nop 1")
    A("v_add_f32 v%d, v%d, v%d" % (r, r, tmp))
def xsum16(A, r, tmp):
    A("v_mov_b32 v%d, v%d" % (tmp, r)); A("s_nop 1")
    A("v_permlane16_swap_b32 v%d, v%d" % (r, tmp)); A("s_nop 1")
    A("v_add_f32 v%d, v%d, v%d" % (r, r, tmp))

def x_unit_setup(A, vL, vDX, vT0, vT1, vT2, vT3, XS):
    A("s_lshl_b32 s%d, s%d, 7" % (S_T0, S_TILE))
    A("s_lshl_b32 s%d, s%d, 4" % (S_T1, S_WAVE))
    A("s_add_u32 s%d, s%d, s%d" % (S_T0, S_T0, S_T1))
    A("s_mul_i32 s%d, s%d, 1152" % (S_T0, S_T0))
    A("v_lshrrev_b32 v%d, 3, v%d" % (vT0, vL))
    A("v_mul_u32_u24 v%d, 1152, v%d" % (vT1, vT0))
    A("v_add_u32 v%d, s%d, v%d" % (vT1, S_T0, vT1))
    A("v_lshrrev_b32 v%d, 4, v%d" % (vT2, vL))
    A("v_and_b32 v%d, 7, v%d" % (vT3, vL))
    A("v_xor_b32 v%d, v%d, v%d" % (vDX, vT3, vT2))
    A("v_lshl_add_u32 v%d, v%d, 4, v%d" % (vDX, vDX, vT1))
    A("v_add_u32 v%d, 4, v%d" % (vT2, vT2))
    A("v_xor_b32 v%d, v%d, v%d" % (vDX + 1, vT3, vT2))
    A("v_lshl_add_u32 v%d, v%d, 4, v%d" % (vDX + 1, vDX + 1, vT1))
    A("v_add_u32 v%d, %d, v%d" % (vDX + 1, 8 * 1152, vDX + 1))
    A("s_lshl_b32 s%d, s%d, 11" % (S_XM0, S_WAVE))
    A("s_add_u32 s%d, s%d, %d" % (S_XM0, S_XM0, XS))

def x_unit_dma(A, kb, vDX, nslots):
    slot = kb % nslots
    for q in range(2):
        A("s_add_u32 m0, s%d, %d" % (S_XM0, slot * 16384 + q * 1024))
        A("s_movk_i32 s%d, %d" % (S_T3, kb * 128))
        A("buffer_load_dwordx4 v%d, s[%d:%d], s%d offen lds" % (vDX + q, SRD_X, SRD_X + 3, S_T3))
        A.vm.issue(("x", kb, q))

def emit_step(A, c, groups, block, pre_vm=None, pre_lg=None, head=None):
    A.wait(vm=pre_vm or None, lg=pre_lg or None)
    A("s_barrier")
    if head:
        for fn in head: fn()
    if c == 0:
        for g in groups: g()
        for fn in block: fn()
    else:
        for fn in block: fn()
        for g in groups: g()
```

```python
import sys
from g2_common import *
from g2_mlp import mlp_role
try:
    from g2_att import att_role
except ImportError:
    att_role = None

def k1_kernel(with_att=True):
    A = K()
    A("s_cmp_ge_u32 s2, 256")
    A("s_cbranch_scc1 L_k1_end")
    A("s_load_dwordx16 s[4:19], s[0:1], 0")
    A("s_load_dwordx2 s[20:21], s[0:1], 64")
    if opt.stamps or opt.dbgt: A("s_memrealtime s[92:93]")
    A("v_lshrrev_b32 v1, 6, v0")
    A("s_nop 0")
    A("v_readfirstlane_b32 s%d, v1" % S_WAVE)
    A("s_mov_b32 s%d, 0x3f803f80" % S_ONES)
    A("s_mov_b32 s%d, 0x%x" % (S_L2E, LOG2E))
    A("s_mov_b32 s%d, 0x00003f80" % S_SEL0)
    A("s_mov_b32 s%d, 0x3f800000" % S_SEL1)
    A("s_and_b32 s%d, s%d, 3" % (S_R, S_WAVE))
    A("s_lshr_b32 s%d, s%d, 2" % (S_C, S_WAVE))
    A("s_and_b32 s%d, s2, 7" % S_T0)
    A("s_lshr_b32 s%d, s2, 3" % S_T1)
    A("s_lshr_b32 s%d, s%d, 1" % (S_T2, S_T0))
    A("s_and_b32 s%d, s%d, 1" % (S_T0, S_T0))
    A("s_lshl_b32 s%d, s%d, 3" % (S_T0, S_T0))
    A("s_and_b32 s%d, s%d, 7" % (S_TILE, S_T1))
    A("s_add_u32 s%d, s%d, s%d" % (S_TILE, S_TILE, S_T0))
    A("s_lshr_b32 s%d, s%d, 3" % (S_T1, S_T1))
    A("s_mul_i32 s%d, s%d, 3" % (S_T3, S_T2))
    A("s_add_u32 s%d, s%d, s%d" % (S_ROLE, S_T3, S_T1))
    A("s_sub_u32 s%d, s%d, 1" % (S_ROLE, S_ROLE))
    A("s_waitcnt lgkmcnt(0)")
    srd(A, SRD_X, S_X, S_X + 1, S * D * 2)
    A("s_cmp_lg_u32 s%d, 0" % S_T1)
    A("s_cbranch_scc1 L_mlp")
    A("s_mov_b32 s%d, s%d" % (S_ROLE, S_T2))
    if not with_att: A("s_branch L_k1_end")
    if with_att:
        if opt.exp == "allc0": A("s_branch L_att0_j")
        A("s_cmp_eq_u32 s%d, 0" % S_C)
        A("s_cbranch_scc1 L_att0_j")
        A("s_branch L_att1_j")
    A.label("L_k1_end")
    A("s_endpgm")
    A.label("L_mlp")
    A("s_cmp_eq_u32 s%d, 0" % S_C)
    A("s_cbranch_scc1 L_mlp0")
    A("s_branch L_mlp1_j")
    if with_att:
        A.label("L_att0_j"); A("s_branch L_att0_j2")
        A.label("L_att1_j"); A("s_branch L_att1_j2")
    A.label("L_mlp1_j"); A("s_branch L_mlp1")
    A.label("L_mlp0")
    mlp_role(A, 0)
    A.label("L_mlp1")
    mlp_role(A, 1)
    if with_att:
        A.label("L_att0_j2"); A("s_branch L_att0")
        A.label("L_att1_j2"); A("s_branch L_att1")
        A.label("L_att0")
        att_role(A, 0)
        A.label("L_att1")
        att_role(A, 1)
    return A

def k3_kernel(parts):
    A = K()
    ks = [0]
    def st3():
        if opt.exp == "k3st":
            A("s_memtime s[%d:%d]" % (64 + 2 * ks[0], 65 + 2 * ks[0])); ks[0] += 1
    NO, NP = 18, 4
    O, P, X, ACC, SM, WF = 16, 88, 152, 168, 200, 232
    A("s_cmp_ge_u32 s2, 144")
    A("s_cbranch_scc1 L_k3_end")
    if opt.dbgt: A("s_memrealtime s[40:41]")
    if opt.exp == "k3st": A("s_memrealtime s[84:85]")
    st3()
    A("s_load_dwordx2 s[4:5], s[0:1], 0")
    A("s_load_dwordx2 s[6:7], s[0:1], 48")
    A("s_load_dwordx2 s[8:9], s[0:1], 64")
    A("s_load_dwordx2 s[10:11], s[0:1], 16")
    A("v_and_b32 v1, 63, v0")
    A("v_lshrrev_b32 v2, 6, v0")
    A("s_nop 0")
    A("v_readfirstlane_b32 s30, v2")
    A("s_lshr_b32 s33, s2, 3")
    A("s_cmp_ge_u32 s33, 9")
    A("s_cselect_b32 s31, 1, 0")
    A("s_mul_i32 s32, s31, 9")
    A("s_sub_u32 s32, s33, s32")
    A("s_and_b32 s33, s2, 7"); A("s_lshl_b32 s33, s33, 1"); A("s_add_u32 s31, s31, s33")
    A("s_lshl_b32 s35, s31, 2"); A("s_add_u32 s35, s35, s30")
    A("v_lshrrev_b32 v3, 3, v1")
    A("s_mul_i32 s37, s30, 144")
    A("v_add_u32 v3, s37, v3")
    A("v_mul_u32_u24 v3, 1152, v3")
    A("v_and_b32 v4, 7, v1"); A("v_lshrrev_b32 v5, 2, v1"); A("v_and_b32 v5, 4, v5"); A("v_xor_b32 v4, v4, v5")
    A("v_lshl_add_u32 v3, v4, 4, v3")
    A("s_mul_i32 s38, s30, 18432")
    A("s_lshl_b32 s39, s32, 7")
    A("v_lshlrev_b32 v6, 4, v1")
    A("s_waitcnt lgkmcnt(0)")
    srd(A, 16, 4, 5, S * D * 2)
    srd(A, 20, 6, 7, S * D * 2)
    srd(A, 24, 8, 9, NPART * PART_BYTES)
    srd(A, 44, 10, 11, D * D * 2)
    A("s_mul_i32 s42, s35, %d" % (36 * 1024)); A("s_add_u32 s42, s42, %d" % WS_OF)
    A("s_add_u32 s48, s8, s42"); A("s_addc_u32 s49, s9, 0"); A("s_and_b32 s49, s49, 0xffff"); A("s_mov_b32 s50, %d" % (36 * 1024)); A("s_mov_b32 s51, 0x20000")
    A("s_mul_i32 s42, s35, 18"); A("s_lshl_b32 s43, s32, 1"); A("s_add_u32 s42, s42, s43"); A("s_lshl_b32 s42, s42, 11")
    A("v_add_u32 v7, s42, v6")
    def pload(n):
        A("s_mov_b32 s43, %d" % (parts[n] * PART_BYTES))
        for h in range(4):
            r = P + 16 * (n % NP) + 4 * h
            A("buffer_load_dwordx4 v[%d:%d], v7, s[24:27], s43 offen offset:%d" % (r, r + 3, h * 1024))
            A.vm.issue(("p", n, h))
    def oload(kk):
        r = O + 4 * (kk % NO)
        A("s_mov_b32 s43, %d" % ((kk // 4) * 4096))
        A("buffer_load_dwordx4 v[%d:%d], v6, s[48:51], s43 offen offset:%d" % (r, r + 3, (kk % 4) * 1024))
        A.vm.issue(("o", kk))
    for n in range(NP): pload(n)
    for q in range(18):
        A("s_add_u32 m0, s38, %d" % (q * 1024))
        A("s_add_u32 s43, s39, %d" % (q * 8 * 1152))
        A("buffer_load_dwordx4 v3, s[44:47], s43 offen lds")
        A.vm.issue(("wo", q))
    for kk in range(NO): oload(kk)
    A("v_and_b32 v8, 31, v1")
    A("s_lshl_b32 s42, s35, 5")
    A("v_add_u32 v8, s42, v8")
    A("v_mul_u32_u24 v8, 1152, v8")
    A("v_lshrrev_b32 v9, 5, v1")
    A("v_lshl_add_u32 v8, v9, 4, v8")
    A("v_add_u32 v8, s39, v8")
    A("v_lshrrev_b32 v10, 2, v1"); A("v_and_b32 v10, 3, v10")
    A("v_lshrrev_b32 v11, 4, v1"); A("v_and_b32 v11, 1, v11"); A("v_lshlrev_b32 v11, 1, v11")
    A("v_lshrrev_b32 v12, 1, v1"); A("v_and_b32 v12, 1, v12"); A("v_add_u32 v11, v11, v12")
    A("v_lshrrev_b32 v12, 1, v10"); A("v_lshlrev_b32 v12, 2, v12"); A("v_xor_b32 v11, v11, v12")
    A("v_lshlrev_b32 v11, 4, v11")
    A("v_and_b32 v12, 1, v1"); A("v_lshl_add_u32 v11, v12, 3, v11")
    A("v_lshl_add_u32 v12, v9, 3, v10"); A("v_lshl_add_u32 v11, v12, 7, v11")
    A("v_xor_b32 v12, 64, v11")
    A("v_add_u32 v13, 36864, v11"); A("v_add_u32 v14, 36864, v12")
    A("s_mov_b32 s28, 0x00003f80"); A("s_mov_b32 s29, 0x3f800000")
    for q in range(32): A("v_mov_b32 v%d, 0" % (SM + q))
    def psum(n):
        A.wait(vm=[("p", n, 3)])
        for w_ in range(16):
            A("v_dot2_f32_bf16 v%d, v%d, s28, v%d" % (SM + 2*w_, P + 16*(n % NP) + w_, SM + 2*w_))
            A("v_dot2_f32_bf16 v%d, v%d, s29, v%d" % (SM + 2*w_ + 1, P + 16*(n % NP) + w_, SM + 2*w_ + 1))
        if n + NP < len(parts): pload(n + NP)
    st3()
    for n in range(NP): psum(n)
    st3()
    def wread(kk):
        for cb in range(2):
            f = WF + 8 * (kk % 2) + 4 * cb
            base, off = (11 + cb, kk * 2048) if kk < 18 else (13 + cb, (kk - 18) * 2048)
            A("ds_read_b64_tr_b16 v[%d:%d], v%d offset:%d" % (f, f + 1, base, off))
            A("ds_read_b64_tr_b16 v[%d:%d], v%d offset:%d" % (f + 2, f + 3, base, off + 512))
            A.lg.issue(("w", kk, cb, 0)); A.lg.issue(("w", kk, cb, 1))
    A.wait(vm=[("wo", 17)])
    A("s_barrier")
    st3()
    wread(0)
    for kk in range(36):
        A.wait(vm=[("o", kk)], lg=[("w", kk, 1, 1)])
        r = O + 4 * (kk % NO)
        for cb in range(2):
            f = WF + 8 * (kk % 2) + 4 * cb; ac = ACC + 16 * cb
            cs = "0" if kk == 0 else "v[%d:%d]" % (ac, ac + 15)
            A("v_mfma_f32_32x32x16_bf16 v[%d:%d], v[%d:%d], v[%d:%d], %s" % (ac, ac + 15, f, f + 3, r, r + 3, cs))
            if cb == 0 and kk + 1 < 36: wread(kk + 1)
        if kk + NO < 36: oload(kk + NO)
        if kk == 8:
            st3()
            for n in range(NP, 2 * NP): psum(n)
            st3()
        if kk == 26:
            for n in range(2 * NP, len(parts)): psum(n)
    st3()
    for h in range(4):
        A("buffer_load_dwordx4 v[%d:%d], v8, s[16:19], 0 offen offset:%d" % (X + 4*h, X + 4*h + 3, (h >> 1) * 64 + (h & 1) * 32))
    A("s_nop 7"); A("s_nop 7")
    for q in range(32): A("v_add_f32 v%d, v%d, v%d" % (SM + q, SM + q, ACC + q))
    A("s_nop 1")
    for h in range(4):
        for q in range(4): A("v_permlane32_swap_b32 v%d, v%d" % (SM + 8*h + q, SM + 8*h + 4 + q))
    A("s_waitcnt vmcnt(0)")
    for h in range(4):
        for q in range(4):
            A("v_lshlrev_b32 v2, 16, v%d" % (X + 4*h + q))
            A("v_and_b32 v3, 0xffff0000, v%d" % (X + 4*h + q))
            A("v_add_f32 v%d, v%d, v2" % (SM + 8*h + 2*q, SM + 8*h + 2*q))
            A("v_add_f32 v%d, v%d, v3" % (SM + 8*h + 2*q + 1, SM + 8*h + 2*q + 1))
        for q in range(4):
            A("v_cvt_pk_bf16_f32 v%d, v%d, v%d" % (X + 4*h + q, SM + 8*h + 2*q, SM + 8*h + 2*q + 1))
        A("buffer_store_dwordx4 v[%d:%d], v8, s[20:23], 0 offen offset:%d" % (X + 4*h, X + 4*h + 3, (h >> 1) * 64 + (h & 1) * 32))
    if opt.exp == "k3st":
        st3()
        A("s_memrealtime s[86:87]")
        A("s_waitcnt lgkmcnt(0)")
        A("s_cmp_lg_u32 s30, 0"); A("s_cbranch_scc1 L_k3_end")
        A("s_lshl_b32 s42, s2, 6"); A("s_add_u32 s42, s42, %d" % (WS_STAMP + 65536))
        A("s_add_u32 s56, s8, s42"); A("s_addc_u32 s57, s9, 0"); A("s_and_b32 s57, s57, 0xffff"); A("s_mov_b32 s58, 64"); A("s_mov_b32 s59, 0x20000")
        A("v_mov_b32 v2, 0")
        for j in range(ks[0]):
            A("v_mov_b32 v3, s%d" % (64 + 2 * j)); A("buffer_store_dword v3, v2, s[56:59], 0 offen offset:%d" % (4 * j))
        A("v_mov_b32 v3, s84"); A("buffer_store_dword v3, v2, s[56:59], 0 offen offset:56")
        A("v_mov_b32 v3, s86"); A("buffer_store_dword v3, v2, s[56:59], 0 offen offset:60")
    if opt.dbgt:
        A("s_memrealtime s[52:53]")
        A("s_load_dwordx2 s[54:55], s[0:1], 56")
        A("s_waitcnt lgkmcnt(0)")
        A("s_mov_b32 s56, s54"); A("s_and_b32 s57, s55, 0xffff"); A("s_mov_b32 s58, 256"); A("s_mov_b32 s59, 0x20000")
        A("s_cmp_lg_u32 s2, 0")
        A("s_cbranch_scc1 L_k3_end")
        A("s_add_u32 s60, s8, %d" % WS_STAMP); A("s_addc_u32 s61, s9, 0"); A("s_and_b32 s61, s61, 0xffff"); A("s_mov_b32 s62, 4096"); A("s_mov_b32 s63, 0x20000")
        A("v_lshlrev_b32 v2, 5, v1")
        A("buffer_load_dwordx4 v[16:19], v2, s[60:63], 0 offen")
        A("buffer_load_dwordx4 v[20:23], v2, s[60:63], 0 offen offset:16")
        A("s_waitcnt vmcnt(0)")
        A("v_min_u32 v16, v16, v18"); A("v_min_u32 v20, v20, v22"); A("v_min_u32 v16, v16, v20")
        A("v_max_u32 v17, v17, v19"); A("v_max_u32 v21, v21, v23"); A("v_max_u32 v17, v17, v21")
        A("v_not_b32 v16, v16")
        A("v_mov_b32 v24, 0"); A("v_mov_b32 v25, 4")
        A("buffer_atomic_umax v16, v24, s[56:59], 0 offen")
        A("buffer_atomic_umax v17, v25, s[56:59], 0 offen")
        A("v_mov_b32 v26, s40"); A("v_mov_b32 v27, 8")
        A("buffer_store_dword v26, v27, s[56:59], 0 offen")
        A("v_mov_b32 v26, s52"); A("v_mov_b32 v27, 12")
        A("buffer_store_dword v26, v27, s[56:59], 0 offen")
    A.label("L_k3_end")
    A("s_endpgm")
    return A

HDR = """; Kernarg layout for this problem (72 bytes, ptrs only, base s[0:1]):
"""

def build_all(path, with_att=True):
    k1 = k1_kernel(with_att)
    parts = list(range(12))
    k3 = k3_kernel(parts)
    n1, n3 = "fused_main_kernel", "reduce_kernel"
    t1, r1 = kernel_wrap(n1, k1.text(), 256, 96)
    t3, r3 = kernel_wrap(n3, k3.text(), 248, 96)
    hdr = HDR + "; @launch kernel=%s grid=(256,1,1) block=(512,1,1) lds=163840\n" % n1
    hdr += "; @launch kernel=%s grid=(144,1,1) block=(256,1,1) lds=73728\n" % n3
    open(path, "w").write(hdr + '.amdgcn_target "amdgcn-amd-amdhsa--gfx950"\n' + t1 + t3 + r1 + r3)

if __name__ == "__main__":
    out = sys.argv[1]
    for a in sys.argv[2:]:
        if a == "stamps": opt.stamps = True
        elif a == "dbgt": opt.dbgt = True
        elif a == "notouch": opt.touch = False
        elif a.startswith("steps="): opt.stamp_steps = tuple(int(x) for x in a[6:].split(","))
        elif a.startswith("stf="): opt.stf = " " + a[4:].replace("+", " ")
        elif a.startswith("exp="): opt.exp = a[4:]
        elif a.startswith("lvl="): opt.lvl = int(a[4:])
        elif a.startswith("swave="): opt.swave = int(a[6:])
    build_all(out, with_att=("noatt" not in sys.argv and att_role is not None))
    build(out)
    print("built", out)
```

```python
from g2_common import *

KV_GROUP_BYTES = 36 * 1024

def att_role(A, c):
    A.reset()
    L = lambda s: "%s_c%d" % (s, c)
    def xf(u, kk): return 4 * (18 * u + kk)
    ACC = 144
    WR = 216; NF = 5
    vTR = 236
    vDM = 244
    vL, vT0, vT1, vT2, vT3 = 247, 248, 249, 250, 251
    vRSl = 252
    vDX = 252
    vPZ, vPA = 254, 255
    XS = 65536
    USZ = 24576; PSZ = 12288
    EX = 73728
    PQ = 98304
    KVF = PQ + 36864
    ZF = KVF + 13824
    STB = ZF + 13824
    assert STB + 1024 == 163840
    CH = 55296
    S_MB = S_E0
    A.comment("---- ATT role, wave group %d ----" % c)
    stamp(A, 9)
    A("v_and_b32 v%d, 63, v0" % vL)
    A("v_mov_b32 v%d, v0" % ACC)
    x_unit_setup(A, vL, vDX, vT0, vT1, vT2, vT3, XS)
    for kb in range(6): x_unit_dma(A, kb, vDX, 6)
    srd(A, SRD_A, S_WQKV, S_WQKV + 1, D * 3 * D * 2)
    A("s_mul_i32 s%d, s%d, %d" % (S_T0, S_ROLE, 144 * 1152))
    srd_off(A, SRD_B, S_WO, S_WO + 1, S_T0, D * D * 2)
    def piece_pattern(q, emit_row):
        A("v_add_u32 v%d, %d, v%d" % (vT0, 64 * q, vL))
        A("v_mul_u32_u24 v%d, 2731, v%d" % (vT1, vT0))
        A("v_lshrrev_b32 v%d, 16, v%d" % (vT1, vT1))
        A("v_mul_u32_u24 v%d, 24, v%d" % (vT2, vT1))
        A("v_sub_u32 v%d, v%d, v%d" % (vT2, vT0, vT2))
        emit_row()
    A("s_lshr_b32 s%d, s%d, 1" % (S_T0, S_R)); A("s_lshl_b32 s%d, s%d, 4" % (S_T0, S_T0))
    A("s_and_b32 s%d, s%d, 1" % (S_T1, S_R)); A("s_lshl_b32 s%d, s%d, 2" % (S_T1, S_T1))
    A("s_add_u32 s%d, s%d, s%d" % (S_T0, S_T0, S_T1))
    A("s_lshl_b32 s%d, s%d, 8" % (S_T1, S_ROLE))
    for q in range(3):
        def row(q=q):
            A("v_and_b32 v%d, 6, v%d" % (vT3, vT1))
            A("v_xor_b32 v%d, v%d, v%d" % (vT2, vT2, vT3))
            A("v_lshrrev_b32 v%d, 2, v%d" % (vT3, vT1))
            A("v_lshlrev_b32 v%d, 3, v%d" % (vT3, vT3))
            A("v_and_b32 v%d, 3, v%d" % (vT1, vT1))
            A("v_add_u32 v%d, v%d, v%d" % (vT1, vT1, vT3))
            A("v_add_u32 v%d, s%d, v%d" % (vT1, S_T0, vT1))
            A("v_mul_u32_u24 v%d, 3456, v%d" % (vT1, vT1))
            A("v_lshl_add_u32 v%d, v%d, 4, v%d" % (vT1, vT2, vT1))
            A("v_add_u32 v%d, s%d, v%d" % (vDM + q, S_T1, vT1))
        piece_pattern(q, row)
    A("s_mul_i32 s%d, s%d, 3072" % (S_MB, S_R))
    if c: A("s_add_u32 s%d, s%d, %d" % (S_MB, S_MB, PSZ))
    NUA = 27
    DPOS = [(0, 2, 4), (1, 3, 5)]
    def wdma1(un, q):
        if un >= NUA: return
        slot = un % 4
        if un < 18: so = un * 32 * 3456 + (1 + c) * 1152
        else: so = (un - 18) * 64 * 3456 + c * 32 * 3456
        A("s_add_u32 m0, s%d, %d" % (S_MB, slot * USZ + q * 1024))
        A("s_mov_b32 s%d, %d" % (S_T3, so))
        A("buffer_load_dwordx4 v%d, s[%d:%d], s%d offen lds" % (vDM + q, SRD_A, SRD_A + 3, S_T3))
        A.vm.issue(("wa", un, q))
    def wdma(un):
        for q in range(3): wdma1(un, q)
    A("s_add_u32 s%d, s%d, 12" % (S_T0, S_ROLE))
    A("s_mul_i32 s%d, s%d, %d" % (S_T0, S_T0, PART_BYTES))
    A("s_mul_i32 s%d, s%d, %d" % (S_T1, S_TILE, 4 * 18 * 2048))
    A("s_add_u32 s%d, s%d, s%d" % (S_T0, S_T0, S_T1))
    srd_off(A, SRD_P, S_WS, S_WS + 1, S_T0, NPART * PART_BYTES)
    A("s_mul_i32 s%d, s%d, %d" % (S_T0, S_ROLE, KV_GROUP_BYTES))
    A("s_add_u32 s%d, s%d, %d" % (S_T0, S_T0, WS_KV))
    A("s_add_u32 s%d, s%d, s%d" % (SRD_KV, S_WS, S_T0)); A("s_addc_u32 s%d, s%d, 0" % (SRD_KV + 1, S_WS + 1))
    A("s_and_b32 s%d, s%d, 0xffff" % (SRD_KV + 1, SRD_KV + 1)); A("s_mov_b32 s%d, %d" % (SRD_KV + 2, KV_GROUP_BYTES)); A("s_mov_b32 s%d, 0x20000" % (SRD_KV + 3))
    srd(A, SRD_D, S_DBG, S_DBG + 1, 256)
    A("s_cmp_lg_u32 s%d, 0" % S_TILE)
    A("s_cbranch_scc1 %s" % L("L_att_nozero"))
    for q in range(4): A("v_mov_b32 v%d, 0" % (ACC + 4 + q))
    A("v_lshlrev_b32 v%d, 4, v%d" % (ACC + 1, ACC))
    for q in range(5):
        A("s_mov_b32 s%d, %d" % (S_T3, q * 8192))
        A("buffer_store_dwordx4 v[%d:%d], v%d, s[%d:%d], s%d offen sc0 sc1" % (ACC + 4, ACC + 7, ACC + 1, SRD_KV, SRD_KV + 3, S_T3))
    A("s_waitcnt vmcnt(0)")
    A("s_barrier")
    A("v_mov_b32 v%d, 1" % (ACC + 2))
    A("s_lshl_b32 s%d, s%d, 2" % (S_T0, S_ROLE)); A("s_add_u32 s%d, s%d, 64" % (S_T0, S_T0))
    A("v_mov_b32 v%d, 0x7fffff00" % (ACC + 3)); A("v_mov_b32 v%d, s%d" % (ACC + 4, S_T0))
    A("v_cmp_eq_u32 vcc, 0, v%d" % ACC)
    A("s_nop 1")
    A("v_cndmask_b32 v%d, v%d, v%d, vcc" % (ACC + 3, ACC + 3, ACC + 4))
    A("buffer_atomic_add v%d, v%d, s[%d:%d], 0 offen sc1" % (ACC + 2, ACC + 3, SRD_D, SRD_D + 3))
    A("s_waitcnt vmcnt(0)")
    A.label(L("L_att_nozero"))
    A("v_lshrrev_b32 v%d, 4, v%d" % (vT0, vL))
    A("v_lshrrev_b32 v%d, 1, v%d" % (vT1, vT0)); A("v_lshlrev_b32 v%d, 4, v%d" % (vT1, vT1))
    A("v_and_b32 v%d, 1, v%d" % (vT2, vT0)); A("v_lshlrev_b32 v%d, 2, v%d" % (vT2, vT2))
    A("v_add_u32 v%d, v%d, v%d" % (vT1, vT1, vT2))
    A("v_lshrrev_b32 v%d, 2, v%d" % (vT2, vL)); A("v_and_b32 v%d, 3, v%d" % (vT2, vT2))
    A("v_add_u32 v%d, v%d, v%d" % (vT1, vT1, vT2))
    A("v_and_b32 v%d, 6, v%d" % (vT3, vT1))
    A("v_mul_u32_u24 v%d, 384, v%d" % (vT1, vT1))
    A("v_and_b32 v%d, 3, v%d" % (vT2, vL))
    A("v_lshl_add_u32 v%d, v%d, 3, v%d" % (vT1, vT2, vT1))
    for j in range(4):
        A("s_lshl_b32 s%d, s%d, 1" % (S_T0, S_ROLE)); A("s_add_u32 s%d, s%d, %d" % (S_T0, S_T0, 2 * j))
        A("s_and_b32 s%d, s%d, 7" % (S_T1, S_T0)); A("s_lshr_b32 s%d, s%d, 3" % (S_T0, S_T0)); A("s_lshl_b32 s%d, s%d, 7" % (S_T0, S_T0))
        A("v_xor_b32 v%d, s%d, v%d" % (vT2, S_T1, vT3))
        A("v_lshl_add_u32 v%d, v%d, 4, v%d" % (vT2, vT2, vT1))
        A("v_add_u32 v%d, s%d, v%d" % (vTR + j, S_T0, vT2))
        A("v_add_u32 v%d, %d, v%d" % (vTR + 4 + j, 2 * USZ, vTR + j))
    vXR = ACC + 8
    A("v_and_b32 v%d, 15, v%d" % (vT1, vL))
    A("v_lshrrev_b32 v%d, 1, v%d" % (vT2, vT1))
    A("v_xor_b32 v%d, v%d, v%d" % (vT2, vT2, vT0))
    A("v_lshlrev_b32 v%d, 4, v%d" % (vT2, vT2))
    A("s_lshl_b32 s%d, s%d, 5" % (S_T0, S_R))
    A("v_add_u32 v%d, s%d, v%d" % (vT3, S_T0, vT1))
    A("v_lshl_add_u32 v%d, v%d, 7, v%d" % (vT2, vT3, vT2))
    A("v_add_u32 v%d, %d, v%d" % (vXR, XS, vT2))
    A("v_xor_b32 v%d, 64, v%d" % (vXR + 1, vXR))
    A("v_add_u32 v%d, 0x10000, v%d" % (vXR + 2, vXR)); A("v_add_u32 v%d, 0x10000, v%d" % (vXR + 3, vXR + 1))
    vSL = ACC + 12
    A("v_lshlrev_b32 v%d, 2, v%d" % (vSL, vT3)); A("v_add_u32 v%d, %d, v%d" % (vSL, STB, vSL))
    vS = ACC + 16
    for q in range(4): A("v_mov_b32 v%d, 0" % (vS + q))
    def xread(kb, e, u):
        slot = kb % 6; kk = 2 * kb + e
        if slot < 4: A("ds_read_b128 v[%d:%d], v%d offset:%d" % (xf(u, kk), xf(u, kk) + 3, vXR + e, slot * 16384 + u * 2048))
        else: A("ds_read_b128 v[%d:%d], v%d offset:%d" % (xf(u, kk), xf(u, kk) + 3, vXR + 2 + e, (slot - 4) * 16384 + u * 2048))
        A.lg.issue(("xf", u, kk))
    def stats(u, kk):
        for e in range(4):
            rg = xf(u, kk) + e
            A("v_dot2_f32_bf16 v%d, v%d, s%d, v%d" % (vS + (e & 1), rg, S_ONES, vS + (e & 1)))
            A("v_dot2_f32_bf16 v%d, v%d, v%d, v%d" % (vS + 2 + (e & 1), rg, rg, vS + 2 + (e & 1)))
    stamp(A)
    for g in range(3):
        A.wait(vm=[("x", 3 * g + 2, 1)])
        A("s_barrier")
        if g == 1:
            for kb in range(6, 9): x_unit_dma(A, kb, vDX, 6)
            wdma(0)
        own = [(kb, e) for kb in range(3 * g, 3 * g + 3) for e in range(2)]
        for kb, e in own: xread(kb, e, c)
        for kb, e in own: xread(kb, e, 1 - c)
        for kb, e in own:
            A.wait(lg=[("xf", c, 2 * kb + e)])
            stats(c, 2 * kb + e)
        A.wait(lg=[("xf", 1 - c, 2 * own[-1][0] + 1)])
        if g == 2:
            wdma(1)
            if opt.touch:
                A("s_and_b32 s%d, s%d, 7" % (S_T0, S_TILE)); A("s_lshl_b32 s%d, s%d, 3" % (S_T0, S_T0)); A("s_add_u32 s%d, s%d, s%d" % (S_T0, S_T0, S_WAVE))
                A("s_mul_i32 s%d, s%d, 9" % (S_T1, S_T0))
                A("v_mul_u32_u24 v%d, 21846, v%d" % (vT0, vL)); A("v_lshrrev_b32 v%d, 16, v%d" % (vT0, vT0))
                A("v_mul_u32_u24 v%d, 3, v%d" % (vT1, vT0)); A("v_sub_u32 v%d, v%d, v%d" % (vT1, vL, vT1))
                A("v_add_u32 v%d, s%d, v%d" % (vT0, S_T1, vT0))
                A("v_mul_u32_u24 v%d, 3456, v%d" % (vT0, vT0))
                A("v_lshl_add_u32 v%d, v%d, 7, v%d" % (vT0, vT1, vT0))
                A("s_lshl_b32 s%d, s%d, 8" % (S_T1, S_ROLE))
                A("v_add_u32 v%d, s%d, v%d" % (vT0, S_T1, vT0))
                A("v_mov_b32 v%d, 0x7fffff00" % vT2)
                A("v_cmp_gt_u32 vcc, 27, v%d" % vL)
                A("s_nop 1")
                A("v_cndmask_b32 v%d, v%d, v%d, vcc" % (vT0, vT2, vT0))
                A("buffer_load_dword v%d, v%d, s[%d:%d], 0 offen" % (vPZ, vT0, SRD_A, SRD_A + 3))
                A.vm.issue(("touch", 0))
                A("s_mul_i32 s%d, s%d, %d" % (S_T0, S_T0, 21 * 128))
                A("v_lshl_add_u32 v%d, v%d, 7, s%d" % (vT0, vL, S_T0))
                A("v_cmp_gt_u32 vcc, 21, v%d" % vL)
                A("s_nop 1")
                A("v_cndmask_b32 v%d, v%d, v%d, vcc" % (vT0, vT2, vT0))
                A("buffer_load_dword v%d, v%d, s[%d:%d], 0 offen" % (vPZ, vT0, SRD_B, SRD_B + 3))
                A.vm.issue(("touch", 1))
    A("s_nop 1")
    A("v_add_f32 v%d, v%d, v%d" % (vS, vS, vS + 1)); A("v_add_f32 v%d, v%d, v%d" % (vS + 2, vS + 2, vS + 3))
    xsum16(A, vS, vS + 1); xsum32(A, vS, vS + 1)
    xsum16(A, vS + 2, vS + 3); xsum32(A, vS + 2, vS + 3)
    A("v_mul_f32 v%d, 0x%x, v%d" % (vS, INV576, vS))
    A("v_mul_f32 v%d, 0x%x, v%d" % (vS + 2, INV576, vS + 2))
    A("v_fma_f32 v%d, -v%d, v%d, v%d" % (vS + 2, vS, vS, vS + 2))
    A("v_max_f32 v%d, 0, v%d" % (vS + 2, vS + 2))
    A("v_add_f32 v%d, 0x%x, v%d" % (vS + 2, EPS_LN, vS + 2))
    A("v_sub_f32 v%d, 0, v%d" % (vS, vS))
    A("v_rsq_f32 v%d, v%d" % (vRSl + c, vS + 2))
    A("s_nop 0")
    A("ds_write_b32 v%d, v%d offset:%d" % (vSL, vS, 64 * c))
    A("ds_write_b32 v%d, v%d offset:%d" % (vSL, vRSl + c, 512 + 64 * c))
    A("s_waitcnt lgkmcnt(0)"); A.lg.all()
    A("s_barrier")
    wdma(2)
    A("ds_read_b32 v%d, v%d offset:%d" % (vS + 1, vSL, 64 * (1 - c)))
    A("ds_read_b32 v%d, v%d offset:%d" % (vRSl + 1 - c, vSL, 512 + 64 * (1 - c)))
    stamp(A)
    TC = ACC + 24
    def center(u, nm):
        for n in range(xf(u, 0), xf(u, 0) + 72, 4):
            for e in range(4):
                A("v_dot2_f32_bf16 v%d, v%d, s%d, v%d" % (TC + 2*e, n + e, S_SEL0, nm))
                A("v_dot2_f32_bf16 v%d, v%d, s%d, v%d" % (TC + 2*e + 1, n + e, S_SEL1, nm))
            A("s_nop 0")
            for e in range(4):
                A("v_cvt_pk_bf16_f32 v%d, v%d, v%d" % (n + e, TC + 2*e, TC + 2*e + 1))
    center(c, vS)
    A("s_waitcnt lgkmcnt(0)")
    center(1 - c, vS + 1)
    stamp(A)

    if c == 0: kvt = [(0, t) for t in range(5)] + [(1, t) for t in range(4)]
    else: kvt = [(0, t) for t in range(5, 9)] + [(1, t) for t in range(4, 9)]
    qt = list(range(5)) if c == 0 else list(range(5, 9))
    def addr(un, part, t):
        slot = un % 4
        base = vTR + (t & 3) + (4 if slot >= 2 else 0)
        return base, (slot & 1) * USZ + part * PSZ + 128 * (t >> 2)
    seq = []
    for n in range(18):
        for i, (part, t) in enumerate(kvt): seq.append((n,) + addr(n, part, t) + (1, i, n))
    for n in range(18, 27):
        for ks in range(2):
            for i, t in enumerate(qt): seq.append((n,) + addr(n, ks, t) + (3, i, 2 * (n - 18) + ks))
    def fread(phi):
        if phi >= len(seq): return
        un, base, off = seq[phi][:3]
        f = WR + 4 * (phi % NF)
        for h in range(2):
            A("ds_read_b64_tr_b16 v[%d:%d], v%d offset:%d" % (f + 2*h, f + 2*h + 1, base, off + 3072 * h))
            A.lg.issue(("f", phi, h))
    A.wait(vm=[("wa", 0, 2)])
    A("s_barrier")
    for phi in range(NF): fread(phi)
    def group(phi):
        def fn():
            un, base, off, kind, i, kk = seq[phi]
            f = WR + 4 * (phi % NF)
            if not (opt.exp == "nord" and kind == 1): A.wait(lg=[("f", phi, 1)])
            for u in range(2):
                acc = ACC + 8 * i + 4 * u
                cs = "0" if kk == 0 else "v[%d:%d]" % (acc, acc + 3)
                if kind == 1:
                    A("v_mfma_f32_16x16x32_bf16 v[%d:%d], v[%d:%d], v[%d:%d], %s" % (acc, acc + 3, xf(u, kk), xf(u, kk) + 3, f, f + 3, cs))
                else:
                    A("v_mfma_f32_16x16x32_bf16 v[%d:%d], v[%d:%d], v[%d:%d], %s" % (acc, acc + 3, f, f + 3, xf(u, kk), xf(u, kk) + 3, cs))
            if phi + NF < len(seq) and seq[phi + NF][3] == kind:
                if opt.exp == "nord" and kind == 1:
                    A.lg.issue(("f", phi + NF, 0)); A.lg.issue(("f", phi + NF, 1))
                else: fread(phi + NF)
        return fn
    def run_steps(n_lo, n_hi, xvm={}, xblk={}, skip=()):
        for n in range(n_lo, n_hi):
            A.comment("att step %d" % n)
            nx = n + 1
            need = ([("wa", nx, 2)] if (nx < NUA and nx not in skip) else []) + xvm.get(n, [])
            phis = [p for p in range(len(seq)) if seq[p][0] == n]
            A.wait(vm=need or None)
            if not (opt.exp == "nobar" and n < 18): A("s_barrier")
            pos = {DPOS[c][q]: q for q in range(3)}
            for idx, p in enumerate(phis):
                group(p)()
                if idx in pos and (n + 3) not in skip:
                    if opt.exp == "nodma" and n < 15: A.vm.issue(("wa", n + 3, pos[idx]))
                    else: wdma1(n + 3, pos[idx])
                if idx == 6:
                    for fn in xblk.get(n, []): fn()
    def zpoll_issue():
        A("s_lshl_b32 s%d, s%d, 2" % (S_T0, S_ROLE)); A("s_add_u32 s%d, s%d, 64" % (S_T0, S_T0))
        A("v_mov_b32 v%d, s%d" % (vPA, S_T0))
        A("buffer_load_dword v%d, v%d, s[%d:%d], 0 offen sc1" % (vPZ, vPA, SRD_D, SRD_D + 3))
        A.vm.issue(("zp",))
    def poll_finish(tag, target):
        lab = A.newlabel("L_poll"); ok = A.newlabel("L_pollok")
        A.wait(vm=[tag])
        A("s_mov_b32 s%d, 0" % S_T1)
        A.label(lab)
        A("v_readfirstlane_b32 s%d, v%d" % (S_T0, vPZ))
        A("s_add_u32 s%d, s%d, 1" % (S_T1, S_T1))
        A("s_nop 2")
        A("s_cmp_ge_u32 s%d, %d" % (S_T0, target))
        A("s_cbranch_scc1 %s" % ok)
        A("s_cmp_ge_u32 s%d, 50000" % S_T1)
        A("s_cbranch_scc1 %s" % ok)
        A("s_sleep 2")
        A("buffer_load_dword v%d, v%d, s[%d:%d], 0 offen sc1" % (vPZ, vPA, SRD_D, SRD_D + 3))
        A("s_waitcnt vmcnt(0)")
        A("s_branch %s" % lab)
        A.label(ok)
    if opt.exp == "rep1":
        A("s_mov_b32 s59, 0")
        A.label(L("L_rep1"))
        A.nstamp -= 1; stamp(A)
    run_steps(0, 18, xblk={14: [zpoll_issue]}, skip=(19,))
    if opt.exp == "rep1":
        A("s_add_u32 s59, s59, 1"); A("s_cmp_lt_u32 s59, 2"); A("s_cbranch_scc1 %s" % L("L_rep1"))
    stamp(A)
    stamp(A, 1)
    def phi_vals(regs, temps, rc=None):
        nt = len(temps)
        for i0 in range(0, len(regs), nt):
            grp = list(zip(regs[i0:i0 + nt], temps, rc[i0:i0 + nt]))
            for r_, t_, (sl, s1) in grp: A("v_mul_f32 v%d, v%d, v%d" % (t_, r_, sl))
            for r_, t_, _ in grp: A("v_min_f32 v%d, 0, v%d" % (t_, t_))
            for r_, t_, _ in grp: A("v_exp_f32 v%d, v%d" % (t_, t_))
            for r_, t_, _ in grp: A("v_max_f32 v%d, 0, v%d" % (r_, r_))
            for r_, t_, _ in grp: A("v_add_f32 v%d, 0x%x, v%d" % (t_, C1E6, t_))
            for r_, t_, (sl, s1) in grp: A("v_fma_f32 v%d, v%d, v%d, v%d" % (r_, r_, s1, t_))
    RC = WR; RL = WR + 8
    TP = [WR + 16 + i for i in range(4)] + [vT1, vT2, vT3, vPA]
    A("v_lshrrev_b32 v%d, 4, v%d" % (vT0, vL)); A("v_lshlrev_b32 v%d, 4, v%d" % (vT0, vT0))
    A("s_lshl_b32 s%d, s%d, 7" % (S_T0, S_R)); A("s_add_u32 s%d, s%d, %d" % (S_T0, S_T0, STB + 512))
    A("v_add_u32 v%d, s%d, v%d" % (vT0, S_T0, vT0))
    A("ds_read_b128 v[%d:%d], v%d" % (RC, RC + 3, vT0))
    A("ds_read_b128 v[%d:%d], v%d offset:64" % (RC + 4, RC + 7, vT0))
    poll_finish(("zp",), 1)
    A("s_waitcnt lgkmcnt(0)"); A.lg.all()
    stamp(A, 1)
    for q in range(8): A("v_mul_f32 v%d, s%d, v%d" % (RL + q, S_L2E, RC + q))
    nk = 5 if c == 0 else 4
    phi_vals(list(range(ACC, ACC + 8 * nk)), TP, [(RL + (i % 8), RC + (i % 8)) for i in range(8 * nk)])
    for i in range(8 * nk, 72): A("v_mul_f32 v%d, v%d, v%d" % (ACC + i, ACC + i, RC + (i % 8)))
    stamp(A, 1)
    vEW = vT0
    A("s_mul_i32 s%d, s%d, 18432" % (S_T0, S_R)); A("s_add_u32 s%d, s%d, %d" % (S_T0, S_T0, EX))
    A("v_lshl_add_u32 v%d, v%d, 4, s%d" % (vEW, vL, S_T0))
    for i, (part, t) in enumerate(kvt):
        b = ACC + 8 * i
        A("v_cvt_pk_bf16_f32 v%d, v%d, v%d" % (b, b, b + 1)); A("v_cvt_pk_bf16_f32 v%d, v%d, v%d" % (b + 1, b + 2, b + 3))
        A("v_cvt_pk_bf16_f32 v%d, v%d, v%d" % (b + 2, b + 4, b + 5)); A("v_cvt_pk_bf16_f32 v%d, v%d, v%d" % (b + 3, b + 6, b + 7))
        A("ds_write_b128 v%d, v[%d:%d] offset:%d" % (vEW, b, b + 3, (part * 9 + t) * 1024))
    A("s_waitcnt lgkmcnt(0)"); A.lg.all()
    stamp(A, 1)
    A("s_barrier")
    stamp(A); stamp(A, 1)
    FA, FB = ACC, ACC + 16
    HD, HE, ONESF = WR, WR + 4, WR + 8
    KS = [WR + 12, WR + 16, ACC + 64, ACC + 68]
    vER, vAT, vG4, vE16 = vT0, vT1, vT2, vT3
    A("v_lshlrev_b32 v%d, 4, v%d" % (vER, vL)); A("v_add_u32 v%d, %d, v%d" % (vER, EX, vER))
    A("v_lshlrev_b32 v%d, 2, v%d" % (vAT, vL))
    A("v_lshrrev_b32 v%d, 4, v%d" % (vG4, vL)); A("v_lshlrev_b32 v%d, 2, v%d" % (vG4, vG4))
    A("v_and_b32 v%d, 15, v%d" % (vE16, vL))
    for q in range(4): A("v_mov_b32 v%d, s%d" % (ONESF + q, S_ONES))
    vAD = vPZ
    def head_rows():
        A("s_lshl_b32 s%d, s%d, 4" % (S_T0, S_A))
        for rr in range(4):
            A("v_add_u32 v%d, s%d, v%d" % (HD + rr, S_T0, vG4))
            if rr: A("v_add_u32 v%d, %d, v%d" % (HD + rr, rr, HD + rr))
            A("v_mul_u32_u24 v%d, 3641, v%d" % (HD + rr, HD + rr))
            A("v_lshrrev_b32 v%d, 16, v%d" % (HD + rr, HD + rr))
    def read_a():
        A("s_lshl_b32 s%d, s%d, 10" % (S_T0, S_A))
        A("v_add_u32 v%d, s%d, v%d" % (vAD, S_T0, vER))
        for r_ in range(4): A("ds_read_b128 v[%d:%d], v%d offset:%d" % (FA + 4*r_, FA + 4*r_ + 3, vAD, r_ * 18432))
    def read_b(sreg_b, dst):
        A("s_add_u32 s%d, s%d, 9" % (S_T0, sreg_b)); A("s_lshl_b32 s%d, s%d, 10" % (S_T0, S_T0))
        A("v_add_u32 v%d, s%d, v%d" % (vAD + 1, S_T0, vER))
        for r_ in range(4): A("ds_read_b128 v[%d:%d], v%d offset:%d" % (dst + 4*r_, dst + 4*r_ + 3, vAD + 1, r_ * 18432))
    def mm(dst, bsrc):
        for r_ in range(4):
            cs = "0" if r_ == 0 else "v[%d:%d]" % (dst, dst + 3)
            A("v_mfma_f32_16x16x32_bf16 v[%d:%d], v[%d:%d], v[%d:%d], %s" % (dst, dst + 3, FA + 4*r_, FA + 4*r_ + 3, bsrc(r_), bsrc(r_) + 3, cs))
    def mask_add(src, sreg_b, sreg_off, tag):
        if sreg_b is not None:
            A("s_lshl_b32 s%d, s%d, 4" % (S_T0, sreg_b))
            A("v_add_u32 v%d, s%d, v%d" % (HE, S_T0, vE16))
            A("v_mul_u32_u24 v%d, 3641, v%d" % (HE, HE))
            A("v_lshrrev_b32 v%d, 16, v%d" % (HE, HE))
            for rr in range(4):
                A("v_cmp_eq_u32 s[%d:%d], v%d, v%d" % (84 + 2 * (rr & 1), 85 + 2 * (rr & 1), HD + rr, HE)) if False else None
            for rr in range(4):
                A("v_cmp_eq_u32 vcc, v%d, v%d" % (HD + rr, HE))
                A("s_nop 1")
                A("v_cndmask_b32 v%d, 0, v%d, vcc" % (src + rr, src + rr))
        for rr in range(4):
            A("buffer_atomic_add_f32 v%d, v%d, s[%d:%d], s%d offen offset:%d" % (src + rr, vAT, SRD_KV, SRD_KV + 3, sreg_off, rr * 256))
            A.vm.issue(("at", tag, rr))
    SB = [S_B, S_E3, 59]
    SO = [93, 94, 95]
    A("s_mov_b32 s%d, s%d" % (S_A, S_WAVE))
    read_a()
    for j, db in enumerate((-1, 0, 1)):
        A("s_add_i32 s%d, s%d, %d" % (S_T2, S_A, db))
        A("s_max_i32 s%d, s%d, 0" % (SB[j], S_T2))
        A("s_mul_i32 s%d, s%d, 3" % (SO[j], S_A)); A("s_add_u32 s%d, s%d, %d" % (SO[j], SO[j], j))
        A("s_cmp_eq_u32 s%d, s%d" % (SB[j], S_T2))
        A("s_cselect_b32 s%d, s%d, 0x1fffff" % (SO[j], SO[j]))
        A("s_lshl_b32 s%d, s%d, 10" % (SO[j], SO[j]))
        read_b(SB[j], FB + 16 * j)
    head_rows()
    A("s_waitcnt lgkmcnt(12)")
    mm(KS[3], lambda r_: ONESF)
    A("s_waitcnt lgkmcnt(0)")
    for j in range(3): mm(KS[j], lambda r_, j=j: FB + 16 * j + 4 * r_)
    stamp(A, 1)
    A("s_add_u32 s%d, s%d, 27" % (S_T2, S_A)); A("s_lshl_b32 s%d, s%d, 10" % (S_T2, S_T2))
    A("s_nop 4")
    mask_add(KS[3], None, S_T2, "z")
    for j in range(3): mask_add(KS[j], SB[j], SO[j], j)
    if c == 1:
        A("s_cmp_eq_u32 s%d, 0" % S_R)
        A("s_cbranch_scc1 %s" % L("L_kv8_rd"))
        A("s_mov_b32 s%d, 8" % S_A)
        read_a()
        A("s_add_u32 s%d, s%d, 6" % (SB[0], S_R)); A("s_min_u32 s%d, s%d, 8" % (SB[0], SB[0]))
        read_b(SB[0], FB)
        A("s_waitcnt lgkmcnt(0)")
        A.label(L("L_kv8_rd"))
    stamp(A, 1)
    A("s_barrier")
    stamp(A, 1)
    wdma(19)
    if c == 1:
        A("s_cmp_eq_u32 s%d, 0" % S_R)
        A("s_cbranch_scc1 %s" % L("L_kv8_done"))
        head_rows()
        sv = (list(A.vm.ops), A.vm.done)
        A("s_cmp_eq_u32 s%d, 3" % S_R)
        A("s_cbranch_scc1 %s" % L("L_kv8_z"))
        A("s_add_u32 s%d, s%d, 23" % (SO[0], S_R)); A("s_lshl_b32 s%d, s%d, 10" % (SO[0], SO[0]))
        mm(KS[0], lambda r_: FB + 4 * r_)
        A("s_nop 7"); A("s_nop 1")
        mask_add(KS[0], SB[0], SO[0], "x")
        A("s_branch %s" % L("L_kv8_drain"))
        A.label(L("L_kv8_z"))
        mm(KS[0], lambda r_: ONESF)
        A("s_mov_b32 s%d, %d" % (SO[0], 35 << 10))
        A("s_nop 7"); A("s_nop 1")
        mask_add(KS[0], None, SO[0], "y")
        A.label(L("L_kv8_drain"))
        A("s_waitcnt vmcnt(0)")
        A.vm.ops, A.vm.done = sv
        A.label(L("L_kv8_done"))
    A.lg.all()
    stamp(A); stamp(A, 1)
    first_q = [p for p in range(len(seq)) if seq[p][3] == 3][0]
    for phi in range(first_q, first_q + NF): fread(phi)
    def signal_kv():
        A("s_lshl_b32 s%d, s%d, 2" % (S_T0, S_ROLE)); A("s_add_u32 s%d, s%d, 80" % (S_T0, S_T0))
        A("v_mov_b32 v%d, 0x7fffff00" % vT0); A("v_mov_b32 v%d, s%d" % (vPA, S_T0))
        A("s_lshl_b32 s%d, s%d, 6" % (S_T1, S_WAVE))
        A("v_add_u32 v%d, s%d, v%d" % (vT2, S_T1, vL))
        A("v_cmp_eq_u32 vcc, 0, v%d" % vT2)
        A("v_mov_b32 v%d, 1" % vT3)
        A("s_nop 0")
        A("v_cndmask_b32 v%d, v%d, v%d, vcc" % (vT0, vT0, vPA))
        A("buffer_atomic_add v%d, v%d, s[%d:%d], 0 offen sc1" % (vT3, vT0, SRD_D, SRD_D + 3))
        A.vm.issue(("sig",))
    def kpoll_issue():
        A("buffer_load_dword v%d, v%d, s[%d:%d], 0 offen sc1" % (vPZ, vPA, SRD_D, SRD_D + 3))
        A.vm.issue(("kp",))
    KL, ZL, KL8, ZL8 = ACC + 40, ACC + 52, ACC + 56, ACC + 68
    def kv_loads(sreg_a, kl, zl, voff):
        A("s_mul_i32 s%d, s%d, 3072" % (S_T2, sreg_a))
        for j in range(3):
            for rr in range(4):
                A("buffer_load_dword v%d, v%d, s[%d:%d], s%d offen offset:%d sc1" % (kl + 4*j + rr, voff, SRD_KV, SRD_KV + 3, S_T2, j * 1024 + rr * 256))
        A("s_add_u32 s%d, s%d, 27" % (S_T2, sreg_a)); A("s_lshl_b32 s%d, s%d, 10" % (S_T2, S_T2))
        for rr in range(4):
            A("buffer_load_dword v%d, v%d, s[%d:%d], s%d offen offset:%d sc1" % (zl + rr, voff, SRD_KV, SRD_KV + 3, S_T2, rr * 256))
    def kv_loads_all(sfx):
        A("v_lshlrev_b32 v%d, 2, v%d" % (vT0, vL))
        kv_loads(S_WAVE, KL, ZL, vT0)
        if c == 0:
            A("s_cmp_lg_u32 s%d, 0" % S_R)
            A("s_cbranch_scc1 %s" % L("L_kvl8" + sfx))
            A("s_mov_b32 s%d, 8" % S_A)
            kv_loads(S_A, KL8, ZL8, vT0)
            A.label(L("L_kvl8" + sfx))
    S_KVOK = S_E1
    def kpoll_early():
        A.wait(vm=[("kp",)])
        A("v_readfirstlane_b32 s%d, v%d" % (S_T0, vPZ))
        A("s_mov_b32 s%d, 0" % S_KVOK)
        A("s_nop 2")
        A("s_cmp_lt_u32 s%d, 16" % S_T0)
        A("s_cbranch_scc1 %s" % L("L_kv_late"))
        A("s_mov_b32 s%d, 1" % S_KVOK)
        kv_loads_all("a")
        A.label(L("L_kv_late"))
    run_steps(18, 27, xvm={20: [("at", 2, 3)]}, xblk={20: [signal_kv], 23: [kpoll_issue], 25: [kpoll_early]})
    stamp(A)
    stamp(A, 2)
    A("s_and_b32 s%d, s%d, 3" % (S_T1, S_WAVE))
    A("s_mul_i32 s%d, s%d, 18" % (S_T0, S_WAVE))
    for q in range(3):
        def row(q=q):
            A("v_lshrrev_b32 v%d, 1, v%d" % (vT3, vT1))
            A("v_add_u32 v%d, s%d, v%d" % (vT3, S_T1, vT3))
            A("v_and_b32 v%d, 3, v%d" % (vT3, vT3)); A("v_lshlrev_b32 v%d, 1, v%d" % (vT3, vT3))
            A("v_xor_b32 v%d, v%d, v%d" % (vT2, vT2, vT3))
            A("v_add_u32 v%d, s%d, v%d" % (vT1, S_T0, vT1))
            A("v_mul_u32_u24 v%d, 1152, v%d" % (vT1, vT1))
            A("v_lshl_add_u32 v%d, v%d, 4, v%d" % (vDM + q, vT2, vT1))
        piece_pattern(q, row)
    A("s_mul_i32 s%d, s%d, %d" % (S_MB, S_WAVE, 18 * 384))
    def cdma1(ch, q):
        last = (q == 6)
        if last: A("s_mov_b32 exec_hi, 0xffff")
        A("s_add_u32 m0, s%d, %d" % (S_MB, (ch & 1) * CH + q * 1024))
        A("s_mov_b32 s%d, %d" % (S_T3, (q // 3) * 8 * 1152 + ch * 384))
        A("buffer_load_dwordx4 v%d, s[%d:%d], s%d offen lds" % (vDM + q % 3, SRD_B, SRD_B + 3, S_T3))
        if last: A("s_mov_b32 exec_hi, -1")
        A.vm.issue(("c", ch, q))
    A("s_waitcnt lgkmcnt(0)"); A.lg.all()
    A("s_barrier")
    A("s_cmp_eq_u32 s%d, 1" % S_KVOK)
    A("s_cbranch_scc1 %s" % L("L_kv_have"))
    A.vm.issue(("kp2",)); A.vm.all()
    A("s_waitcnt vmcnt(0)")
    A("buffer_load_dword v%d, v%d, s[%d:%d], 0 offen sc1" % (vPZ, vPA, SRD_D, SRD_D + 3))
    A("s_waitcnt vmcnt(0)")
    lab = A.newlabel("L_poll"); ok = A.newlabel("L_pollok")
    A("s_mov_b32 s%d, 0" % S_T1)
    A.label(lab)
    A("v_readfirstlane_b32 s%d, v%d" % (S_T0, vPZ))
    A("s_add_u32 s%d, s%d, 1" % (S_T1, S_T1))
    A("s_nop 2")
    A("s_cmp_ge_u32 s%d, 16" % S_T0)
    A("s_cbranch_scc1 %s" % ok)
    A("s_cmp_ge_u32 s%d, 50000" % S_T1)
    A("s_cbranch_scc1 %s" % ok)
    A("s_sleep 2")
    A("buffer_load_dword v%d, v%d, s[%d:%d], 0 offen sc1" % (vPZ, vPA, SRD_D, SRD_D + 3))
    A("s_waitcnt vmcnt(0)")
    A("s_branch %s" % lab)
    A.label(ok)
    kv_loads_all("b")
    A.label(L("L_kv_have"))
    stamp(A, 2)
    nq = len(qt)
    RLQ = WR
    for u in range(2): A("v_mul_f32 v%d, s%d, v%d" % (RLQ + u, S_L2E, vRSl + u))
    TP3 = [WR + 2 + i for i in range(8)]
    vPQ = vT1
    A("s_mul_i32 s%d, s%d, %d" % (S_T0, S_R, 2 * 9 * 512)); A("s_add_u32 s%d, s%d, %d" % (S_T0, S_T0, PQ))
    A("v_lshl_add_u32 v%d, v%d, 3, s%d" % (vPQ, vL, S_T0))
    cq = list(range(7))
    for i, t in enumerate(qt):
        regs = list(range(ACC + 8 * i, ACC + 8 * i + 8))
        phi_vals(regs, TP3, [(RLQ + (k // 4), vRSl + (k // 4)) for k in range(8)])
        for u in range(2):
            b = ACC + 8 * i + 4 * u
            A("v_cvt_pk_bf16_f32 v%d, v%d, v%d" % (b, b, b + 1)); A("v_cvt_pk_bf16_f32 v%d, v%d, v%d" % (b + 1, b + 2, b + 3))
            A("ds_write_b64 v%d, v[%d:%d] offset:%d" % (vPQ, b, b + 1, u * 9 * 512 + t * 512))
        for _ in range(2):
            if cq: cdma1(0, cq.pop(0))
    while cq: cdma1(0, cq.pop(0))
    stamp(A); stamp(A, 2)
    HD, HE, ZT, PKT, vFW = 24, 28, 32, 36, 30
    vG4, vE16 = vT2, vT3
    A("v_lshrrev_b32 v%d, 4, v%d" % (vG4, vL)); A("v_lshlrev_b32 v%d, 2, v%d" % (vG4, vG4))
    A("v_and_b32 v%d, 15, v%d" % (vE16, vL))
    def kvf(sreg_a, kl, zl):
        A("s_lshl_b32 s%d, s%d, 4" % (S_T0, sreg_a))
        for rr in range(4):
            A("v_add_u32 v%d, s%d, v%d" % (HD + rr, S_T0, vG4))
            if rr: A("v_add_u32 v%d, %d, v%d" % (HD + rr, rr, HD + rr))
            A("v_mul_u32_u24 v%d, 3641, v%d" % (HD + rr, HD + rr))
            A("v_lshrrev_b32 v%d, 16, v%d" % (HD + rr, HD + rr))
        A("s_mul_i32 s%d, s%d, %d" % (S_T0, sreg_a, 3 * 512)); A("s_add_u32 s%d, s%d, %d" % (S_T0, S_T0, KVF))
        A("v_lshl_add_u32 v%d, v%d, 3, s%d" % (vFW, vL, S_T0))
        for j in range(3):
            A("s_add_u32 s%d, s%d, %d" % (S_T0, sreg_a, j + 15)); A("s_lshl_b32 s%d, s%d, 4" % (S_T0, S_T0)); A("s_sub_u32 s%d, s%d, 256" % (S_T0, S_T0))
            A("v_add_u32 v%d, s%d, v%d" % (HE, S_T0, vE16))
            A("v_and_b32 v%d, 0xff, v%d" % (HE, HE))
            A("v_mul_u32_u24 v%d, 3641, v%d" % (HE, HE))
            A("v_lshrrev_b32 v%d, 16, v%d" % (HE, HE))
            for rr in range(4):
                A("v_cmp_eq_u32 vcc, v%d, v%d" % (HD + rr, HE))
                A("s_nop 1")
                A("v_cndmask_b32 v%d, 0, v%d, vcc" % (ZT + rr, zl + rr))
            A("v_cvt_pk_bf16_f32 v%d, v%d, v%d" % (PKT, kl + 4*j, kl + 4*j + 1)); A("v_cvt_pk_bf16_f32 v%d, v%d, v%d" % (PKT + 1, kl + 4*j + 2, kl + 4*j + 3))
            A("v_cvt_pk_bf16_f32 v%d, v%d, v%d" % (PKT + 2, ZT, ZT + 1)); A("v_cvt_pk_bf16_f32 v%d, v%d, v%d" % (PKT + 3, ZT + 2, ZT + 3))
            A("ds_write_b64 v%d, v[%d:%d] offset:%d" % (vFW, PKT, PKT + 1, j * 512))
            A("ds_write_b64 v%d, v[%d:%d] offset:%d" % (vFW, PKT + 2, PKT + 3, (ZF - KVF) + j * 512))
            A("s_nop 1")
    A("s_waitcnt vmcnt(7)")
    stamp(A, 2)
    kvf(S_WAVE, KL, ZL)
    if c == 0:
        A("s_cmp_lg_u32 s%d, 0" % S_R)
        A("s_cbranch_scc1 %s" % L("L_kvf8"))
        kvf(S_A, KL8, ZL8)
        A.label(L("L_kvf8"))
    A("s_waitcnt lgkmcnt(0)"); A.lg.all()
    stamp(A, 2)
    A("s_barrier")
    stamp(A, 2)
    PF = 40
    vPR = vT0
    A("s_lshl_b32 s%d, s%d, 1" % (S_T0, S_R)); A("s_add_u32 s%d, s%d, %d" % (S_T0, S_T0, c))
    A("s_mul_i32 s%d, s%d, %d" % (S_T0, S_T0, 9 * 512)); A("s_add_u32 s%d, s%d, %d" % (S_T0, S_T0, PQ))
    A("v_lshl_add_u32 v%d, v%d, 3, s%d" % (vPR, vL, S_T0))
    for t in range(9):
        A("ds_read_b64 v[%d:%d], v%d offset:%d" % (PF + 2*t, PF + 2*t + 1, vPR, t * 512))
    vKR = vT1
    A("v_lshlrev_b32 v%d, 3, v%d" % (vKR, vL)); A("v_add_u32 v%d, %d, v%d" % (vKR, KVF, vKR))
    KF = [60, 72]
    NUM, DEN, OT = 84, 120, 156
    def oread(b):
        st = KF[b & 1]
        al = [a for a in (b - 1, b, b + 1) if 0 <= a <= 8]
        for i_, a in enumerate(al):
            j = b - a + 1
            A("ds_read_b64 v[%d:%d], v%d offset:%d" % (st + 2*i_, st + 2*i_ + 1, vKR, (a * 3 + j) * 512))
            A("ds_read_b64 v[%d:%d], v%d offset:%d" % (st + 6 + 2*i_, st + 6 + 2*i_ + 1, vKR, (ZF - KVF) + (a * 3 + j) * 512))
        return 2 * len(al)
    oread(0)
    for b in range(9):
        st = KF[b & 1]
        al = [a for a in (b - 1, b, b + 1) if 0 <= a <= 8]
        nn = oread(b + 1) if b + 1 < 9 else 0
        A("s_waitcnt lgkmcnt(%d)" % nn)
        for i_, a in enumerate(al):
            cs = "0" if i_ == 0 else "v[%d:%d]" % (NUM + 4*b, NUM + 4*b + 3)
            A("v_mfma_f32_16x16x16_bf16 v[%d:%d], v[%d:%d], v[%d:%d], %s" % (NUM + 4*b, NUM + 4*b + 3, st + 2*i_, st + 2*i_ + 1, PF + 2*a, PF + 2*a + 1, cs))
        for i_, a in enumerate(al):
            cs = "0" if i_ == 0 else "v[%d:%d]" % (DEN + 4*b, DEN + 4*b + 3)
            A("v_mfma_f32_16x16x16_bf16 v[%d:%d], v[%d:%d], v[%d:%d], %s" % (DEN + 4*b, DEN + 4*b + 3, st + 6 + 2*i_, st + 6 + 2*i_ + 1, PF + 2*a, PF + 2*a + 1, cs))
        if b >= 2:
            bb = b - 2
            for i_ in range(4): A("v_add_f32 v%d, 0x%x, v%d" % (DEN + 4*bb + i_, C1E6, DEN + 4*bb + i_))
            for i_ in range(4): A("v_rcp_f32 v%d, v%d" % (DEN + 4*bb + i_, DEN + 4*bb + i_))
    stamp(A, 2)
    A("s_nop 7"); A("s_nop 3")
    for bb in (7, 8):
        for i_ in range(4): A("v_add_f32 v%d, 0x%x, v%d" % (DEN + 4*bb + i_, C1E6, DEN + 4*bb + i_))
        for i_ in range(4): A("v_rcp_f32 v%d, v%d" % (DEN + 4*bb + i_, DEN + 4*bb + i_))
    A("s_nop 0")
    for b in range(9):
        for i_ in range(4): A("v_mul_f32 v%d, v%d, v%d" % (NUM + 4*b + i_, NUM + 4*b + i_, DEN + 4*b + i_))
        A("v_cvt_pk_bf16_f32 v%d, v%d, v%d" % (OT + 2*b, NUM + 4*b, NUM + 4*b + 1)); A("v_cvt_pk_bf16_f32 v%d, v%d, v%d" % (OT + 2*b + 1, NUM + 4*b + 2, NUM + 4*b + 3))
        A("ds_write_b64 v%d, v[%d:%d] offset:%d" % (vPR, OT + 2*b, OT + 2*b + 1, b * 512))
    vCR = 40
    A("v_lshrrev_b32 v%d, 4, v%d" % (vT1, vL)); A("v_lshlrev_b32 v%d, 2, v%d" % (vT1, vT1))
    A("v_lshrrev_b32 v%d, 2, v%d" % (vT2, vL)); A("v_and_b32 v%d, 3, v%d" % (vT2, vT2))
    A("v_add_u32 v%d, v%d, v%d" % (vT1, vT1, vT2))
    A("v_and_b32 v%d, 6, v%d" % (vT3, vT1))
    A("v_mul_u32_u24 v%d, 384, v%d" % (vT1, vT1))
    A("v_and_b32 v%d, 3, v%d" % (vT2, vL))
    A("v_lshl_add_u32 v%d, v%d, 3, v%d" % (vT1, vT2, vT1))
    stamp(A, 2)
    A("s_waitcnt vmcnt(0) lgkmcnt(0)"); A.vm.all(); A.lg.all()
    stamp(A, 2)
    A("s_barrier")
    stamp(A, 2)
    OB = 0
    A("s_mul_i32 s%d, s%d, %d" % (S_T0, S_R, 2 * 9 * 512)); A("s_add_u32 s%d, s%d, %d" % (S_T0, S_T0, PQ))
    A("v_lshl_add_u32 v%d, v%d, 3, s%d" % (vPR, vL, S_T0))
    for u in range(2):
        for b in range(9):
            A("ds_read_b64 v[%d:%d], v%d offset:%d" % (OB + 20*u + 2*b, OB + 20*u + 2*b + 1, vPR, u * 9 * 512 + b * 512))
    for j in range(4):
        A("v_xor_b32 v%d, %d, v%d" % (vT2, 2 * j, vT3))
        A("v_lshl_add_u32 v%d, v%d, 4, v%d" % (vCR + j, vT2, vT1))
        A("v_add_u32 v%d, %d, v%d" % (vCR + 4 + j, CH, vCR + j))
    vSO = 48
    A("v_and_b32 v%d, 15, v%d" % (vT1, vL))
    A("v_lshrrev_b32 v%d, 5, v%d" % (vT2, vL)); A("v_lshl_add_u32 v%d, v%d, 4, v%d" % (vT1, vT2, vT1))
    A("v_lshrrev_b32 v%d, 4, v%d" % (vT2, vL)); A("v_and_b32 v%d, 1, v%d" % (vT2, vT2)); A("v_lshl_add_u32 v%d, v%d, 5, v%d" % (vT1, vT2, vT1))
    A("s_mul_i32 s%d, s%d, %d" % (S_T0, S_R, 18 * 2048))
    A("v_lshl_add_u32 v%d, v%d, 4, s%d" % (vSO, vT1, S_T0))
    stamp(A); stamp(A, 2)
    WF5 = 52
    AC5 = 108
    PK5 = 124
    tl = list(range(6)) if c == 0 else list(range(6, 12))
    items = [(ch, t) for ch in range(3) for t in tl]
    def tread(idx, part):
        ch, t = items[idx]
        f = WF5 + 18 * (idx % 3); base = vCR + (t & 3) + 4 * (ch & 1)
        rd = []
        for pb in range(4):
            rd.append((f + 4*pb, (32 * pb) * 384 + 128 * (t >> 2))); rd.append((f + 4*pb + 2, (32 * pb + 16) * 384 + 128 * (t >> 2)))
        rd.append((f + 16, 128 * 384 + 128 * (t >> 2)))
        for q, (rg, off) in enumerate(rd):
            if (q < 5) == (part == 0):
                A("ds_read_b64_tr_b16 v[%d:%d], v%d offset:%d" % (rg, rg + 1, base, off))
                A.lg.issue(("t", idx, q))
    def tstore(idx):
        ch, t = items[idx]
        ac = AC5 + 8 * (idx & 1); pk = PK5 + 4 * (idx & 1)
        A("v_cvt_pk_bf16_f32 v%d, v%d, v%d" % (pk, ac, ac + 1)); A("v_cvt_pk_bf16_f32 v%d, v%d, v%d" % (pk + 1, ac + 2, ac + 3))
        A("v_cvt_pk_bf16_f32 v%d, v%d, v%d" % (pk + 2, ac + 4, ac + 5)); A("v_cvt_pk_bf16_f32 v%d, v%d, v%d" % (pk + 3, ac + 6, ac + 7))
        A("s_mov_b32 s%d, %d" % (S_T2, (12 * ch + t) * 1024)); A("s_nop 0")
        A("v_permlane32_swap_b32 v%d, v%d" % (pk, pk + 2)); A("v_permlane32_swap_b32 v%d, v%d" % (pk + 1, pk + 3))
        A("s_nop 0")
        A("buffer_store_dwordx4 v[%d:%d], v%d, s[%d:%d], s%d offen%s" % (pk, pk + 3, vSO, SRD_P, SRD_P + 3, S_T2, opt.stf))
        A.vm.issue(("st", idx))
    tread(0, 0); tread(0, 1)
    A("s_waitcnt lgkmcnt(9)")
    A("s_barrier")
    dq = [(1, q) for q in range(7)]
    for idx, (ch, t) in enumerate(items):
        f = WF5 + 18 * (idx % 3); ac = AC5 + 8 * (idx & 1)
        nxt = idx + 1 if idx + 1 < len(items) else None
        cross = nxt is not None and items[nxt][0] != ch
        if cross:
            A.wait(vm=[("c", items[nxt][0], 6)], lg=[("t", idx, 8)])
            A("s_barrier")
            if ch + 2 < 3: dq = [(ch + 2, q) for q in range(7)]
        A.wait(lg=[("t", idx, 8)])
        for u in range(2):
            for pb in range(4):
                cs = "0" if pb == 0 else "v[%d:%d]" % (ac + 4*u, ac + 4*u + 3)
                A("v_mfma_f32_16x16x32_bf16 v[%d:%d], v[%d:%d], v[%d:%d], %s" % (ac + 4*u, ac + 4*u + 3, f + 4*pb, f + 4*pb + 3, OB + 20*u + 4*pb, OB + 20*u + 4*pb + 3, cs))
                if nxt is not None and u == 0 and pb == 1: tread(nxt, 0)
                if nxt is not None and u == 1 and pb == 1: tread(nxt, 1)
        A("s_nop 1")
        for u in range(2):
            A("v_mfma_f32_16x16x16_bf16 v[%d:%d], v[%d:%d], v[%d:%d], v[%d:%d]" % (ac + 4*u, ac + 4*u + 3, f + 16, f + 17, OB + 20*u + 16, OB + 20*u + 17, ac + 4*u, ac + 4*u + 3))
        if idx >= 1: tstore(idx - 1)
        for _ in range(2):
            if dq: cdma1(*dq.pop(0))
    A("s_nop 7"); A("s_nop 1")
    tstore(len(items) - 1)
    stamp(A, 9)
    att_tail(A, "a%d" % c)
    stamp(A, 9)
    stamp_flush(A)
    A("s_endpgm")
```

```python
import sys
from asmlib import *

S, D, F = 2048, 576, 4608
PART_BYTES = S * D * 2
NPART = 16
WS_KV = 40 << 20
WS_STAMP = 48 << 20
WS_OF = 32 << 20
LOG2E = 0x3fb8aa3b
EPS_LN = 0x3727c5ac
INV576 = 0x3ae38e39
C1E6 = 0x358637bd

class Opt:
    stamps = False
    stamp_steps = ()
    dbgt = False
    stf = " sc0 sc1"
    exp = ""
    touch = True
    lvl = 0
    swave = 0
opt = Opt()

class Ctr:
    def __init__(self, maxv):
        self.ops = []; self.done = 0; self.maxv = maxv
    def issue(self, tag):
        self.ops.append(tag)
    def need(self, tags):
        idx = -1
        pos = {}
        for i, t in enumerate(self.ops): pos[t] = i
        for t in tags:
            assert t in pos, ("tag not issued", t)
            idx = max(idx, pos[t])
        if idx < self.done: return None
        n = min(len(self.ops) - 1 - idx, self.maxv)
        self.done = max(self.done, len(self.ops) - n)
        return n
    def all(self):
        self.done = len(self.ops)

class K(Asm):
    def __init__(self):
        super().__init__()
        self.reset()
        self.nstamp = 0
    def reset(self):
        self.vm = Ctr(63); self.lg = Ctr(15)
    def wait(self, vm=None, lg=None):
        a = self.vm.need(vm) if vm else None
        b = self.lg.need(lg) if lg else None
        parts = []
        if a is not None: parts.append("vmcnt(%d)" % a)
        if b is not None: parts.append("lgkmcnt(%d)" % b)
        if parts: self("s_waitcnt " + " ".join(parts))
    def waitall(self):
        self("s_waitcnt vmcnt(0) lgkmcnt(0)"); self.vm.all(); self.lg.all()

S_X, S_WQKV, S_WO, S_W1, S_W2, S_OUT, S_DBG, S_WS = 4, 6, 8, 12, 14, 16, 18, 20
S_A, S_B = 22, 23
SRD_X, SRD_A, SRD_B, SRD_P = 24, 28, 32, 36
S_WAVE, S_R, S_C, S_ROLE, S_TILE = 40, 41, 42, 43, 44
S_M0B, S_T0, S_T1, S_T2, S_T3 = 45, 46, 47, 48, 49
S_ONES, S_L2E, S_XM0, S_SEL0, S_SEL1 = 50, 51, 52, 53, 54
S_E0, S_E1, S_E2, S_E3 = 55, 56, 57, 58
SRD_KV, SRD_D = 8, 16
STAMP0 = 60

def stamp(A, lvl=0):
    if not opt.stamps: return
    if lvl != opt.lvl and not (lvl == 0 and opt.lvl == 0):
        if lvl != 9: return
    k = A.nstamp; A.nstamp += 1
    assert STAMP0 + 2 * k + 1 < 90
    A("s_memtime s[%d:%d]" % (STAMP0 + 2*k, STAMP0 + 1 + 2*k))
def stamp_flush(A):
    if opt.stamps:
        k = A.nstamp
        A("s_memrealtime s[90:91]")
        A("s_waitcnt lgkmcnt(0)")
        A("s_cmp_lg_u32 s%d, %d" % (S_WAVE, opt.swave))
        lab = A.newlabel("L_stamp_done")
        A("s_cbranch_scc1 %s" % lab)
        A("s_lshl_b32 s%d, s2, 7" % S_T0)
        A("s_add_u32 s%d, s%d, %d" % (S_T0, S_T0, WS_STAMP))
        A("s_add_u32 s56, s%d, s%d" % (S_WS, S_T0)); A("s_addc_u32 s57, s%d, 0" % (S_WS + 1))
        A("s_and_b32 s57, s57, 0xffff"); A("s_mov_b32 s58, 128"); A("s_mov_b32 s59, 0x20000")
        A("v_mov_b32 v250, 0")
        for j in range(k):
            A("v_mov_b32 v251, s%d" % (STAMP0 + 2*j))
            A("buffer_store_dword v251, v250, s[56:59], 0 offen offset:%d" % (4*j))
        A("v_mov_b32 v251, s90"); A("buffer_store_dword v251, v250, s[56:59], 0 offen offset:%d" % (4*k))
        A("v_mov_b32 v251, s92"); A("buffer_store_dword v251, v250, s[56:59], 0 offen offset:%d" % (4*(k+1)))
        A.label(lab)
    if opt.dbgt:
        lab = A.newlabel("L_dbgt")
        A("s_memrealtime s[62:63]")
        A("s_waitcnt lgkmcnt(0)")
        A("s_cmp_lg_u32 s%d, 0" % S_WAVE)
        A("s_cbranch_scc1 %s" % lab)
        A("s_add_u32 s64, s%d, %d" % (S_WS, WS_STAMP)); A("s_addc_u32 s65, s%d, 0" % (S_WS + 1)); A("s_and_b32 s65, s65, 0xffff")
        A("s_mov_b32 s66, 4096"); A("s_mov_b32 s67, 0x20000")
        A("s_lshl_b32 s68, s2, 3")
        A("s_mov_b64 exec, 1")
        A("v_mov_b32 v250, s92"); A("v_mov_b32 v251, s62"); A("v_mov_b32 v252, s68")
        A("buffer_store_dwordx2 v[250:251], v252, s[64:67], 0 offen")
        A.label(lab)
    A.nstamp = 0

def srd(A, sreg, lo, hi, nbytes):
    A("s_mov_b32 s%d, s%d" % (sreg, lo))
    A("s_and_b32 s%d, s%d, 0xffff" % (sreg + 1, hi))
    A("s_mov_b32 s%d, 0x%x" % (sreg + 2, nbytes))
    A("s_mov_b32 s%d, 0x20000" % (sreg + 3))

def srd_off(A, sreg, lo, hi, soff, total):
    A("s_add_u32 s%d, s%d, s%d" % (sreg, lo, soff))
    A("s_addc_u32 s%d, s%d, 0" % (sreg + 1, hi))
    A("s_and_b32 s%d, s%d, 0xffff" % (sreg + 1, sreg + 1))
    A("s_sub_u32 s%d, 0x%x, s%d" % (sreg + 2, total, soff))
    A("s_mov_b32 s%d, 0x20000" % (sreg + 3))

def xsum32(A, r, tmp):
    A("v_mov_b32 v%d, v%d" % (tmp, r)); A("s_nop 1")
    A("v_permlane32_swap_b32 v%d, v%d" % (r, tmp)); A("s_nop 1")
    A("v_add_f32 v%d, v%d, v%d" % (r, r, tmp))
def xsum16(A, r, tmp):
    A("v_mov_b32 v%d, v%d" % (tmp, r)); A("s_nop 1")
    A("v_permlane16_swap_b32 v%d, v%d" % (r, tmp)); A("s_nop 1")
    A("v_add_f32 v%d, v%d, v%d" % (r, r, tmp))

def x_unit_setup(A, vL, vDX, vT0, vT1, vT2, vT3, XS):
    A("s_lshl_b32 s%d, s%d, 7" % (S_T0, S_TILE))
    A("s_lshl_b32 s%d, s%d, 4" % (S_T1, S_WAVE))
    A("s_add_u32 s%d, s%d, s%d" % (S_T0, S_T0, S_T1))
    A("s_mul_i32 s%d, s%d, 1152" % (S_T0, S_T0))
    A("v_lshrrev_b32 v%d, 3, v%d" % (vT0, vL))
    A("v_mul_u32_u24 v%d, 1152, v%d" % (vT1, vT0))
    A("v_add_u32 v%d, s%d, v%d" % (vT1, S_T0, vT1))
    A("v_lshrrev_b32 v%d, 4, v%d" % (vT2, vL))
    A("v_and_b32 v%d, 7, v%d" % (vT3, vL))
    A("v_xor_b32 v%d, v%d, v%d" % (vDX, vT3, vT2))
    A("v_lshl_add_u32 v%d, v%d, 4, v%d" % (vDX, vDX, vT1))
    A("v_add_u32 v%d, 4, v%d" % (vT2, vT2))
    A("v_xor_b32 v%d, v%d, v%d" % (vDX + 1, vT3, vT2))
    A("v_lshl_add_u32 v%d, v%d, 4, v%d" % (vDX + 1, vDX + 1, vT1))
    A("v_add_u32 v%d, %d, v%d" % (vDX + 1, 8 * 1152, vDX + 1))
    A("s_lshl_b32 s%d, s%d, 11" % (S_XM0, S_WAVE))
    A("s_add_u32 s%d, s%d, %d" % (S_XM0, S_XM0, XS))

def x_unit_dma(A, kb, vDX, nslots):
    slot = kb % nslots
    for q in range(2):
        A("s_add_u32 m0, s%d, %d" % (S_XM0, slot * 16384 + q * 1024))
        A("s_movk_i32 s%d, %d" % (S_T3, kb * 128))
        A("buffer_load_dwordx4 v%d, s[%d:%d], s%d offen lds" % (vDX + q, SRD_X, SRD_X + 3, S_T3))
        A.vm.issue(("x", kb, q))

def emit_step(A, c, groups, block, pre_vm=None, pre_lg=None, head=None):
    A.wait(vm=pre_vm or None, lg=pre_lg or None)
    A("s_barrier")
    if head:
        for fn in head: fn()
    if c == 0:
        for g in groups: g()
        for fn in block: fn()
    else:
        for fn in block: fn()
        for g in groups: g()


WS_FLAG = 44 << 20
TAG_OFF = 240

def publish_tag(A):
    A("s_cmp_lg_u32 s2, 0"); A("s_cbranch_scc1 L_notag")
    A("s_cmp_lg_u32 s%d, 0" % S_WAVE); A("s_cbranch_scc1 L_notag")
    A("s_memrealtime s[%d:%d]" % (S_E0 + 1, S_E0 + 2))
    A("s_mov_b32 s%d, s%d" % (SRD_A, S_DBG)); A("s_and_b32 s%d, s%d, 0xffff" % (SRD_A + 1, S_DBG + 1)); A("s_mov_b32 s%d, 256" % (SRD_A + 2)); A("s_mov_b32 s%d, 0x20000" % (SRD_A + 3))
    A("s_waitcnt lgkmcnt(0)")
    A("s_or_b32 s%d, s%d, 1" % (S_E0 + 1, S_E0 + 1))
    A("v_mov_b32 v2, s%d" % (S_E0 + 1)); A("v_mov_b32 v3, %d" % TAG_OFF)
    A("s_mov_b64 exec, 1")
    A("buffer_store_dword v2, v3, s[%d:%d], 0 offen sc0 sc1" % (SRD_A, SRD_A + 3))
    A("s_mov_b64 exec, -1")
    A.label("L_notag")

def tail_common(A, L):
    SRD_O, SRD_PP, SRD_F = 28, 32, 36
    A("s_waitcnt vmcnt(0) lgkmcnt(0)")
    A("v_mbcnt_lo_u32_b32 v1, -1, 0")
    A("v_mbcnt_hi_u32_b32 v1, -1, v1")
    A("s_load_dwordx2 s[4:5], s[0:1], 0")
    A("s_load_dwordx4 s[12:15], s[0:1], 48")
    A("s_load_dwordx2 s[20:21], s[0:1], 64")
    A("s_barrier")
    A("s_waitcnt lgkmcnt(0)")
    srd(A, SRD_D, 14, 15, 256)
    A("s_lshl_b32 s%d, s%d, 7" % (S_T1, S_TILE)); A("s_add_u32 s%d, s%d, %d" % (S_T1, S_T1, WS_FLAG))
    A("s_add_u32 s%d, s20, s%d" % (SRD_F, S_T1)); A("s_addc_u32 s%d, s21, 0" % (SRD_F + 1))
    A("s_and_b32 s%d, s%d, 0xffff" % (SRD_F + 1, SRD_F + 1)); A("s_mov_b32 s%d, 64" % (SRD_F + 2)); A("s_mov_b32 s%d, 0x20000" % (SRD_F + 3))
    A("v_mov_b32 v6, %d" % TAG_OFF)
    A("s_mov_b32 s%d, 0" % S_T1)
    A.label(L("L_tag"))
    A("buffer_load_dword v5, v6, s[%d:%d], 0 offen sc1" % (SRD_D, SRD_D + 3))
    A("s_waitcnt vmcnt(0)")
    A("v_readfirstlane_b32 s%d, v5" % S_E3)
    A("s_add_u32 s%d, s%d, 1" % (S_T1, S_T1))
    A("s_nop 2")
    A("s_cmp_lg_u32 s%d, 0" % S_E3)
    A("s_cbranch_scc1 %s" % L("L_tagok"))
    A("s_cmp_lt_u32 s%d, 200000" % S_T1)
    A("s_cbranch_scc1 %s" % L("L_tag"))
    A.label(L("L_tagok"))

def tail_signal(A, L, jexpr):
    SRD_F = 36
    A("s_cmp_lg_u32 s%d, 0" % S_WAVE)
    A("s_cbranch_scc1 %s" % L("L_t_nosig"))
    jexpr()
    A("s_lshl_b32 s%d, s%d, 2" % (S_T0, S_T0))
    A("v_mov_b32 v4, s%d" % S_E3); A("v_mov_b32 v5, s%d" % S_T0)
    A("s_mov_b64 exec, 1")
    A("buffer_store_dword v4, v5, s[%d:%d], 0 offen sc0 sc1" % (SRD_F, SRD_F + 3))
    A("s_mov_b64 exec, -1")
    A.label(L("L_t_nosig"))

def att_tail(A, sfx):
    L = lambda s: "%s_%s" % (s, sfx)
    tail_common(A, L)
    tail_signal(A, L, lambda: A("s_add_u32 s%d, s%d, 12" % (S_T0, S_ROLE)))

def mlp_tail(A, sfx):
    L = lambda s: "%s_%s" % (s, sfx)
    SRD_O, SRD_PP, SRD_F = 28, 32, 36
    vL, vT, vPZ, vPA = 1, 4, 5, 6
    PB = [16, 96]; XR = [8, 12]; SM = [80, 160]; PO = [2, 7]; XO = [3, 240]
    tail_common(A, L)
    tail_signal(A, L, lambda: A("s_mov_b32 s%d, s%d" % (S_T0, S_ROLE)))
    srd(A, SRD_X, 4, 5, S * D * 2)
    srd(A, SRD_O, 12, 13, S * D * 2)
    srd(A, SRD_PP, 20, 21, NPART * PART_BYTES)
    A("s_mul_i32 s%d, s%d, 12" % (S_E0, S_ROLE))
    def addr(st, hb_sreg):
        po, xo = PO[st], XO[st]
        A("s_lshr_b32 s%d, s%d, 1" % (S_T1, hb_sreg)); A("s_and_b32 s%d, s%d, 1" % (S_T2, hb_sreg))
        A("s_mul_i32 s%d, s%d, 3641" % (S_T3, S_T1)); A("s_lshr_b32 s%d, s%d, 16" % (S_T3, S_T3))
        A("s_mul_i32 s%d, s%d, 18" % (S_E1, S_T3)); A("s_sub_u32 s%d, s%d, s%d" % (S_E1, S_T1, S_E1))
        A("s_mul_i32 s%d, s%d, 72" % (S_E2, S_TILE)); A("s_add_u32 s%d, s%d, s%d" % (S_E2, S_E2, S_T1))
        A("s_lshl_b32 s%d, s%d, 1" % (S_E2, S_E2)); A("s_add_u32 s%d, s%d, s%d" % (S_E2, S_E2, S_T2)); A("s_lshl_b32 s%d, s%d, 10" % (S_E2, S_E2))
        A("v_lshlrev_b32 v%d, 4, v%d" % (po, vL)); A("v_add_u32 v%d, s%d, v%d" % (po, S_E2, po))
        A("s_lshl_b32 s%d, s%d, 7" % (S_E2, S_TILE)); A("s_lshl_b32 s%d, s%d, 5" % (S_T3, S_T3)); A("s_add_u32 s%d, s%d, s%d" % (S_E2, S_E2, S_T3))
        A("v_and_b32 v%d, 31, v%d" % (xo, vL)); A("v_add_u32 v%d, s%d, v%d" % (xo, S_E2, xo))
        A("v_mul_u32_u24 v%d, 1152, v%d" % (xo, xo))
        A("v_lshrrev_b32 v%d, 5, v%d" % (vT, vL)); A("v_lshl_add_u32 v%d, v%d, 4, v%d" % (xo, vT, xo))
        A("s_lshl_b32 s%d, s%d, 6" % (S_E1, S_E1)); A("s_lshl_b32 s%d, s%d, 5" % (S_T2, S_T2)); A("s_add_u32 s%d, s%d, s%d" % (S_E1, S_E1, S_T2))
        A("v_add_u32 v%d, s%d, v%d" % (xo, S_E1, xo))
        A("buffer_load_dwordx4 v[%d:%d], v%d, s[%d:%d], 0 offen" % (XR[st], XR[st] + 3, xo, SRD_X, SRD_X + 3))
    A("s_add_u32 s%d, s%d, s%d" % (S_T0, S_E0, S_WAVE)); A("s_mov_b32 s%d, s%d" % (S_A, S_T0))
    addr(0, S_A)
    A("s_and_b32 s%d, s%d, 3" % (S_T0, S_WAVE)); A("s_add_u32 s%d, s%d, s%d" % (S_A, S_E0, S_T0)); A("s_add_u32 s%d, s%d, 8" % (S_A, S_A))
    addr(1, S_A)
    A("v_lshlrev_b32 v%d, 2, v%d" % (vPA, vL))
    def poll(mask, name):
        A("s_cmp_lg_u32 s%d, 0" % S_WAVE)
        A("s_cbranch_scc1 %s" % L(name + "_go"))
        A("s_mov_b32 s%d, 0" % S_T1)
        A.label(L(name + "_poll"))
        A("buffer_load_dword v%d, v%d, s[%d:%d], 0 offen sc1" % (vPZ, vPA, SRD_F, SRD_F + 3))
        A("s_waitcnt vmcnt(0)")
        A("v_cmp_eq_u32 vcc, s%d, v%d" % (S_E3, vPZ))
        A("s_add_u32 s%d, s%d, 1" % (S_T1, S_T1))
        A("s_nop 3")
        A("s_and_b32 s%d, vcc_lo, 0x%x" % (S_T0, mask))
        A("s_cmp_eq_u32 s%d, 0x%x" % (S_T0, mask))
        A("s_cbranch_scc1 %s" % L(name + "_go"))
        A("s_cmp_ge_u32 s%d, 200000" % S_T1)
        A("s_cbranch_scc1 %s" % L(name + "_go"))
        A("s_sleep 8")
        A("s_branch %s" % L(name + "_poll"))
        A.label(L(name + "_go"))
        A("s_barrier")
    T2 = [176, 192]
    def loads(st, plist, base):
        for n, p in enumerate(plist):
            A("s_mov_b32 s%d, %d" % (S_T3, p * PART_BYTES))
            A("buffer_load_dwordx4 v[%d:%d], v%d, s[%d:%d], s%d offen sc1" % (base + 4*n, base + 4*n + 3, PO[st], SRD_PP, SRD_PP + 3, S_T3))
    def accum(st, n, base, younger):
        sm = SM[st]
        for p in range(n):
            A("s_waitcnt vmcnt(%d)" % (n - 1 - p + younger))
            for q in range(4):
                A("v_dot2_f32_bf16 v%d, v%d, s%d, v%d" % (sm + 2*q, base + 4*p + q, S_SEL0, sm + 2*q))
                A("v_dot2_f32_bf16 v%d, v%d, s%d, v%d" % (sm + 2*q + 1, base + 4*p + q, S_SEL1, sm + 2*q + 1))
    def finish(st):
        sm = SM[st]; xr = XR[st]
        A("s_nop 2")
        for q in range(4): A("v_permlane32_swap_b32 v%d, v%d" % (sm + q, sm + 4 + q))
        A("s_nop 1")
        for q in range(4):
            A("v_lshlrev_b32 v%d, 16, v%d" % (vT, xr + q))
            A("v_and_b32 v%d, 0xffff0000, v%d" % (vPZ, xr + q))
            A("v_add_f32 v%d, v%d, v%d" % (sm + 2*q, sm + 2*q, vT))
            A("v_add_f32 v%d, v%d, v%d" % (sm + 2*q + 1, sm + 2*q + 1, vPZ))
        for q in range(4): A("v_cvt_pk_bf16_f32 v%d, v%d, v%d" % (xr + q, sm + 2*q, sm + 2*q + 1))
        A("buffer_store_dwordx4 v[%d:%d], v%d, s[%d:%d], 0 offen" % (xr, xr + 3, XO[st], SRD_O, SRD_O + 3))
    for st in range(2):
        for q in range(8): A("v_mov_b32 v%d, 0" % (SM[st] + q))
    poll(0x0fff, "L_pa")
    two = L("L_two");
    A("s_cmp_ge_u32 s%d, 4" % S_WAVE)
    A("s_cbranch_scc1 %s" % L("L_a_one"))
    loads(0, range(12), PB[0]); loads(1, range(12), PB[1])
    accum(0, 12, PB[0], 12); accum(1, 12, PB[1], 0)
    A("s_branch %s" % L("L_a_done"))
    A.label(L("L_a_one"))
    loads(0, range(12), PB[0])
    accum(0, 12, PB[0], 0)
    A.label(L("L_a_done"))
    poll(0xf000, "L_pb")
    A("s_cmp_ge_u32 s%d, 4" % S_WAVE)
    A("s_cbranch_scc1 %s" % L("L_b_one"))
    loads(0, range(12, 16), T2[0]); loads(1, range(12, 16), T2[1])
    accum(0, 4, T2[0], 4); accum(1, 4, T2[1], 0)
    finish(0); finish(1)
    A("s_branch %s" % L("L_b_done"))
    A.label(L("L_b_one"))
    loads(0, range(12, 16), T2[0])
    accum(0, 4, T2[0], 0)
    finish(0)
    A.label(L("L_b_done"))
```

```python
import sys
from g2_common import *
from g2_mlp import mlp_role
try:
    from g2_att import att_role
except ImportError:
    att_role = None

def k1_kernel(with_att=True):
    A = K()
    A("s_cmp_ge_u32 s2, 256")
    A("s_cbranch_scc1 L_k1_end")
    A("s_load_dwordx16 s[4:19], s[0:1], 0")
    A("s_load_dwordx2 s[20:21], s[0:1], 64")
    if opt.stamps or opt.dbgt: A("s_memrealtime s[92:93]")
    A("v_lshrrev_b32 v1, 6, v0")
    A("s_nop 0")
    A("v_readfirstlane_b32 s%d, v1" % S_WAVE)
    A("s_mov_b32 s%d, 0x3f803f80" % S_ONES)
    A("s_mov_b32 s%d, 0x%x" % (S_L2E, LOG2E))
    A("s_mov_b32 s%d, 0x00003f80" % S_SEL0)
    A("s_mov_b32 s%d, 0x3f800000" % S_SEL1)
    A("s_and_b32 s%d, s%d, 3" % (S_R, S_WAVE))
    A("s_lshr_b32 s%d, s%d, 2" % (S_C, S_WAVE))
    A("s_and_b32 s%d, s2, 7" % S_T0)
    A("s_lshr_b32 s%d, s2, 3" % S_T1)
    A("s_lshr_b32 s%d, s%d, 1" % (S_T2, S_T0))
    A("s_and_b32 s%d, s%d, 1" % (S_T0, S_T0))
    A("s_lshl_b32 s%d, s%d, 3" % (S_T0, S_T0))
    A("s_and_b32 s%d, s%d, 7" % (S_TILE, S_T1))
    A("s_add_u32 s%d, s%d, s%d" % (S_TILE, S_TILE, S_T0))
    A("s_lshr_b32 s%d, s%d, 3" % (S_T1, S_T1))
    A("s_mul_i32 s%d, s%d, 3" % (S_T3, S_T2))
    A("s_add_u32 s%d, s%d, s%d" % (S_ROLE, S_T3, S_T1))
    A("s_sub_u32 s%d, s%d, 1" % (S_ROLE, S_ROLE))
    A("s_waitcnt lgkmcnt(0)")
    srd(A, SRD_X, S_X, S_X + 1, S * D * 2)
    publish_tag(A)
    A("s_cmp_lg_u32 s%d, 0" % S_T1)
    A("s_cbranch_scc1 L_mlp")
    A("s_mov_b32 s%d, s%d" % (S_ROLE, S_T2))
    if not with_att: A("s_branch L_k1_end")
    if with_att:
        if opt.exp == "allc0": A("s_branch L_att0_j")
        A("s_cmp_eq_u32 s%d, 0" % S_C)
        A("s_cbranch_scc1 L_att0_j")
        A("s_branch L_att1_j")
    A.label("L_k1_end")
    A("s_endpgm")
    A.label("L_mlp")
    A("s_cmp_eq_u32 s%d, 0" % S_C)
    A("s_cbranch_scc1 L_mlp0")
    A("s_branch L_mlp1_j")
    if with_att:
        A.label("L_att0_j"); A("s_branch L_att0_j2")
        A.label("L_att1_j"); A("s_branch L_att1_j2")
    A.label("L_mlp1_j"); A("s_branch L_mlp1")
    A.label("L_mlp0")
    mlp_role(A, 0)
    A.label("L_mlp1")
    mlp_role(A, 1)
    if with_att:
        A.label("L_att0_j2"); A("s_branch L_att0")
        A.label("L_att1_j2"); A("s_branch L_att1")
        A.label("L_att0")
        att_role(A, 0)
        A.label("L_att1")
        att_role(A, 1)
    return A

def k3_kernel(parts):
    A = K()
    ks = [0]
    def st3():
        if opt.exp == "k3st":
            A("s_memtime s[%d:%d]" % (64 + 2 * ks[0], 65 + 2 * ks[0])); ks[0] += 1
    NO, NP = 18, 4
    O, P, X, ACC, SM, WF = 16, 88, 152, 168, 200, 232
    A("s_cmp_ge_u32 s2, 144")
    A("s_cbranch_scc1 L_k3_end")
    if opt.dbgt: A("s_memrealtime s[40:41]")
    if opt.exp == "k3st": A("s_memrealtime s[84:85]")
    st3()
    A("s_load_dwordx2 s[4:5], s[0:1], 0")
    A("s_load_dwordx2 s[6:7], s[0:1], 48")
    A("s_load_dwordx2 s[8:9], s[0:1], 64")
    A("s_load_dwordx2 s[10:11], s[0:1], 16")
    A("v_and_b32 v1, 63, v0")
    A("v_lshrrev_b32 v2, 6, v0")
    A("s_nop 0")
    A("v_readfirstlane_b32 s30, v2")
    A("s_lshr_b32 s33, s2, 3")
    A("s_cmp_ge_u32 s33, 9")
    A("s_cselect_b32 s31, 1, 0")
    A("s_mul_i32 s32, s31, 9")
    A("s_sub_u32 s32, s33, s32")
    A("s_and_b32 s33, s2, 7"); A("s_lshl_b32 s33, s33, 1"); A("s_add_u32 s31, s31, s33")
    A("s_lshl_b32 s35, s31, 2"); A("s_add_u32 s35, s35, s30")
    A("v_lshrrev_b32 v3, 3, v1")
    A("s_mul_i32 s37, s30, 144")
    A("v_add_u32 v3, s37, v3")
    A("v_mul_u32_u24 v3, 1152, v3")
    A("v_and_b32 v4, 7, v1"); A("v_lshrrev_b32 v5, 2, v1"); A("v_and_b32 v5, 4, v5"); A("v_xor_b32 v4, v4, v5")
    A("v_lshl_add_u32 v3, v4, 4, v3")
    A("s_mul_i32 s38, s30, 18432")
    A("s_lshl_b32 s39, s32, 7")
    A("v_lshlrev_b32 v6, 4, v1")
    A("s_waitcnt lgkmcnt(0)")
    srd(A, 16, 4, 5, S * D * 2)
    srd(A, 20, 6, 7, S * D * 2)
    srd(A, 24, 8, 9, NPART * PART_BYTES)
    srd(A, 44, 10, 11, D * D * 2)
    A("s_mul_i32 s42, s35, %d" % (36 * 1024)); A("s_add_u32 s42, s42, %d" % WS_OF)
    A("s_add_u32 s48, s8, s42"); A("s_addc_u32 s49, s9, 0"); A("s_and_b32 s49, s49, 0xffff"); A("s_mov_b32 s50, %d" % (36 * 1024)); A("s_mov_b32 s51, 0x20000")
    A("s_mul_i32 s42, s35, 18"); A("s_lshl_b32 s43, s32, 1"); A("s_add_u32 s42, s42, s43"); A("s_lshl_b32 s42, s42, 11")
    A("v_add_u32 v7, s42, v6")
    def pload(n):
        A("s_mov_b32 s43, %d" % (parts[n] * PART_BYTES))
        for h in range(4):
            r = P + 16 * (n % NP) + 4 * h
            A("buffer_load_dwordx4 v[%d:%d], v7, s[24:27], s43 offen offset:%d" % (r, r + 3, h * 1024))
            A.vm.issue(("p", n, h))
    def oload(kk):
        r = O + 4 * (kk % NO)
        A("s_mov_b32 s43, %d" % ((kk // 4) * 4096))
        A("buffer_load_dwordx4 v[%d:%d], v6, s[48:51], s43 offen offset:%d" % (r, r + 3, (kk % 4) * 1024))
        A.vm.issue(("o", kk))
    for n in range(NP): pload(n)
    for q in range(18):
        A("s_add_u32 m0, s38, %d" % (q * 1024))
        A("s_add_u32 s43, s39, %d" % (q * 8 * 1152))
        A("buffer_load_dwordx4 v3, s[44:47], s43 offen lds")
        A.vm.issue(("wo", q))
    for kk in range(NO): oload(kk)
    A("v_and_b32 v8, 31, v1")
    A("s_lshl_b32 s42, s35, 5")
    A("v_add_u32 v8, s42, v8")
    A("v_mul_u32_u24 v8, 1152, v8")
    A("v_lshrrev_b32 v9, 5, v1")
    A("v_lshl_add_u32 v8, v9, 4, v8")
    A("v_add_u32 v8, s39, v8")
    A("v_lshrrev_b32 v10, 2, v1"); A("v_and_b32 v10, 3, v10")
    A("v_lshrrev_b32 v11, 4, v1"); A("v_and_b32 v11, 1, v11"); A("v_lshlrev_b32 v11, 1, v11")
    A("v_lshrrev_b32 v12, 1, v1"); A("v_and_b32 v12, 1, v12"); A("v_add_u32 v11, v11, v12")
    A("v_lshrrev_b32 v12, 1, v10"); A("v_lshlrev_b32 v12, 2, v12"); A("v_xor_b32 v11, v11, v12")
    A("v_lshlrev_b32 v11, 4, v11")
    A("v_and_b32 v12, 1, v1"); A("v_lshl_add_u32 v11, v12, 3, v11")
    A("v_lshl_add_u32 v12, v9, 3, v10"); A("v_lshl_add_u32 v11, v12, 7, v11")
    A("v_xor_b32 v12, 64, v11")
    A("v_add_u32 v13, 36864, v11"); A("v_add_u32 v14, 36864, v12")
    A("s_mov_b32 s28, 0x00003f80"); A("s_mov_b32 s29, 0x3f800000")
    for q in range(32): A("v_mov_b32 v%d, 0" % (SM + q))
    def psum(n):
        A.wait(vm=[("p", n, 3)])
        for w_ in range(16):
            A("v_dot2_f32_bf16 v%d, v%d, s28, v%d" % (SM + 2*w_, P + 16*(n % NP) + w_, SM + 2*w_))
            A("v_dot2_f32_bf16 v%d, v%d, s29, v%d" % (SM + 2*w_ + 1, P + 16*(n % NP) + w_, SM + 2*w_ + 1))
        if n + NP < len(parts): pload(n + NP)
    st3()
    for n in range(NP): psum(n)
    st3()
    def wread(kk):
        for cb in range(2):
            f = WF + 8 * (kk % 2) + 4 * cb
            base, off = (11 + cb, kk * 2048) if kk < 18 else (13 + cb, (kk - 18) * 2048)
            A("ds_read_b64_tr_b16 v[%d:%d], v%d offset:%d" % (f, f + 1, base, off))
            A("ds_read_b64_tr_b16 v[%d:%d], v%d offset:%d" % (f + 2, f + 3, base, off + 512))
            A.lg.issue(("w", kk, cb, 0)); A.lg.issue(("w", kk, cb, 1))
    A.wait(vm=[("wo", 17)])
    A("s_barrier")
    st3()
    wread(0)
    for kk in range(36):
        A.wait(vm=[("o", kk)], lg=[("w", kk, 1, 1)])
        r = O + 4 * (kk % NO)
        for cb in range(2):
            f = WF + 8 * (kk % 2) + 4 * cb; ac = ACC + 16 * cb
            cs = "0" if kk == 0 else "v[%d:%d]" % (ac, ac + 15)
            A("v_mfma_f32_32x32x16_bf16 v[%d:%d], v[%d:%d], v[%d:%d], %s" % (ac, ac + 15, f, f + 3, r, r + 3, cs))
            if cb == 0 and kk + 1 < 36: wread(kk + 1)
        if kk + NO < 36: oload(kk + NO)
        if kk == 8:
            st3()
            for n in range(NP, 2 * NP): psum(n)
            st3()
        if kk == 26:
            for n in range(2 * NP, len(parts)): psum(n)
    st3()
    for h in range(4):
        A("buffer_load_dwordx4 v[%d:%d], v8, s[16:19], 0 offen offset:%d" % (X + 4*h, X + 4*h + 3, (h >> 1) * 64 + (h & 1) * 32))
    A("s_nop 7"); A("s_nop 7")
    for q in range(32): A("v_add_f32 v%d, v%d, v%d" % (SM + q, SM + q, ACC + q))
    A("s_nop 1")
    for h in range(4):
        for q in range(4): A("v_permlane32_swap_b32 v%d, v%d" % (SM + 8*h + q, SM + 8*h + 4 + q))
    A("s_waitcnt vmcnt(0)")
    for h in range(4):
        for q in range(4):
            A("v_lshlrev_b32 v2, 16, v%d" % (X + 4*h + q))
            A("v_and_b32 v3, 0xffff0000, v%d" % (X + 4*h + q))
            A("v_add_f32 v%d, v%d, v2" % (SM + 8*h + 2*q, SM + 8*h + 2*q))
            A("v_add_f32 v%d, v%d, v3" % (SM + 8*h + 2*q + 1, SM + 8*h + 2*q + 1))
        for q in range(4):
            A("v_cvt_pk_bf16_f32 v%d, v%d, v%d" % (X + 4*h + q, SM + 8*h + 2*q, SM + 8*h + 2*q + 1))
        A("buffer_store_dwordx4 v[%d:%d], v8, s[20:23], 0 offen offset:%d" % (X + 4*h, X + 4*h + 3, (h >> 1) * 64 + (h & 1) * 32))
    if opt.exp == "k3st":
        st3()
        A("s_memrealtime s[86:87]")
        A("s_waitcnt lgkmcnt(0)")
        A("s_cmp_lg_u32 s30, 0"); A("s_cbranch_scc1 L_k3_end")
        A("s_lshl_b32 s42, s2, 6"); A("s_add_u32 s42, s42, %d" % (WS_STAMP + 65536))
        A("s_add_u32 s56, s8, s42"); A("s_addc_u32 s57, s9, 0"); A("s_and_b32 s57, s57, 0xffff"); A("s_mov_b32 s58, 64"); A("s_mov_b32 s59, 0x20000")
        A("v_mov_b32 v2, 0")
        for j in range(ks[0]):
            A("v_mov_b32 v3, s%d" % (64 + 2 * j)); A("buffer_store_dword v3, v2, s[56:59], 0 offen offset:%d" % (4 * j))
        A("v_mov_b32 v3, s84"); A("buffer_store_dword v3, v2, s[56:59], 0 offen offset:56")
        A("v_mov_b32 v3, s86"); A("buffer_store_dword v3, v2, s[56:59], 0 offen offset:60")
    if opt.dbgt:
        A("s_memrealtime s[52:53]")
        A("s_load_dwordx2 s[54:55], s[0:1], 56")
        A("s_waitcnt lgkmcnt(0)")
        A("s_mov_b32 s56, s54"); A("s_and_b32 s57, s55, 0xffff"); A("s_mov_b32 s58, 256"); A("s_mov_b32 s59, 0x20000")
        A("s_cmp_lg_u32 s2, 0")
        A("s_cbranch_scc1 L_k3_end")
        A("s_add_u32 s60, s8, %d" % WS_STAMP); A("s_addc_u32 s61, s9, 0"); A("s_and_b32 s61, s61, 0xffff"); A("s_mov_b32 s62, 4096"); A("s_mov_b32 s63, 0x20000")
        A("v_lshlrev_b32 v2, 5, v1")
        A("buffer_load_dwordx4 v[16:19], v2, s[60:63], 0 offen")
        A("buffer_load_dwordx4 v[20:23], v2, s[60:63], 0 offen offset:16")
        A("s_waitcnt vmcnt(0)")
        A("v_min_u32 v16, v16, v18"); A("v_min_u32 v20, v20, v22"); A("v_min_u32 v16, v16, v20")
        A("v_max_u32 v17, v17, v19"); A("v_max_u32 v21, v21, v23"); A("v_max_u32 v17, v17, v21")
        A("v_not_b32 v16, v16")
        A("v_mov_b32 v24, 0"); A("v_mov_b32 v25, 4")
        A("buffer_atomic_umax v16, v24, s[56:59], 0 offen")
        A("buffer_atomic_umax v17, v25, s[56:59], 0 offen")
        A("v_mov_b32 v26, s40"); A("v_mov_b32 v27, 8")
        A("buffer_store_dword v26, v27, s[56:59], 0 offen")
        A("v_mov_b32 v26, s52"); A("v_mov_b32 v27, 12")
        A("buffer_store_dword v26, v27, s[56:59], 0 offen")
    A.label("L_k3_end")
    A("s_endpgm")
    return A

HDR = """; Kernarg layout for this problem (72 bytes, ptrs only, base s[0:1]):
"""

MAIN = "parallel_sum__linear_attn_block__dense_activation_silu__prompt_kernel"
def build_all(path, with_att=True):
    k1 = k1_kernel(with_att)
    t1, r1 = kernel_wrap(MAIN, k1.text(), 256, 96)
    hdr = HDR + "; @launch grid=(256,1,1) block=(512,1,1) lds=163840\n"
    open(path, "w").write(hdr + '.amdgcn_target "amdgcn-amd-amdhsa--gfx950"\n' + t1 + r1)

if __name__ == "__main__":
    out = sys.argv[1]
    for a in sys.argv[2:]:
        if a == "stamps": opt.stamps = True
        elif a == "dbgt": opt.dbgt = True
        elif a == "notouch": opt.touch = False
        elif a.startswith("steps="): opt.stamp_steps = tuple(int(x) for x in a[6:].split(","))
        elif a.startswith("stf="): opt.stf = " " + a[4:].replace("+", " ") if a[4:] else ""
        elif a.startswith("exp="): opt.exp = a[4:]
        elif a.startswith("lvl="): opt.lvl = int(a[4:])
        elif a.startswith("swave="): opt.swave = int(a[6:])
    build_all(out, with_att=("noatt" not in sys.argv and att_role is not None))
    build(out)
    print("built", out)
```

```python
from g2_common import *

KV_GROUP_BYTES = 36 * 1024

def att_role(A, c):
    A.reset()
    L = lambda s: "%s_c%d" % (s, c)
    def xf(u, kk): return 4 * (18 * u + kk)
    ACC = 144
    WR = 216; NF = 5
    vTR = 236
    vDM = 244
    vL, vT0, vT1, vT2, vT3 = 247, 248, 249, 250, 251
    vRSl = 252
    vDX = 252
    vPZ, vPA = 254, 255
    XS = 65536
    USZ = 24576; PSZ = 12288
    EX = 73728
    PQ = 98304
    KVF = PQ + 36864
    ZF = KVF + 13824
    STB = ZF + 13824
    assert STB + 1024 == 163840
    CH = 55296
    S_MB = S_E0
    A.comment("---- ATT role, wave group %d ----" % c)
    stamp(A, 9)
    code_prefetch(A, 200, 202, 1)
    A("v_and_b32 v%d, 63, v0" % vL)
    A("v_mov_b32 v%d, v0" % ACC)
    x_unit_setup(A, vL, vDX, vT0, vT1, vT2, vT3, XS)
    for kb in range(6): x_unit_dma(A, kb, vDX, 6)
    srd(A, SRD_A, S_WQKV, S_WQKV + 1, D * 3 * D * 2)
    A("s_mul_i32 s%d, s%d, %d" % (S_T0, S_ROLE, 144 * 1152))
    srd_off(A, SRD_B, S_WO, S_WO + 1, S_T0, D * D * 2)
    if opt.touch:
        A("s_and_b32 s%d, s%d, 7" % (S_T0, S_TILE)); A("s_lshl_b32 s%d, s%d, 3" % (S_T0, S_T0)); A("s_add_u32 s%d, s%d, s%d" % (S_T0, S_T0, S_WAVE))
        A("s_mul_i32 s%d, s%d, 9" % (S_T1, S_T0))
        A("v_mul_u32_u24 v%d, 2428, v%d" % (vT3, vL)); A("v_lshrrev_b32 v%d, 16, v%d" % (vT3, vT3))
        A("v_mul_u32_u24 v%d, 27, v%d" % (vT0, vT3)); A("v_sub_u32 v%d, v%d, v%d" % (vT2, vL, vT0))
        A("v_mul_u32_u24 v%d, 21846, v%d" % (vT0, vT2)); A("v_lshrrev_b32 v%d, 16, v%d" % (vT0, vT0))
        A("v_mul_u32_u24 v%d, 3, v%d" % (vT1, vT0)); A("v_sub_u32 v%d, v%d, v%d" % (vT1, vT2, vT1))
        A("v_add_u32 v%d, s%d, v%d" % (vT0, S_T1, vT0))
        A("v_mul_u32_u24 v%d, 3456, v%d" % (vT0, vT0))
        A("v_lshl_add_u32 v%d, v%d, 7, v%d" % (vT0, vT1, vT0))
        A("v_mul_u32_u24 v%d, 1152, v%d" % (vT3, vT3)); A("v_add_u32 v%d, v%d, v%d" % (vT0, vT0, vT3))
        A("s_lshl_b32 s%d, s%d, 8" % (S_T1, S_ROLE)); A("s_add_u32 s%d, s%d, 1152" % (S_T1, S_T1))
        A("v_add_u32 v%d, s%d, v%d" % (vT0, S_T1, vT0))
        A("v_mov_b32 v%d, 0x7fffff00" % vT2)
        A("v_cmp_gt_u32 vcc, 54, v%d" % vL)
        A("s_nop 1")
        A("v_cndmask_b32 v%d, v%d, v%d, vcc" % (vT0, vT2, vT0))
        A("buffer_load_dword v%d, v%d, s[%d:%d], 0 offen" % (vPZ, vT0, SRD_A, SRD_A + 3))
        A.vm.issue(("touch", 2))
    def piece_pattern(q, emit_row):
        A("v_add_u32 v%d, %d, v%d" % (vT0, 64 * q, vL))
        A("v_mul_u32_u24 v%d, 2731, v%d" % (vT1, vT0))
        A("v_lshrrev_b32 v%d, 16, v%d" % (vT1, vT1))
        A("v_mul_u32_u24 v%d, 24, v%d" % (vT2, vT1))
        A("v_sub_u32 v%d, v%d, v%d" % (vT2, vT0, vT2))
        emit_row()
    A("s_lshr_b32 s%d, s%d, 1" % (S_T0, S_R)); A("s_lshl_b32 s%d, s%d, 4" % (S_T0, S_T0))
    A("s_and_b32 s%d, s%d, 1" % (S_T1, S_R)); A("s_lshl_b32 s%d, s%d, 2" % (S_T1, S_T1))
    A("s_add_u32 s%d, s%d, s%d" % (S_T0, S_T0, S_T1))
    A("s_lshl_b32 s%d, s%d, 8" % (S_T1, S_ROLE))
    for q in range(3):
        def row(q=q):
            A("v_and_b32 v%d, 6, v%d" % (vT3, vT1))
            A("v_xor_b32 v%d, v%d, v%d" % (vT2, vT2, vT3))
            A("v_lshrrev_b32 v%d, 2, v%d" % (vT3, vT1))
            A("v_lshlrev_b32 v%d, 3, v%d" % (vT3, vT3))
            A("v_and_b32 v%d, 3, v%d" % (vT1, vT1))
            A("v_add_u32 v%d, v%d, v%d" % (vT1, vT1, vT3))
            A("v_add_u32 v%d, s%d, v%d" % (vT1, S_T0, vT1))
            A("v_mul_u32_u24 v%d, 3456, v%d" % (vT1, vT1))
            A("v_lshl_add_u32 v%d, v%d, 4, v%d" % (vT1, vT2, vT1))
            A("v_add_u32 v%d, s%d, v%d" % (vDM + q, S_T1, vT1))
        piece_pattern(q, row)
    A("s_mul_i32 s%d, s%d, 3072" % (S_MB, S_R))
    if c: A("s_add_u32 s%d, s%d, %d" % (S_MB, S_MB, PSZ))
    NUA = 27
    XTRA_AT = [False]
    DPOS = [(0, 2, 4), (1, 3, 5)]
    def wdma1(un, q):
        if un >= NUA: return
        slot = un % 4
        if un < 18: so = un * 32 * 3456 + (1 + c) * 1152
        else: so = (un - 18) * 64 * 3456 + c * 32 * 3456
        A("s_add_u32 m0, s%d, %d" % (S_MB, slot * USZ + q * 1024))
        A("s_mov_b32 s%d, %d" % (S_T3, so))
        A("buffer_load_dwordx4 v%d, s[%d:%d], s%d offen lds" % (vDM + q, SRD_A, SRD_A + 3, S_T3))
        A.vm.issue(("wa", un, q))
    def wdma(un):
        for q in range(3): wdma1(un, q)
    A("s_add_u32 s%d, s%d, 12" % (S_T0, S_ROLE))
    A("s_mul_i32 s%d, s%d, %d" % (S_T0, S_T0, PART_BYTES))
    A("s_mul_i32 s%d, s%d, %d" % (S_T1, S_TILE, 4 * 18 * 2048))
    A("s_add_u32 s%d, s%d, s%d" % (S_T0, S_T0, S_T1))
    srd_off(A, SRD_P, S_WS, S_WS + 1, S_T0, NPART * PART_BYTES)
    A("s_mul_i32 s%d, s%d, %d" % (S_T0, S_ROLE, KV_GROUP_BYTES))
    A("s_add_u32 s%d, s%d, %d" % (S_T0, S_T0, WS_KV))
    A("s_add_u32 s%d, s%d, s%d" % (SRD_KV, S_WS, S_T0)); A("s_addc_u32 s%d, s%d, 0" % (SRD_KV + 1, S_WS + 1))
    A("s_and_b32 s%d, s%d, 0xffff" % (SRD_KV + 1, SRD_KV + 1)); A("s_mov_b32 s%d, %d" % (SRD_KV + 2, KV_GROUP_BYTES)); A("s_mov_b32 s%d, 0x20000" % (SRD_KV + 3))
    srd(A, SRD_D, S_DBG, S_DBG + 1, 256)
    A("s_cmp_lg_u32 s%d, 0" % S_TILE)
    A("s_cbranch_scc1 %s" % L("L_att_nozero"))
    for q in range(4): A("v_mov_b32 v%d, 0" % (ACC + 4 + q))
    A("v_lshlrev_b32 v%d, 4, v%d" % (ACC + 1, ACC))
    for q in range(5):
        A("s_mov_b32 s%d, %d" % (S_T3, q * 8192))
        A("buffer_store_dwordx4 v[%d:%d], v%d, s[%d:%d], s%d offen sc0 sc1" % (ACC + 4, ACC + 7, ACC + 1, SRD_KV, SRD_KV + 3, S_T3))
    A("s_waitcnt vmcnt(0)")
    A("s_barrier")
    A("v_mov_b32 v%d, 1" % (ACC + 2))
    A("s_lshl_b32 s%d, s%d, 2" % (S_T0, S_ROLE)); A("s_add_u32 s%d, s%d, 64" % (S_T0, S_T0))
    A("v_mov_b32 v%d, 0x7fffff00" % (ACC + 3)); A("v_mov_b32 v%d, s%d" % (ACC + 4, S_T0))
    A("v_cmp_eq_u32 vcc, 0, v%d" % ACC)
    A("s_nop 1")
    A("v_cndmask_b32 v%d, v%d, v%d, vcc" % (ACC + 3, ACC + 3, ACC + 4))
    A("buffer_atomic_add v%d, v%d, s[%d:%d], 0 offen sc1" % (ACC + 2, ACC + 3, SRD_D, SRD_D + 3))
    A("s_waitcnt vmcnt(0)")
    A.label(L("L_att_nozero"))
    A("v_lshrrev_b32 v%d, 4, v%d" % (vT0, vL))
    A("v_lshrrev_b32 v%d, 1, v%d" % (vT1, vT0)); A("v_lshlrev_b32 v%d, 4, v%d" % (vT1, vT1))
    A("v_and_b32 v%d, 1, v%d" % (vT2, vT0)); A("v_lshlrev_b32 v%d, 2, v%d" % (vT2, vT2))
    A("v_add_u32 v%d, v%d, v%d" % (vT1, vT1, vT2))
    A("v_lshrrev_b32 v%d, 2, v%d" % (vT2, vL)); A("v_and_b32 v%d, 3, v%d" % (vT2, vT2))
    A("v_add_u32 v%d, v%d, v%d" % (vT1, vT1, vT2))
    A("v_and_b32 v%d, 6, v%d" % (vT3, vT1))
    A("v_mul_u32_u24 v%d, 384, v%d" % (vT1, vT1))
    A("v_and_b32 v%d, 3, v%d" % (vT2, vL))
    A("v_lshl_add_u32 v%d, v%d, 3, v%d" % (vT1, vT2, vT1))
    for j in range(4):
        A("s_lshl_b32 s%d, s%d, 1" % (S_T0, S_ROLE)); A("s_add_u32 s%d, s%d, %d" % (S_T0, S_T0, 2 * j))
        A("s_and_b32 s%d, s%d, 7" % (S_T1, S_T0)); A("s_lshr_b32 s%d, s%d, 3" % (S_T0, S_T0)); A("s_lshl_b32 s%d, s%d, 7" % (S_T0, S_T0))
        A("v_xor_b32 v%d, s%d, v%d" % (vT2, S_T1, vT3))
        A("v_lshl_add_u32 v%d, v%d, 4, v%d" % (vT2, vT2, vT1))
        A("v_add_u32 v%d, s%d, v%d" % (vTR + j, S_T0, vT2))
        A("v_add_u32 v%d, %d, v%d" % (vTR + 4 + j, 2 * USZ, vTR + j))
    vXR = ACC + 8
    A("v_and_b32 v%d, 15, v%d" % (vT1, vL))
    A("v_lshrrev_b32 v%d, 1, v%d" % (vT2, vT1))
    A("v_xor_b32 v%d, v%d, v%d" % (vT2, vT2, vT0))
    A("v_lshlrev_b32 v%d, 4, v%d" % (vT2, vT2))
    A("s_lshl_b32 s%d, s%d, 5" % (S_T0, S_R))
    A("v_add_u32 v%d, s%d, v%d" % (vT3, S_T0, vT1))
    A("v_lshl_add_u32 v%d, v%d, 7, v%d" % (vT2, vT3, vT2))
    A("v_add_u32 v%d, %d, v%d" % (vXR, XS, vT2))
    A("v_xor_b32 v%d, 64, v%d" % (vXR + 1, vXR))
    A("v_add_u32 v%d, 0x10000, v%d" % (vXR + 2, vXR)); A("v_add_u32 v%d, 0x10000, v%d" % (vXR + 3, vXR + 1))
    vSL = ACC + 12
    A("v_lshlrev_b32 v%d, 2, v%d" % (vSL, vT3)); A("v_add_u32 v%d, %d, v%d" % (vSL, STB, vSL))
    vS = ACC + 16
    for q in range(4): A("v_mov_b32 v%d, 0" % (vS + q))
    def xread(kb, e, u):
        slot = kb % 6; kk = 2 * kb + e
        if slot < 4: A("ds_read_b128 v[%d:%d], v%d offset:%d" % (xf(u, kk), xf(u, kk) + 3, vXR + e, slot * 16384 + u * 2048))
        else: A("ds_read_b128 v[%d:%d], v%d offset:%d" % (xf(u, kk), xf(u, kk) + 3, vXR + 2 + e, (slot - 4) * 16384 + u * 2048))
        A.lg.issue(("xf", u, kk))
    def stats(u, kk):
        for e in range(4):
            rg = xf(u, kk) + e
            A("v_dot2_f32_bf16 v%d, v%d, s%d, v%d" % (vS + (e & 1), rg, S_ONES, vS + (e & 1)))
            A("v_dot2_f32_bf16 v%d, v%d, v%d, v%d" % (vS + 2 + (e & 1), rg, rg, vS + 2 + (e & 1)))
    stamp(A)
    for g in range(3):
        A.wait(vm=[("x", 3 * g + 2, 1)])
        A("s_barrier")
        if g == 1:
            for kb in range(6, 9): x_unit_dma(A, kb, vDX, 6)
            wdma(0)
        own = [(kb, e) for kb in range(3 * g, 3 * g + 3) for e in range(2)]
        for kb, e in own: xread(kb, e, c)
        for kb, e in own: xread(kb, e, 1 - c)
        for kb, e in own:
            A.wait(lg=[("xf", c, 2 * kb + e)])
            stats(c, 2 * kb + e)
        A.wait(lg=[("xf", 1 - c, 2 * own[-1][0] + 1)])
        if g == 2:
            wdma(1)
            if opt.touch:
                A("s_and_b32 s%d, s%d, 7" % (S_T0, S_TILE)); A("s_lshl_b32 s%d, s%d, 3" % (S_T0, S_T0)); A("s_add_u32 s%d, s%d, s%d" % (S_T0, S_T0, S_WAVE))
                A("s_mul_i32 s%d, s%d, 9" % (S_T1, S_T0))
                A("v_mul_u32_u24 v%d, 21846, v%d" % (vT0, vL)); A("v_lshrrev_b32 v%d, 16, v%d" % (vT0, vT0))
                A("v_mul_u32_u24 v%d, 3, v%d" % (vT1, vT0)); A("v_sub_u32 v%d, v%d, v%d" % (vT1, vL, vT1))
                A("v_add_u32 v%d, s%d, v%d" % (vT0, S_T1, vT0))
                A("v_mul_u32_u24 v%d, 3456, v%d" % (vT0, vT0))
                A("v_lshl_add_u32 v%d, v%d, 7, v%d" % (vT0, vT1, vT0))
                A("s_lshl_b32 s%d, s%d, 8" % (S_T1, S_ROLE))
                A("v_add_u32 v%d, s%d, v%d" % (vT0, S_T1, vT0))
                A("v_mov_b32 v%d, 0x7fffff00" % vT2)
                A("v_cmp_gt_u32 vcc, 27, v%d" % vL)
                A("s_nop 1")
                A("v_cndmask_b32 v%d, v%d, v%d, vcc" % (vT0, vT2, vT0))
                A("buffer_load_dword v%d, v%d, s[%d:%d], 0 offen" % (vPZ, vT0, SRD_A, SRD_A + 3))
                A.vm.issue(("touch", 0))
                A("s_mul_i32 s%d, s%d, %d" % (S_T0, S_T0, 21 * 128))
                A("v_lshl_add_u32 v%d, v%d, 7, s%d" % (vT0, vL, S_T0))
                A("v_cmp_gt_u32 vcc, 21, v%d" % vL)
                A("s_nop 1")
                A("v_cndmask_b32 v%d, v%d, v%d, vcc" % (vT0, vT2, vT0))
                A("buffer_load_dword v%d, v%d, s[%d:%d], 0 offen" % (vPZ, vT0, SRD_B, SRD_B + 3))
                A.vm.issue(("touch", 1))
    A("s_nop 1")
    A("v_add_f32 v%d, v%d, v%d" % (vS, vS, vS + 1)); A("v_add_f32 v%d, v%d, v%d" % (vS + 2, vS + 2, vS + 3))
    xsum16(A, vS, vS + 1); xsum32(A, vS, vS + 1)
    xsum16(A, vS + 2, vS + 3); xsum32(A, vS + 2, vS + 3)
    A("v_mul_f32 v%d, 0x%x, v%d" % (vS, INV576, vS))
    A("v_mul_f32 v%d, 0x%x, v%d" % (vS + 2, INV576, vS + 2))
    A("v_fma_f32 v%d, -v%d, v%d, v%d" % (vS + 2, vS, vS, vS + 2))
    A("v_max_f32 v%d, 0, v%d" % (vS + 2, vS + 2))
    A("v_add_f32 v%d, 0x%x, v%d" % (vS + 2, EPS_LN, vS + 2))
    A("v_sub_f32 v%d, 0, v%d" % (vS, vS))
    A("v_rsq_f32 v%d, v%d" % (vRSl + c, vS + 2))
    A("s_nop 0")
    A("ds_write_b32 v%d, v%d offset:%d" % (vSL, vS, 64 * c))
    A("ds_write_b32 v%d, v%d offset:%d" % (vSL, vRSl + c, 512 + 64 * c))
    A("s_waitcnt lgkmcnt(0)"); A.lg.all()
    A("s_barrier")
    wdma(2)
    A("ds_read_b32 v%d, v%d offset:%d" % (vS + 1, vSL, 64 * (1 - c)))
    A("ds_read_b32 v%d, v%d offset:%d" % (vRSl + 1 - c, vSL, 512 + 64 * (1 - c)))
    stamp(A)
    TC = ACC + 24
    def center(u, nm):
        for n in range(xf(u, 0), xf(u, 0) + 72, 4):
            for e in range(4):
                A("v_dot2_f32_bf16 v%d, v%d, s%d, v%d" % (TC + 2*e, n + e, S_SEL0, nm))
                A("v_dot2_f32_bf16 v%d, v%d, s%d, v%d" % (TC + 2*e + 1, n + e, S_SEL1, nm))
            A("s_nop 0")
            for e in range(4):
                A("v_cvt_pk_bf16_f32 v%d, v%d, v%d" % (n + e, TC + 2*e, TC + 2*e + 1))
    center(c, vS)
    A("s_waitcnt lgkmcnt(0)")
    center(1 - c, vS + 1)
    stamp(A)

    if c == 0: kvt = [(0, t) for t in range(5)] + [(1, t) for t in range(4)]
    else: kvt = [(0, t) for t in range(5, 9)] + [(1, t) for t in range(4, 9)]
    qt = list(range(5)) if c == 0 else list(range(5, 9))
    def addr(un, part, t):
        slot = un % 4
        base = vTR + (t & 3) + (4 if slot >= 2 else 0)
        return base, (slot & 1) * USZ + part * PSZ + 128 * (t >> 2)
    seq = []
    for n in range(18):
        for i, (part, t) in enumerate(kvt): seq.append((n,) + addr(n, part, t) + (1, i, n))
    for n in range(18, 27):
        for ks in range(2):
            for i, t in enumerate(qt): seq.append((n,) + addr(n, ks, t) + (3, i, 2 * (n - 18) + ks))
    def fread(phi):
        if phi >= len(seq): return
        un, base, off = seq[phi][:3]
        f = WR + 4 * (phi % NF)
        for h in range(2):
            A("ds_read_b64_tr_b16 v[%d:%d], v%d offset:%d" % (f + 2*h, f + 2*h + 1, base, off + 3072 * h))
            A.lg.issue(("f", phi, h))
    A.wait(vm=[("wa", 0, 2)])
    A("s_barrier")
    for phi in range(NF): fread(phi)
    def group(phi):
        def fn():
            un, base, off, kind, i, kk = seq[phi]
            f = WR + 4 * (phi % NF)
            if not (opt.exp == "nord" and kind == 1): A.wait(lg=[("f", phi, 1)])
            for u in range(2):
                acc = ACC + 8 * i + 4 * u
                cs = "0" if kk == 0 else "v[%d:%d]" % (acc, acc + 3)
                if kind == 1:
                    A("v_mfma_f32_16x16x32_bf16 v[%d:%d], v[%d:%d], v[%d:%d], %s" % (acc, acc + 3, xf(u, kk), xf(u, kk) + 3, f, f + 3, cs))
                else:
                    A("v_mfma_f32_16x16x32_bf16 v[%d:%d], v[%d:%d], v[%d:%d], %s" % (acc, acc + 3, f, f + 3, xf(u, kk), xf(u, kk) + 3, cs))
            if phi + NF < len(seq) and seq[phi + NF][3] == kind:
                if opt.exp == "nord" and kind == 1:
                    A.lg.issue(("f", phi + NF, 0)); A.lg.issue(("f", phi + NF, 1))
                else: fread(phi + NF)
        return fn
    def run_steps(n_lo, n_hi, xvm={}, xblk={}, skip=(), skipdma=(), strict=()):
        for n in range(n_lo, n_hi):
            A.comment("att step %d" % n)
            nx = n + 1
            need = ([("wa", nx, 2)] if (nx < NUA and nx not in skip) else []) + xvm.get(n, [])
            phis = [p for p in range(len(seq)) if seq[p][0] == n]
            A.wait(vm=need or None)
            if not (opt.exp == "nobar" and n < 18): A("s_barrier")
            pos = {DPOS[c][q]: q for q in range(3)}
            for idx, p in enumerate(phis):
                group(p)()
                if idx in pos and (n + 3) not in skip and (n + 3) not in skipdma:
                    if opt.exp == "nodma" and n < 15: A.vm.issue(("wa", n + 3, pos[idx]))
                    else: wdma1(n + 3, pos[idx])
                if idx == 6:
                    for fn in xblk.get(n, []): fn()
    def zpoll_issue():
        A("s_lshl_b32 s%d, s%d, 2" % (S_T0, S_ROLE)); A("s_add_u32 s%d, s%d, 64" % (S_T0, S_T0))
        A("v_mov_b32 v%d, s%d" % (vPA, S_T0))
        A("buffer_load_dword v%d, v%d, s[%d:%d], 0 offen sc1" % (vPZ, vPA, SRD_D, SRD_D + 3))
        A.vm.issue(("zp",))
    def poll_finish(tag, target):
        lab = A.newlabel("L_poll"); ok = A.newlabel("L_pollok")
        A.wait(vm=[tag])
        A("s_mov_b32 s%d, 0" % S_T1)
        A.label(lab)
        A("v_readfirstlane_b32 s%d, v%d" % (S_T0, vPZ))
        A("s_add_u32 s%d, s%d, 1" % (S_T1, S_T1))
        A("s_nop 2")
        A("s_cmp_ge_u32 s%d, %d" % (S_T0, target))
        A("s_cbranch_scc1 %s" % ok)
        A("s_cmp_ge_u32 s%d, 50000" % S_T1)
        A("s_cbranch_scc1 %s" % ok)
        A("s_sleep 2")
        A("buffer_load_dword v%d, v%d, s[%d:%d], 0 offen sc1" % (vPZ, vPA, SRD_D, SRD_D + 3))
        A("s_waitcnt vmcnt(0)")
        A("s_branch %s" % lab)
        A.label(ok)
    if opt.exp == "rep1":
        A("s_mov_b32 s59, 0")
        A.label(L("L_rep1"))
        A.nstamp -= 1; stamp(A)
    run_steps(0, 18, xblk={14: [zpoll_issue]}, skip=(19,))
    if opt.exp == "rep1":
        A("s_add_u32 s59, s59, 1"); A("s_cmp_lt_u32 s59, 2"); A("s_cbranch_scc1 %s" % L("L_rep1"))
    stamp(A)
    stamp(A, 1)
    def phi_vals(regs, temps, rc=None):
        nt = len(temps)
        for i0 in range(0, len(regs), nt):
            grp = list(zip(regs[i0:i0 + nt], temps, rc[i0:i0 + nt]))
            for r_, t_, (sl, s1) in grp: A("v_mul_f32 v%d, v%d, v%d" % (t_, r_, sl))
            for r_, t_, _ in grp: A("v_min_f32 v%d, 0, v%d" % (t_, t_))
            for r_, t_, _ in grp: A("v_exp_f32 v%d, v%d" % (t_, t_))
            for r_, t_, _ in grp: A("v_max_f32 v%d, 0, v%d" % (r_, r_))
            for r_, t_, _ in grp: A("v_add_f32 v%d, 0x%x, v%d" % (t_, C1E6, t_))
            for r_, t_, (sl, s1) in grp: A("v_fma_f32 v%d, v%d, v%d, v%d" % (r_, r_, s1, t_))
    RC = WR; RL = WR + 8
    TP = [WR + 16 + i for i in range(4)] + [vT1, vT2, vT3, vPA]
    A("v_lshrrev_b32 v%d, 4, v%d" % (vT0, vL)); A("v_lshlrev_b32 v%d, 4, v%d" % (vT0, vT0))
    A("s_lshl_b32 s%d, s%d, 7" % (S_T0, S_R)); A("s_add_u32 s%d, s%d, %d" % (S_T0, S_T0, STB + 512))
    A("v_add_u32 v%d, s%d, v%d" % (vT0, S_T0, vT0))
    A("ds_read_b128 v[%d:%d], v%d" % (RC, RC + 3, vT0))
    A("ds_read_b128 v[%d:%d], v%d offset:64" % (RC + 4, RC + 7, vT0))
    poll_finish(("zp",), 1)
    A("s_waitcnt lgkmcnt(0)"); A.lg.all()
    stamp(A, 1)
    for q in range(8): A("v_mul_f32 v%d, s%d, v%d" % (RL + q, S_L2E, RC + q))
    nk = 5 if c == 0 else 4
    phi_vals(list(range(ACC, ACC + 8 * nk)), TP, [(RL + (i % 8), RC + (i % 8)) for i in range(8 * nk)])
    for i in range(8 * nk, 72): A("v_mul_f32 v%d, v%d, v%d" % (ACC + i, ACC + i, RC + (i % 8)))
    stamp(A, 1)
    vEW = vT0
    A("s_mul_i32 s%d, s%d, 18432" % (S_T0, S_R)); A("s_add_u32 s%d, s%d, %d" % (S_T0, S_T0, EX))
    A("v_lshl_add_u32 v%d, v%d, 4, s%d" % (vEW, vL, S_T0))
    for i, (part, t) in enumerate(kvt):
        b = ACC + 8 * i
        A("v_cvt_pk_bf16_f32 v%d, v%d, v%d" % (b, b, b + 1)); A("v_cvt_pk_bf16_f32 v%d, v%d, v%d" % (b + 1, b + 2, b + 3))
        A("v_cvt_pk_bf16_f32 v%d, v%d, v%d" % (b + 2, b + 4, b + 5)); A("v_cvt_pk_bf16_f32 v%d, v%d, v%d" % (b + 3, b + 6, b + 7))
        A("ds_write_b128 v%d, v[%d:%d] offset:%d" % (vEW, b, b + 3, (part * 9 + t) * 1024))
    A("s_waitcnt lgkmcnt(0)"); A.lg.all()
    stamp(A, 1)
    A("s_barrier")
    stamp(A); stamp(A, 1)
    FA, FB = ACC, ACC + 16
    HD, HE, ONESF = WR, WR + 4, WR + 8
    KS = [WR + 12, WR + 16, ACC + 64, ACC + 68]
    vER, vAT, vG4, vE16 = vT0, vT1, vT2, vT3
    A("v_lshlrev_b32 v%d, 4, v%d" % (vER, vL)); A("v_add_u32 v%d, %d, v%d" % (vER, EX, vER))
    A("v_lshlrev_b32 v%d, 2, v%d" % (vAT, vL))
    A("v_lshrrev_b32 v%d, 4, v%d" % (vG4, vL)); A("v_lshlrev_b32 v%d, 2, v%d" % (vG4, vG4))
    A("v_and_b32 v%d, 15, v%d" % (vE16, vL))
    for q in range(4): A("v_mov_b32 v%d, s%d" % (ONESF + q, S_ONES))
    vAD = vPZ
    def head_rows():
        A("s_lshl_b32 s%d, s%d, 4" % (S_T0, S_A))
        for rr in range(4):
            A("v_add_u32 v%d, s%d, v%d" % (HD + rr, S_T0, vG4))
            if rr: A("v_add_u32 v%d, %d, v%d" % (HD + rr, rr, HD + rr))
            A("v_mul_u32_u24 v%d, 3641, v%d" % (HD + rr, HD + rr))
            A("v_lshrrev_b32 v%d, 16, v%d" % (HD + rr, HD + rr))
    def read_a():
        A("s_lshl_b32 s%d, s%d, 10" % (S_T0, S_A))
        A("v_add_u32 v%d, s%d, v%d" % (vAD, S_T0, vER))
        for r_ in range(4): A("ds_read_b128 v[%d:%d], v%d offset:%d" % (FA + 4*r_, FA + 4*r_ + 3, vAD, r_ * 18432))
    def read_b(sreg_b, dst):
        A("s_add_u32 s%d, s%d, 9" % (S_T0, sreg_b)); A("s_lshl_b32 s%d, s%d, 10" % (S_T0, S_T0))
        A("v_add_u32 v%d, s%d, v%d" % (vAD + 1, S_T0, vER))
        for r_ in range(4): A("ds_read_b128 v[%d:%d], v%d offset:%d" % (dst + 4*r_, dst + 4*r_ + 3, vAD + 1, r_ * 18432))
    def mm(dst, bsrc):
        for r_ in range(4):
            cs = "0" if r_ == 0 else "v[%d:%d]" % (dst, dst + 3)
            A("v_mfma_f32_16x16x32_bf16 v[%d:%d], v[%d:%d], v[%d:%d], %s" % (dst, dst + 3, FA + 4*r_, FA + 4*r_ + 3, bsrc(r_), bsrc(r_) + 3, cs))
    def mask_add(src, sreg_b, sreg_off, tag):
        if sreg_b is not None:
            A("s_lshl_b32 s%d, s%d, 4" % (S_T0, sreg_b))
            A("v_add_u32 v%d, s%d, v%d" % (HE, S_T0, vE16))
            A("v_mul_u32_u24 v%d, 3641, v%d" % (HE, HE))
            A("v_lshrrev_b32 v%d, 16, v%d" % (HE, HE))
        for rr in range(4):
            if sreg_b is not None:
                A("v_cmp_eq_u32 vcc, v%d, v%d" % (HD + rr, HE))
                A("s_nop 1")
                A("v_cndmask_b32 v%d, 0, v%d, vcc" % (src + rr, src + rr))
                A("s_or_b32 exec_lo, vcc_lo, 1"); A("s_mov_b32 exec_hi, vcc_hi")
            else:
                A("s_mov_b32 exec_lo, 0x00010001"); A("s_mov_b32 exec_hi, 0x00010001")
            A("buffer_atomic_add_f32 v%d, v%d, s[%d:%d], s%d offen offset:%d" % (src + rr, vAT, SRD_KV, SRD_KV + 3, sreg_off, rr * 256))
            A("s_mov_b64 exec, -1")
            A.vm.issue(("at", tag, rr))
    SB = [S_B, S_E3, 59]
    SO = [93, 94, 95]
    A("s_mov_b32 s%d, s%d" % (S_A, S_WAVE))
    read_a()
    for j, db in enumerate((-1, 0, 1)):
        A("s_add_i32 s%d, s%d, %d" % (S_T2, S_A, db))
        A("s_max_i32 s%d, s%d, 0" % (SB[j], S_T2))
        A("s_mul_i32 s%d, s%d, 3" % (SO[j], S_A)); A("s_add_u32 s%d, s%d, %d" % (SO[j], SO[j], j))
        A("s_cmp_eq_u32 s%d, s%d" % (SB[j], S_T2))
        A("s_cselect_b32 s%d, s%d, 0x1fffff" % (SO[j], SO[j]))
        A("s_lshl_b32 s%d, s%d, 10" % (SO[j], SO[j]))
        read_b(SB[j], FB + 16 * j)
    head_rows()
    A("s_waitcnt lgkmcnt(12)")
    mm(KS[3], lambda r_: ONESF)
    A("s_waitcnt lgkmcnt(0)")
    for j in range(3): mm(KS[j], lambda r_, j=j: FB + 16 * j + 4 * r_)
    A("s_add_u32 s%d, s%d, 27" % (S_T2, S_A)); A("s_lshl_b32 s%d, s%d, 10" % (S_T2, S_T2))
    A("s_nop 4")
    mask_add(KS[3], None, S_T2, "z")
    for j in range(3): mask_add(KS[j], SB[j], SO[j], j)
    stamp(A, 1)
    if c == 1:
        A("s_cmp_eq_u32 s%d, 0" % S_R)
        A("s_cbranch_scc1 %s" % L("L_kv8_rd"))
        A("v_add_u32 v%d, 8192, v%d" % (vAD, vER))
        for r_ in range(4): A("ds_read_b128 v[%d:%d], v%d offset:%d" % (FA + 4*r_, FA + 4*r_ + 3, vAD, r_ * 18432))
        A("s_add_u32 s%d, s%d, 6" % (S_E1, S_R)); A("s_min_u32 s%d, s%d, 8" % (S_E1, S_E1))
        read_b(S_E1, FB)
        A("s_waitcnt lgkmcnt(0)")
        A.label(L("L_kv8_rd"))
    stamp(A, 1)
    A("s_barrier")
    wdma(19)
    stamp(A, 1)
    if c == 1:
        A("s_cmp_eq_u32 s%d, 0" % S_R)
        A("s_cbranch_scc1 %s" % L("L_kv8_done"))
        A("s_mov_b32 s%d, 8" % S_A)
        head_rows()
        sv = (list(A.vm.ops), A.vm.done)
        A("s_cmp_eq_u32 s%d, 3" % S_R)
        A("s_cbranch_scc1 %s" % L("L_kv8_z"))
        A("s_add_u32 s%d, s%d, 23" % (SO[0], S_R)); A("s_lshl_b32 s%d, s%d, 10" % (SO[0], SO[0]))
        mm(KS[0], lambda r_: FB + 4 * r_)
        A("s_nop 7"); A("s_nop 1")
        mask_add(KS[0], S_E1, SO[0], "x")
        A("s_branch %s" % L("L_kv8_done"))
        A.label(L("L_kv8_z"))
        mm(KS[0], lambda r_: ONESF)
        A("s_mov_b32 s%d, %d" % (SO[0], 35 << 10))
        A("s_nop 7"); A("s_nop 1")
        mask_add(KS[0], None, SO[0], "y")
        A.label(L("L_kv8_done"))
        A.vm.ops, A.vm.done = sv
    A.lg.all()
    stamp(A); stamp(A, 1)
    first_q = [p for p in range(len(seq)) if seq[p][3] == 3][0]
    for phi in range(first_q, first_q + NF): fread(phi)
    def signal_kv():
        A("s_lshl_b32 s%d, s%d, 2" % (S_T0, S_ROLE)); A("s_add_u32 s%d, s%d, 80" % (S_T0, S_T0))
        A("v_mov_b32 v%d, 0x7fffff00" % vT0); A("v_mov_b32 v%d, s%d" % (vPA, S_T0))
        A("s_lshl_b32 s%d, s%d, 6" % (S_T1, S_WAVE))
        A("v_add_u32 v%d, s%d, v%d" % (vT2, S_T1, vL))
        A("v_cmp_eq_u32 vcc, 0, v%d" % vT2)
        A("v_mov_b32 v%d, 1" % vT3)
        A("s_nop 0")
        A("v_cndmask_b32 v%d, v%d, v%d, vcc" % (vT0, vT0, vPA))
        A("buffer_atomic_add v%d, v%d, s[%d:%d], 0 offen sc1" % (vT3, vT0, SRD_D, SRD_D + 3))
        A.vm.issue(("sig",))
    def kpoll_issue():
        A("buffer_load_dword v%d, v%d, s[%d:%d], 0 offen sc1" % (vPZ, vPA, SRD_D, SRD_D + 3))
        A.vm.issue(("kp",))
    KL, ZL, KL8, ZL8 = ACC + 40, ACC + 52, ACC + 56, ACC + 68
    def kv_loads(sreg_a, kl, zl, voff):
        A("s_mul_i32 s%d, s%d, 3072" % (S_T2, sreg_a))
        for j in range(3):
            for rr in range(4):
                A("buffer_load_dword v%d, v%d, s[%d:%d], s%d offen offset:%d sc1" % (kl + 4*j + rr, voff, SRD_KV, SRD_KV + 3, S_T2, j * 1024 + rr * 256))
        A("s_add_u32 s%d, s%d, 27" % (S_T2, sreg_a)); A("s_lshl_b32 s%d, s%d, 10" % (S_T2, S_T2))
        A("v_and_b32 v%d, 0xc0, v%d" % (vT1, voff))
        for rr in range(4):
            A("buffer_load_dword v%d, v%d, s[%d:%d], s%d offen offset:%d sc1" % (zl + rr, vT1, SRD_KV, SRD_KV + 3, S_T2, rr * 256))
    def kv_loads_all(sfx):
        A("v_lshlrev_b32 v%d, 2, v%d" % (vT0, vL))
        kv_loads(S_WAVE, KL, ZL, vT0)
        if c == 0:
            A("s_cmp_lg_u32 s%d, 0" % S_R)
            A("s_cbranch_scc1 %s" % L("L_kvl8" + sfx))
            A("s_mov_b32 s%d, 8" % S_A)
            kv_loads(S_A, KL8, ZL8, vT0)
            A.label(L("L_kvl8" + sfx))
    S_KVOK = S_E1
    def kpoll_early():
        A.wait(vm=[("kp",)])
        A("v_readfirstlane_b32 s%d, v%d" % (S_T0, vPZ))
        A("s_mov_b32 s%d, 0" % S_KVOK)
        A("s_nop 2")
        A("s_cmp_lt_u32 s%d, 16" % S_T0)
        A("s_cbranch_scc1 %s" % L("L_kv_late"))
        A("s_mov_b32 s%d, 1" % S_KVOK)
        kv_loads_all("a")
        A.label(L("L_kv_late"))
    run_steps(18, 27, xvm={20: [("at", 2, 3)]}, xblk={20: [signal_kv], 23: [kpoll_issue], 25: [kpoll_early]})
    stamp(A)
    stamp(A, 2)
    A("s_and_b32 s%d, s%d, 3" % (S_T1, S_WAVE))
    A("s_mul_i32 s%d, s%d, 18" % (S_T0, S_WAVE))
    for q in range(3):
        def row(q=q):
            A("v_lshrrev_b32 v%d, 1, v%d" % (vT3, vT1))
            A("v_add_u32 v%d, s%d, v%d" % (vT3, S_T1, vT3))
            A("v_and_b32 v%d, 3, v%d" % (vT3, vT3)); A("v_lshlrev_b32 v%d, 1, v%d" % (vT3, vT3))
            A("v_xor_b32 v%d, v%d, v%d" % (vT2, vT2, vT3))
            A("v_add_u32 v%d, s%d, v%d" % (vT1, S_T0, vT1))
            A("v_mul_u32_u24 v%d, 1152, v%d" % (vT1, vT1))
            A("v_lshl_add_u32 v%d, v%d, 4, v%d" % (vDM + q, vT2, vT1))
        piece_pattern(q, row)
    A("s_mul_i32 s%d, s%d, %d" % (S_MB, S_WAVE, 18 * 384))
    def cdma1(ch, q):
        last = (q == 6)
        if last: A("s_mov_b32 exec_hi, 0xffff")
        A("s_add_u32 m0, s%d, %d" % (S_MB, (ch & 1) * CH + q * 1024))
        A("s_mov_b32 s%d, %d" % (S_T3, (q // 3) * 8 * 1152 + ch * 384))
        A("buffer_load_dwordx4 v%d, s[%d:%d], s%d offen lds" % (vDM + q % 3, SRD_B, SRD_B + 3, S_T3))
        if last: A("s_mov_b32 exec_hi, -1")
        A.vm.issue(("c", ch, q))
    A("s_waitcnt lgkmcnt(0)"); A.lg.all()
    A("s_barrier")
    A("s_cmp_eq_u32 s%d, 1" % S_KVOK)
    A("s_cbranch_scc1 %s" % L("L_kv_have"))
    A.vm.issue(("kp2",)); A.vm.all()
    A("s_waitcnt vmcnt(0)")
    A("buffer_load_dword v%d, v%d, s[%d:%d], 0 offen sc1" % (vPZ, vPA, SRD_D, SRD_D + 3))
    A("s_waitcnt vmcnt(0)")
    lab = A.newlabel("L_poll"); ok = A.newlabel("L_pollok")
    A("s_mov_b32 s%d, 0" % S_T1)
    A.label(lab)
    A("v_readfirstlane_b32 s%d, v%d" % (S_T0, vPZ))
    A("s_add_u32 s%d, s%d, 1" % (S_T1, S_T1))
    A("s_nop 2")
    A("s_cmp_ge_u32 s%d, 16" % S_T0)
    A("s_cbranch_scc1 %s" % ok)
    A("s_cmp_ge_u32 s%d, 50000" % S_T1)
    A("s_cbranch_scc1 %s" % ok)
    A("s_sleep 2")
    A("buffer_load_dword v%d, v%d, s[%d:%d], 0 offen sc1" % (vPZ, vPA, SRD_D, SRD_D + 3))
    A("s_waitcnt vmcnt(0)")
    A("s_branch %s" % lab)
    A.label(ok)
    kv_loads_all("b")
    A.label(L("L_kv_have"))
    stamp(A, 2)
    nq = len(qt)
    RLQ = WR
    for u in range(2): A("v_mul_f32 v%d, s%d, v%d" % (RLQ + u, S_L2E, vRSl + u))
    TP3 = [WR + 2 + i for i in range(8)]
    vPQ = vT1
    A("s_mul_i32 s%d, s%d, %d" % (S_T0, S_R, 2 * 9 * 512)); A("s_add_u32 s%d, s%d, %d" % (S_T0, S_T0, PQ))
    A("v_lshl_add_u32 v%d, v%d, 3, s%d" % (vPQ, vL, S_T0))
    cq = list(range(7))
    for i, t in enumerate(qt):
        regs = list(range(ACC + 8 * i, ACC + 8 * i + 8))
        phi_vals(regs, TP3, [(RLQ + (k // 4), vRSl + (k // 4)) for k in range(8)])
        for u in range(2):
            b = ACC + 8 * i + 4 * u
            A("v_cvt_pk_bf16_f32 v%d, v%d, v%d" % (b, b, b + 1)); A("v_cvt_pk_bf16_f32 v%d, v%d, v%d" % (b + 1, b + 2, b + 3))
            A("ds_write_b64 v%d, v[%d:%d] offset:%d" % (vPQ, b, b + 1, u * 9 * 512 + t * 512))
        for _ in range(2):
            if cq: cdma1(0, cq.pop(0))
    while cq: cdma1(0, cq.pop(0))
    stamp(A); stamp(A, 2)
    HD, HE, ZT, PKT, vFW = 24, 28, 32, 36, 30
    vG4, vE16 = vT2, vT3
    A("v_lshrrev_b32 v%d, 4, v%d" % (vG4, vL)); A("v_lshlrev_b32 v%d, 2, v%d" % (vG4, vG4))
    A("v_and_b32 v%d, 15, v%d" % (vE16, vL))
    def kvf(sreg_a, kl, zl):
        A("s_lshl_b32 s%d, s%d, 4" % (S_T0, sreg_a))
        for rr in range(4):
            A("v_add_u32 v%d, s%d, v%d" % (HD + rr, S_T0, vG4))
            if rr: A("v_add_u32 v%d, %d, v%d" % (HD + rr, rr, HD + rr))
            A("v_mul_u32_u24 v%d, 3641, v%d" % (HD + rr, HD + rr))
            A("v_lshrrev_b32 v%d, 16, v%d" % (HD + rr, HD + rr))
        A("s_mul_i32 s%d, s%d, %d" % (S_T0, sreg_a, 3 * 512)); A("s_add_u32 s%d, s%d, %d" % (S_T0, S_T0, KVF))
        A("v_lshl_add_u32 v%d, v%d, 3, s%d" % (vFW, vL, S_T0))
        for j in range(3):
            A("s_add_u32 s%d, s%d, %d" % (S_T0, sreg_a, j + 15)); A("s_lshl_b32 s%d, s%d, 4" % (S_T0, S_T0)); A("s_sub_u32 s%d, s%d, 256" % (S_T0, S_T0))
            A("v_add_u32 v%d, s%d, v%d" % (HE, S_T0, vE16))
            A("v_and_b32 v%d, 0xff, v%d" % (HE, HE))
            A("v_mul_u32_u24 v%d, 3641, v%d" % (HE, HE))
            A("v_lshrrev_b32 v%d, 16, v%d" % (HE, HE))
            for rr in range(4):
                A("v_cmp_eq_u32 vcc, v%d, v%d" % (HD + rr, HE))
                A("s_nop 1")
                A("v_cndmask_b32 v%d, 0, v%d, vcc" % (ZT + rr, zl + rr))
            A("v_cvt_pk_bf16_f32 v%d, v%d, v%d" % (PKT, kl + 4*j, kl + 4*j + 1)); A("v_cvt_pk_bf16_f32 v%d, v%d, v%d" % (PKT + 1, kl + 4*j + 2, kl + 4*j + 3))
            A("v_cvt_pk_bf16_f32 v%d, v%d, v%d" % (PKT + 2, ZT, ZT + 1)); A("v_cvt_pk_bf16_f32 v%d, v%d, v%d" % (PKT + 3, ZT + 2, ZT + 3))
            A("ds_write_b64 v%d, v[%d:%d] offset:%d" % (vFW, PKT, PKT + 1, j * 512))
            A("ds_write_b64 v%d, v[%d:%d] offset:%d" % (vFW, PKT + 2, PKT + 3, (ZF - KVF) + j * 512))
            A("s_nop 1")
    A("s_waitcnt vmcnt(7)")
    stamp(A, 2)
    kvf(S_WAVE, KL, ZL)
    if c == 0:
        A("s_cmp_lg_u32 s%d, 0" % S_R)
        A("s_cbranch_scc1 %s" % L("L_kvf8"))
        kvf(S_A, KL8, ZL8)
        A.label(L("L_kvf8"))
    A("s_waitcnt lgkmcnt(0)"); A.lg.all()
    stamp(A, 2)
    A("s_barrier")
    stamp(A, 2)
    PF = 40
    vPR = vT0
    A("s_lshl_b32 s%d, s%d, 1" % (S_T0, S_R)); A("s_add_u32 s%d, s%d, %d" % (S_T0, S_T0, c))
    A("s_mul_i32 s%d, s%d, %d" % (S_T0, S_T0, 9 * 512)); A("s_add_u32 s%d, s%d, %d" % (S_T0, S_T0, PQ))
    A("v_lshl_add_u32 v%d, v%d, 3, s%d" % (vPR, vL, S_T0))
    for t in range(9):
        A("ds_read_b64 v[%d:%d], v%d offset:%d" % (PF + 2*t, PF + 2*t + 1, vPR, t * 512))
    vKR = vT1
    A("v_lshlrev_b32 v%d, 3, v%d" % (vKR, vL)); A("v_add_u32 v%d, %d, v%d" % (vKR, KVF, vKR))
    KF = [60, 72]
    NUM, DEN, OT = 84, 120, 156
    def oread(b):
        st = KF[b & 1]
        al = [a for a in (b - 1, b, b + 1) if 0 <= a <= 8]
        for i_, a in enumerate(al):
            j = b - a + 1
            A("ds_read_b64 v[%d:%d], v%d offset:%d" % (st + 2*i_, st + 2*i_ + 1, vKR, (a * 3 + j) * 512))
            A("ds_read_b64 v[%d:%d], v%d offset:%d" % (st + 6 + 2*i_, st + 6 + 2*i_ + 1, vKR, (ZF - KVF) + (a * 3 + j) * 512))
        return 2 * len(al)
    oread(0)
    for b in range(9):
        st = KF[b & 1]
        al = [a for a in (b - 1, b, b + 1) if 0 <= a <= 8]
        nn = oread(b + 1) if b + 1 < 9 else 0
        A("s_waitcnt lgkmcnt(%d)" % nn)
        for i_, a in enumerate(al):
            cs = "0" if i_ == 0 else "v[%d:%d]" % (NUM + 4*b, NUM + 4*b + 3)
            A("v_mfma_f32_16x16x16_bf16 v[%d:%d], v[%d:%d], v[%d:%d], %s" % (NUM + 4*b, NUM + 4*b + 3, st + 2*i_, st + 2*i_ + 1, PF + 2*a, PF + 2*a + 1, cs))
        for i_, a in enumerate(al):
            cs = "0" if i_ == 0 else "v[%d:%d]" % (DEN + 4*b, DEN + 4*b + 3)
            A("v_mfma_f32_16x16x16_bf16 v[%d:%d], v[%d:%d], v[%d:%d], %s" % (DEN + 4*b, DEN + 4*b + 3, st + 6 + 2*i_, st + 6 + 2*i_ + 1, PF + 2*a, PF + 2*a + 1, cs))
        if b >= 2:
            bb = b - 2
            for i_ in range(4): A("v_add_f32 v%d, 0x%x, v%d" % (DEN + 4*bb + i_, C1E6, DEN + 4*bb + i_))
            for i_ in range(4): A("v_rcp_f32 v%d, v%d" % (DEN + 4*bb + i_, DEN + 4*bb + i_))
    stamp(A, 2)
    A("s_nop 7"); A("s_nop 3")
    for bb in (7, 8):
        for i_ in range(4): A("v_add_f32 v%d, 0x%x, v%d" % (DEN + 4*bb + i_, C1E6, DEN + 4*bb + i_))
        for i_ in range(4): A("v_rcp_f32 v%d, v%d" % (DEN + 4*bb + i_, DEN + 4*bb + i_))
    A("s_nop 0")
    for b in range(9):
        for i_ in range(4): A("v_mul_f32 v%d, v%d, v%d" % (NUM + 4*b + i_, NUM + 4*b + i_, DEN + 4*b + i_))
        A("v_cvt_pk_bf16_f32 v%d, v%d, v%d" % (OT + 2*b, NUM + 4*b, NUM + 4*b + 1)); A("v_cvt_pk_bf16_f32 v%d, v%d, v%d" % (OT + 2*b + 1, NUM + 4*b + 2, NUM + 4*b + 3))
        A("ds_write_b64 v%d, v[%d:%d] offset:%d" % (vPR, OT + 2*b, OT + 2*b + 1, b * 512))
    vCR = 40
    A("v_lshrrev_b32 v%d, 4, v%d" % (vT1, vL)); A("v_lshlrev_b32 v%d, 2, v%d" % (vT1, vT1))
    A("v_lshrrev_b32 v%d, 2, v%d" % (vT2, vL)); A("v_and_b32 v%d, 3, v%d" % (vT2, vT2))
    A("v_add_u32 v%d, v%d, v%d" % (vT1, vT1, vT2))
    A("v_and_b32 v%d, 6, v%d" % (vT3, vT1))
    A("v_mul_u32_u24 v%d, 384, v%d" % (vT1, vT1))
    A("v_and_b32 v%d, 3, v%d" % (vT2, vL))
    A("v_lshl_add_u32 v%d, v%d, 3, v%d" % (vT1, vT2, vT1))
    stamp(A, 2)
    A("s_waitcnt vmcnt(0) lgkmcnt(0)"); A.vm.all(); A.lg.all()
    stamp(A, 2)
    A("s_barrier")
    stamp(A, 2)
    OB = 0
    A("s_mul_i32 s%d, s%d, %d" % (S_T0, S_R, 2 * 9 * 512)); A("s_add_u32 s%d, s%d, %d" % (S_T0, S_T0, PQ))
    A("v_lshl_add_u32 v%d, v%d, 3, s%d" % (vPR, vL, S_T0))
    for u in range(2):
        for b in range(9):
            A("ds_read_b64 v[%d:%d], v%d offset:%d" % (OB + 20*u + 2*b, OB + 20*u + 2*b + 1, vPR, u * 9 * 512 + b * 512))
    for j in range(4):
        A("v_xor_b32 v%d, %d, v%d" % (vT2, 2 * j, vT3))
        A("v_lshl_add_u32 v%d, v%d, 4, v%d" % (vCR + j, vT2, vT1))
        A("v_add_u32 v%d, %d, v%d" % (vCR + 4 + j, CH, vCR + j))
    vSO = 48
    A("v_and_b32 v%d, 15, v%d" % (vT1, vL))
    A("v_lshrrev_b32 v%d, 5, v%d" % (vT2, vL)); A("v_lshl_add_u32 v%d, v%d, 4, v%d" % (vT1, vT2, vT1))
    A("v_lshrrev_b32 v%d, 4, v%d" % (vT2, vL)); A("v_and_b32 v%d, 1, v%d" % (vT2, vT2)); A("v_lshl_add_u32 v%d, v%d, 5, v%d" % (vT1, vT2, vT1))
    A("s_mul_i32 s%d, s%d, %d" % (S_T0, S_R, 18 * 2048))
    A("v_lshl_add_u32 v%d, v%d, 4, s%d" % (vSO, vT1, S_T0))
    stamp(A); stamp(A, 2)
    WF5 = 52
    AC5 = 108
    PK5 = 124
    tl = list(range(6)) if c == 0 else list(range(6, 12))
    items = [(ch, t) for ch in range(3) for t in tl]
    def tread(idx, part):
        ch, t = items[idx]
        f = WF5 + 18 * (idx % 3); base = vCR + (t & 3) + 4 * (ch & 1)
        rd = []
        for pb in range(4):
            rd.append((f + 4*pb, (32 * pb) * 384 + 128 * (t >> 2))); rd.append((f + 4*pb + 2, (32 * pb + 16) * 384 + 128 * (t >> 2)))
        rd.append((f + 16, 128 * 384 + 128 * (t >> 2)))
        for q, (rg, off) in enumerate(rd):
            if (q < 5) == (part == 0):
                A("ds_read_b64_tr_b16 v[%d:%d], v%d offset:%d" % (rg, rg + 1, base, off))
                A.lg.issue(("t", idx, q))
    def tstore(idx):
        ch, t = items[idx]
        ac = AC5 + 8 * (idx & 1); pk = PK5 + 4 * (idx & 1)
        A("v_cvt_pk_bf16_f32 v%d, v%d, v%d" % (pk, ac, ac + 1)); A("v_cvt_pk_bf16_f32 v%d, v%d, v%d" % (pk + 1, ac + 2, ac + 3))
        A("v_cvt_pk_bf16_f32 v%d, v%d, v%d" % (pk + 2, ac + 4, ac + 5)); A("v_cvt_pk_bf16_f32 v%d, v%d, v%d" % (pk + 3, ac + 6, ac + 7))
        A("s_mov_b32 s%d, %d" % (S_T2, (12 * ch + t) * 1024)); A("s_nop 0")
        A("v_permlane32_swap_b32 v%d, v%d" % (pk, pk + 2)); A("v_permlane32_swap_b32 v%d, v%d" % (pk + 1, pk + 3))
        A("s_nop 0")
        A("buffer_store_dwordx4 v[%d:%d], v%d, s[%d:%d], s%d offen%s" % (pk, pk + 3, vSO, SRD_P, SRD_P + 3, S_T2, opt.stf))
        A.vm.issue(("st", idx))
    tread(0, 0); tread(0, 1)
    A("s_waitcnt lgkmcnt(9)")
    A("s_barrier")
    for q in range(7): cdma1(1, q)
    dq = []
    for idx, (ch, t) in enumerate(items):
        f = WF5 + 18 * (idx % 3); ac = AC5 + 8 * (idx & 1)
        nxt = idx + 1 if idx + 1 < len(items) else None
        cross = nxt is not None and items[nxt][0] != ch
        if cross:
            A.wait(vm=[("c", items[nxt][0], 6)], lg=[("t", idx, 8)])
            A("s_barrier")
            if ch + 2 < 3:
                for q in range(7): cdma1(ch + 2, q)
        A.wait(lg=[("t", idx, 8)])
        for u in range(2):
            for pb in range(4):
                cs = "0" if pb == 0 else "v[%d:%d]" % (ac + 4*u, ac + 4*u + 3)
                A("v_mfma_f32_16x16x32_bf16 v[%d:%d], v[%d:%d], v[%d:%d], %s" % (ac + 4*u, ac + 4*u + 3, f + 4*pb, f + 4*pb + 3, OB + 20*u + 4*pb, OB + 20*u + 4*pb + 3, cs))
                if nxt is not None and u == 0 and pb == 1: tread(nxt, 0)
                if nxt is not None and u == 1 and pb == 1: tread(nxt, 1)
        A("s_nop 1")
        for u in range(2):
            A("v_mfma_f32_16x16x16_bf16 v[%d:%d], v[%d:%d], v[%d:%d], v[%d:%d]" % (ac + 4*u, ac + 4*u + 3, f + 16, f + 17, OB + 20*u + 16, OB + 20*u + 17, ac + 4*u, ac + 4*u + 3))
        if idx >= 1: tstore(idx - 1)
        for _ in range(2):
            if dq: cdma1(*dq.pop(0))
    A("s_nop 7"); A("s_nop 1")
    tstore(len(items) - 1)
    stamp(A, 9)
    att_tail(A, "a%d" % c)
    stamp(A, 9)
    stamp_flush(A)
    A("s_endpgm")
```

```python
from g2_common import *

def mlp_role(A, c):
    A.reset()
    XN = 0
    ACC = [144, 160]
    WF = 176
    P = 208
    T = 216
    vD1, vD2 = 224, 225
    vR1, vR2, vHW, vHR, vST, vA, vC2 = 226, 227, 228, 229, 230, 231, 232
    vXR = 240
    vDX = 244
    vS, vQ = 246, 248
    vL, vT0, vT1, vT2, vT3 = 250, 251, 252, 253, 254
    vSX = 255
    U = 233
    RING = 8
    XSL = 6
    HBASE = 65536
    XS = HBASE
    SXB = 7 * 8192
    NSC = 6
    NU1 = NSC * 9
    NU = NU1 + 54

    A.comment("---- MLP role, wave group %d ----" % c)
    stamp(A, 9)
    code_prefetch(A, 236, 238, 1)
    A("v_and_b32 v%d, 63, v0" % vL)
    x_unit_setup(A, vL, vDX, vT0, vT1, vT2, vT3, XS)
    for kb in range(3): x_unit_dma(A, kb, vDX, XSL)
    A("s_mul_i32 s%d, s%d, 768" % (S_T0, S_ROLE))
    srd_off(A, SRD_A, S_W1, S_W1 + 1, S_T0, D * F * 2)
    A("s_lshl_b32 s%d, s%d, 3" % (S_T0, S_WAVE))
    A("v_add_u32 v%d, s%d, v%d" % (vT0, S_T0, vT0))
    A("v_lshrrev_b32 v%d, 2, v%d" % (vT2, vL)); A("v_and_b32 v%d, 4, v%d" % (vT2, vT2))
    A("v_xor_b32 v%d, v%d, v%d" % (vT2, vT3, vT2))
    A("v_lshlrev_b32 v%d, 4, v%d" % (vT2, vT2))
    A("v_mul_u32_u24 v%d, 9216, v%d" % (vD1, vT0))
    A("v_add_u32 v%d, v%d, v%d" % (vD1, vD1, vT2))
    A("v_mul_u32_u24 v%d, 1152, v%d" % (vD2, vT0))
    A("v_add_u32 v%d, v%d, v%d" % (vD2, vD2, vT2))
    A("s_lshl_b32 s%d, s%d, 10" % (S_M0B, S_WAVE))
    for kb in range(3, 6): x_unit_dma(A, kb, vDX, XSL)

    def dma(un):
        if un >= NU: return
        slot = un % RING
        if un < NU1:
            A("s_add_u32 m0, s%d, %d" % (S_M0B, slot * 8192))
            sc, kb = divmod(un, 9)
            A("s_mov_b32 s%d, %d" % (S_T3, kb * 64 * 9216 + sc * 128))
            A("buffer_load_dwordx4 v%d, s[%d:%d], s%d offen lds" % (vD1, SRD_A, SRD_A+3, S_T3))
            A.vm.issue(("dma", un))
        else:
            t, fb = divmod(un - NU1, 6)
            A("s_add_u32 m0, s%d, %d" % (S_M0B, slot * 8192))
            A("s_mov_b32 s%d, %d" % (S_T3, fb * 64 * 1152 + t * 128))
            A("buffer_load_dwordx4 v%d, s[%d:%d], s%d offen lds" % (vD2, SRD_B, SRD_B+3, S_T3))
            A.vm.issue(("dma", un))
    A("s_mul_i32 s%d, s%d, %d" % (S_T0, S_ROLE, 384 * 1152))
    srd_off(A, SRD_B, S_W2, S_W2 + 1, S_T0, D * F * 2)
    A("s_mul_i32 s%d, s%d, %d" % (S_T0, S_ROLE, PART_BYTES))
    A("s_mul_i32 s%d, s%d, %d" % (S_T1, S_TILE, 4 * 18 * 2048))
    A("s_add_u32 s%d, s%d, s%d" % (S_T0, S_T0, S_T1))
    srd_off(A, SRD_P, S_WS, S_WS + 1, S_T0, NPART * PART_BYTES)
    A("v_lshrrev_b32 v%d, 5, v%d" % (vT1, vL))
    A("v_lshrrev_b32 v%d, 2, v%d" % (vT0, vL)); A("v_and_b32 v%d, 3, v%d" % (vT0, vT0))
    A("v_lshrrev_b32 v%d, 4, v%d" % (vT2, vL)); A("v_and_b32 v%d, 1, v%d" % (vT2, vT2))
    A("v_lshlrev_b32 v%d, 1, v%d" % (vT2, vT2))
    A("v_lshrrev_b32 v%d, 1, v%d" % (vT3, vL)); A("v_and_b32 v%d, 1, v%d" % (vT3, vT3))
    A("v_add_u32 v%d, v%d, v%d" % (vT2, vT2, vT3))
    if c: A("v_add_u32 v%d, 4, v%d" % (vT2, vT2))
    A("v_lshrrev_b32 v%d, 1, v%d" % (vT3, vT0)); A("v_lshlrev_b32 v%d, 2, v%d" % (vT3, vT3))
    A("v_xor_b32 v%d, v%d, v%d" % (vT2, vT2, vT3))
    A("v_lshlrev_b32 v%d, 4, v%d" % (vT2, vT2))
    A("v_and_b32 v%d, 1, v%d" % (vT3, vL)); A("v_lshlrev_b32 v%d, 3, v%d" % (vT3, vT3))
    A("v_add_u32 v%d, v%d, v%d" % (vT2, vT2, vT3))
    A("v_lshlrev_b32 v%d, 2, v%d" % (vT3, vT1)); A("v_add_u32 v%d, v%d, v%d" % (vT3, vT3, vT0))
    A("v_lshlrev_b32 v%d, 7, v%d" % (vT3, vT3)); A("v_add_u32 v%d, v%d, v%d" % (vR2, vT3, vT2))
    A("v_lshlrev_b32 v%d, 3, v%d" % (vT3, vT1)); A("v_add_u32 v%d, v%d, v%d" % (vT3, vT3, vT0))
    A("v_lshlrev_b32 v%d, 7, v%d" % (vT3, vT3)); A("v_add_u32 v%d, v%d, v%d" % (vR1, vT3, vT2))
    A("v_and_b32 v%d, 31, v%d" % (vT0, vL))
    A("s_lshl_b32 s%d, s%d, 5" % (S_T0, S_R))
    A("v_add_u32 v%d, s%d, v%d" % (vT0, S_T0, vT0))
    A("v_lshrrev_b32 v%d, 1, v%d" % (vT2, vL)); A("v_and_b32 v%d, 7, v%d" % (vT2, vT2))
    A("v_xor_b32 v%d, v%d, v%d" % (vT2, vT2, vT1))
    A("v_lshlrev_b32 v%d, 4, v%d" % (vT2, vT2))
    A("v_lshl_add_u32 v%d, v%d, 7, v%d" % (vT2, vT0, vT2))
    A("v_add_u32 v%d, %d, v%d" % (vXR, XS, vT2))
    for j in range(1, 4): A("v_xor_b32 v%d, %d, v%d" % (vXR + j, j * 32, vXR))
    A("s_mul_i32 s%d, s%d, 24576" % (S_T0, S_R))
    A("s_add_u32 s%d, s%d, %d" % (S_T0, S_T0, HBASE))
    A("s_mov_b32 s%d, s%d" % (S_E1, S_T0))
    A("v_lshlrev_b32 v%d, 4, v%d" % (vT3, vL))
    A("v_add_u32 v%d, s%d, v%d" % (vHR, S_T0, vT3))
    A("v_add_u32 v%d, %d, v%d" % (vHW, 2048 * c, vHR))
    A("s_mul_i32 s%d, s%d, 18" % (S_T0, S_R))
    A("s_add_u32 s%d, s%d, %d" % (S_T0, S_T0, c))
    A("s_lshl_b32 s%d, s%d, 11" % (S_T0, S_T0))
    A("v_add_u32 v%d, s%d, v%d" % (vST, S_T0, vT3))
    A("v_and_b32 v%d, 31, v%d" % (vT0, vL))
    A("s_lshl_b32 s%d, s%d, 8" % (S_T0, S_WAVE))
    A("s_add_u32 s%d, s%d, %d" % (S_T0, S_T0, SXB))
    A("v_lshl_add_u32 v%d, v%d, 3, s%d" % (vSX, vT0, S_T0))
    for q in range(2):
        A("v_mov_b32 v%d, 0" % (vS + q)); A("v_mov_b32 v%d, 0" % (vQ + q))

    def xread(kb, j):
        slot = kb % XSL
        rg = XN + 4 * (4 * kb + j)
        if slot < 4:
            A("ds_read_b128 v[%d:%d], v%d offset:%d" % (rg, rg + 3, vXR + j, slot * 16384))
        else:
            A("v_add_u32 v%d, 0x10000, v%d" % (T + j, vXR + j))
            A("ds_read_b128 v[%d:%d], v%d offset:%d" % (rg, rg + 3, T + j, (slot - 4) * 16384))
        A.lg.issue(("xf", kb, j))
    def stats(kb, j):
        for e in range(4):
            rg = XN + 4 * (4 * kb + j) + e
            A("v_dot2_f32_bf16 v%d, v%d, s%d, v%d" % (vS + (e & 1), rg, S_ONES, vS + (e & 1)))
            A("v_dot2_f32_bf16 v%d, v%d, v%d, v%d" % (vQ + (e & 1), rg, rg, vQ + (e & 1)))
    stamp(A)
    for g in range(3):
        A.wait(vm=[("x", 3 * g + 2, 1)])
        A("s_barrier")
        if g == 1:
            for kb in range(6, 9): x_unit_dma(A, kb, vDX, XSL)
            dma(0); dma(1)
        own = [(kb, j) for kb in range(3 * g, 3 * g + 3) for j in (2 * c, 2 * c + 1)]
        oth = [(kb, j) for kb in range(3 * g, 3 * g + 3) for j in (2 - 2 * c, 3 - 2 * c)]
        for kb, j in own: xread(kb, j)
        for kb, j in oth: xread(kb, j)
        for kb, j in own:
            A.wait(lg=[("xf", kb, j)])
            stats(kb, j)
        A.wait(lg=[("xf",) + oth[-1]])
        if g == 2:
            for un in range(2, RING - 1): dma(un)
            if opt.touch:
                A("s_and_b32 s%d, s%d, 7" % (S_T0, S_TILE)); A("s_lshl_b32 s%d, s%d, 3" % (S_T0, S_T0)); A("s_add_u32 s%d, s%d, s%d" % (S_T0, S_T0, S_WAVE))
                A("s_mul_i32 s%d, s%d, %d" % (S_T0, S_T0, 54 * 128))
                A("v_lshl_add_u32 v%d, v%d, 7, s%d" % (vT0, vL, S_T0))
                A("v_mov_b32 v%d, 0x7fffff00" % vT2)
                A("v_cmp_gt_u32 vcc, 54, v%d" % vL)
                A("s_nop 1")
                A("v_cndmask_b32 v%d, v%d, v%d, vcc" % (vT0, vT2, vT0))
                A("buffer_load_dword v%d, v%d, s[%d:%d], 0 offen" % (U, vT0, SRD_B, SRD_B + 3))
                A.vm.issue(("touch",))
    A("s_nop 1")
    A("v_add_f32 v%d, v%d, v%d" % (vS, vS, vS + 1))
    A("v_add_f32 v%d, v%d, v%d" % (vQ, vQ, vQ + 1))
    xsum32(A, vS, vS + 1)
    xsum32(A, vQ, vQ + 1)
    A("v_mov_b32 v%d, v%d" % (vS + 1, vQ))
    A("ds_write_b64 v%d, v[%d:%d]" % (vSX, vS, vS + 1))
    A("v_xor_b32 v%d, 1024, v%d" % (vT0, vSX))
    A("s_waitcnt lgkmcnt(0)"); A.lg.all()
    A("s_barrier")
    A("ds_read_b64 v[%d:%d], v%d" % (T, T + 1, vT0))
    A("s_waitcnt lgkmcnt(0)")
    A("v_add_f32 v%d, v%d, v%d" % (vS, vS, T))
    A("v_add_f32 v%d, v%d, v%d" % (vQ, vQ, T + 1))
    A("v_mul_f32 v%d, 0x%x, v%d" % (vS, INV576, vS))
    A("v_mul_f32 v%d, 0x%x, v%d" % (vQ, INV576, vQ))
    A("v_fma_f32 v%d, -v%d, v%d, v%d" % (vQ, vS, vS, vQ))
    A("v_max_f32 v%d, 0, v%d" % (vQ, vQ))
    A("v_add_f32 v%d, 0x%x, v%d" % (vQ, EPS_LN, vQ))
    A("v_sub_f32 v%d, 0, v%d" % (vS, vS))
    A("v_rsq_f32 v%d, v%d" % (vA, vQ))
    A("v_sqrt_f32 v%d, v%d" % (vC2, vQ))
    A("s_nop 0")
    A("v_mul_f32 v%d, s%d, v%d" % (vA, S_L2E, vA))
    stamp(A)
    for n in range(0, 144, 4):
        for e in range(4):
            A("v_dot2_f32_bf16 v%d, v%d, s%d, v%d" % (T + 2*e, XN + n + e, S_SEL0, vS))
            A("v_dot2_f32_bf16 v%d, v%d, s%d, v%d" % (T + 2*e + 1, XN + n + e, S_SEL1, vS))
        A("s_nop 0")
        for e in range(4):
            A("v_cvt_pk_bf16_f32 v%d, v%d, v%d" % (XN + n + e, T + 2*e, T + 2*e + 1))

    def wfrag(un, i): return WF + 16 * (un & 1) + 4 * i
    def wread(un, i):
        if un >= NU: return
        slot = un % RING
        f = wfrag(un, i)
        off = slot * 8192 + i * 2048
        if un < NU1:
            A("ds_read_b64_tr_b16 v[%d:%d], v%d offset:%d" % (f, f+1, vR1, off))
            A("ds_read_b64_tr_b16 v[%d:%d], v%d offset:%d" % (f+2, f+3, vR1, off + 512))
        else:
            A("ds_read_b64_tr_b16 v[%d:%d], v%d offset:%d" % (f, f+1, vR2, off))
            A("ds_read_b64_tr_b16 v[%d:%d], v%d offset:%d" % (f+2, f+3, vR2, off + 1024))
        A.lg.issue(("w", un, i, 0)); A.lg.issue(("w", un, i, 1))
    def hread(hf):
        A("ds_read_b128 v[%d:%d], v%d offset:%d" % (XN + 4*hf, XN + 4*hf + 3, vHR, hf * 1024))
        A.lg.issue(("hr", hf))
    def hwrite(sc, ks):
        A("ds_write_b128 v%d, v[%d:%d] offset:%d" % (vHW, P + 4*ks, P + 4*ks + 3, sc * 4096 + ks * 1024))
        A.lg.issue(("hw", sc, ks))
    def silu_a(va, t):
        A("v_mul_f32 v%d, v%d, v%d" % (t, va, vA)); A("v_mul_f32 v%d, v%d, v%d" % (t+1, va+1, vA))
        A("v_exp_f32_e64 v%d, -v%d" % (t, t))
    def silu_a2(t):
        A("v_exp_f32_e64 v%d, -v%d" % (t+1, t+1))
        A("v_fma_f32 v%d, v%d, v%d, v%d" % (t, t, vC2, vC2))
    def silu_b(t):
        A("v_fma_f32 v%d, v%d, v%d, v%d" % (t+1, t+1, vC2, vC2))
        A("v_rcp_f32 v%d, v%d" % (t, t))
    def silu_b2(t):
        A("v_rcp_f32 v%d, v%d" % (t+1, t+1))
    def silu_c(va, t, pidx):
        A("v_mul_f32 v%d, v%d, v%d" % (t, va, t)); A("v_mul_f32 v%d, v%d, v%d" % (t+1, va+1, t+1))
        A("v_cvt_pk_bf16_f32 v%d, v%d, v%d" % (P + pidx, t, t+1))

    stamp(A)
    A.wait(vm=[("dma", 0)])
    A("s_barrier")
    for i in range(4): wread(0, i)

    N = NU + 3
    shadow = [[[] for _ in range(4)] for _ in range(N)]
    block = [[] for _ in range(N)]
    post = [[] for _ in range(N)]
    pre_lg = [[] for _ in range(N)]
    def vis(m, tag): pre_lg[m + 1 + c].append(tag)
    def sched_silu(sc, plan):
        acc = ACC[sc & 1]
        for n, pairs in plan:
            for q, pidx in enumerate(pairs):
                va = acc + 2 * pidx
                t = T + 2 * (q % 4)
                shadow[n][0].append(lambda va=va, t=t: silu_a(va, t))
                shadow[n][1].append(lambda t=t: silu_a2(t))
                shadow[n][2].append(lambda t=t: silu_b(t))
                shadow[n][3].append(lambda t=t: silu_b2(t))
                post[n].append(lambda va=va, t=t, pidx=pidx: silu_c(va, t, pidx))
                if pidx % 4 == 3:
                    ks = pidx // 4
                    post[n].append(lambda sc=sc, ks=ks: hwrite(sc, ks))
                    vis(n, ("hw", sc, ks))
    for n in range(NU):
        if n + RING - 1 < NU: block[n].append(lambda u=n + RING - 1: dma(u))
    for sc in range(NSC):
        n0 = 9 * (sc + 1)
        if sc < NSC - 1:
            sched_silu(sc, [(n0 + 1 + q, [q]) for q in range(8)])
        else:
            shadow[n0][0].append(lambda: (A("s_nop 7"), A("s_nop 3")))
            sched_silu(sc, [(n0, [0, 1, 2, 3]), (n0 + 1, [4, 5, 6, 7])])
    for hf in range(16): shadow[46 + hf // 4][hf % 4].append(lambda hf=hf: hread(hf))
    for hf in range(16, 20): shadow[56][hf % 4].append(lambda hf=hf: hread(hf))
    for hf in range(20, 24): shadow[58][hf % 4].append(lambda hf=hf: hread(hf))
    def epi(t, half):
        acc = ACC[t & 1] + 8 * half
        for q in range(4):
            A("v_cvt_pk_bf16_f32 v%d, v%d, v%d" % (P + 4*half + q, acc + 2*q, acc + 2*q + 1))
        A("s_mov_b32 s%d, %d" % (S_T2, t * 4096))
        A("buffer_store_dwordx4 v[%d:%d], v%d, s[%d:%d], s%d offen offset:%d%s" % (P + 4*half, P + 4*half + 3, vST, SRD_P, SRD_P+3, S_T2, half * 1024, opt.stf))
        A.vm.issue(("st", t, half))
    for t in range(8):
        n0 = NU1 + 6 * (t + 1)
        block[n0 + 1].append(lambda t=t: epi(t, 0))
        block[n0 + 3].append(lambda t=t: epi(t, 1))

    def group(n, i):
        def fn():
            tags = [("w", n, i, 1)]
            if n >= NU1:
                t, fb = divmod(n - NU1, 6); hf = fb * 4 + i
                if t == 0: tags.append(("hr", hf))
                acc = ACC[t & 1]; bop = XN + 4 * hf; first = (fb == 0 and i == 0)
            else:
                sc, kb = divmod(n, 9)
                acc = ACC[sc & 1]; bop = XN + 4 * (4 * kb + i); first = (kb == 0 and i == 0)
            A.wait(lg=tags)
            f = wfrag(n, i)
            csrc = "0" if first else "v[%d:%d]" % (acc, acc + 15)
            A("v_mfma_f32_32x32x16_bf16 v[%d:%d], v[%d:%d], v[%d:%d], %s" % (acc, acc+15, f, f+3, bop, bop+3, csrc))
            wread(n + 1, i)
            for fn2 in shadow[n][i]: fn2()
        return fn
    for n in range(NU):
        A.comment("step %d" % n)
        if opt.exp == "rep2" and n in (18, 60):
            A("s_mov_b32 s59, 0")
            A.label("L_rep%d_c%d" % (n, c))
        if opt.exp == "rep2" and n in (45, 102):
            A("s_add_u32 s59, s59, 1"); A("s_cmp_lt_u32 s59, 2"); A("s_cbranch_scc1 L_rep%d_c%d" % (18 if n == 45 else 60, c))
        if n in opt.stamp_steps: stamp(A, opt.lvl)
        pv = ([("dma", n + 1)] if n + 1 < NU else [])
        if c == 0: blk = post[n] + block[n]
        else: blk = (post[n - 1] if n else []) + block[n]
        emit_step(A, c, [group(n, i) for i in range(4)], blk, pv, pre_lg[n])
    assert not post[NU - 1]
    A("s_nop 7"); A("s_nop 7")
    epi(8, 0); epi(8, 1)
    stamp(A, 9)
    mlp_tail(A, "m%d" % c)
    stamp(A, 9)
    stamp_flush(A)
    A("s_endpgm")
```

```python
import sys
from asmlib import *

S, D, F = 2048, 576, 4608
PART_BYTES = S * D * 2
NPART = 16
WS_KV = 40 << 20
WS_STAMP = 48 << 20
WS_OF = 32 << 20
LOG2E = 0x3fb8aa3b
EPS_LN = 0x3727c5ac
INV576 = 0x3ae38e39
C1E6 = 0x358637bd

class Opt:
    stamps = False
    stamp_steps = ()
    dbgt = False
    stf = " sc0 sc1"
    exp = ""
    touch = True
    lvl = 0
    swave = 0
opt = Opt()

class Ctr:
    def __init__(self, maxv):
        self.ops = []; self.done = 0; self.maxv = maxv
    def issue(self, tag):
        self.ops.append(tag)
    def need(self, tags):
        idx = -1
        pos = {}
        for i, t in enumerate(self.ops): pos[t] = i
        for t in tags:
            assert t in pos, ("tag not issued", t)
            idx = max(idx, pos[t])
        if idx < self.done: return None
        n = min(len(self.ops) - 1 - idx, self.maxv)
        self.done = max(self.done, len(self.ops) - n)
        return n
    def all(self):
        self.done = len(self.ops)

class K(Asm):
    def __init__(self):
        super().__init__()
        self.reset()
        self.nstamp = 0
    def reset(self):
        self.vm = Ctr(63); self.lg = Ctr(15)
    def wait(self, vm=None, lg=None):
        a = self.vm.need(vm) if vm else None
        b = self.lg.need(lg) if lg else None
        parts = []
        if a is not None: parts.append("vmcnt(%d)" % a)
        if b is not None: parts.append("lgkmcnt(%d)" % b)
        if parts: self("s_waitcnt " + " ".join(parts))
    def waitall(self):
        self("s_waitcnt vmcnt(0) lgkmcnt(0)"); self.vm.all(); self.lg.all()

S_X, S_WQKV, S_WO, S_W1, S_W2, S_OUT, S_DBG, S_WS = 4, 6, 8, 12, 14, 16, 18, 20
S_A, S_B = 22, 23
SRD_X, SRD_A, SRD_B, SRD_P = 24, 28, 32, 36
S_WAVE, S_R, S_C, S_ROLE, S_TILE = 40, 41, 42, 43, 44
S_M0B, S_T0, S_T1, S_T2, S_T3 = 45, 46, 47, 48, 49
S_ONES, S_L2E, S_XM0, S_SEL0, S_SEL1 = 50, 51, 52, 53, 54
S_E0, S_E1, S_E2, S_E3 = 55, 56, 57, 58
SRD_KV, SRD_D = 8, 16
STAMP0 = 60

def stamp(A, lvl=0):
    if not opt.stamps: return
    if lvl != opt.lvl and not (lvl == 0 and opt.lvl == 0):
        if lvl != 9: return
    k = A.nstamp; A.nstamp += 1
    assert STAMP0 + 2 * k + 1 < 90
    A("s_memtime s[%d:%d]" % (STAMP0 + 2*k, STAMP0 + 1 + 2*k))
def stamp_flush(A):
    if opt.stamps:
        k = A.nstamp
        A("s_memrealtime s[90:91]")
        A("s_waitcnt lgkmcnt(0)")
        A("s_cmp_lg_u32 s%d, %d" % (S_WAVE, opt.swave))
        lab = A.newlabel("L_stamp_done")
        A("s_cbranch_scc1 %s" % lab)
        A("s_lshl_b32 s%d, s2, 7" % S_T0)
        A("s_add_u32 s%d, s%d, %d" % (S_T0, S_T0, WS_STAMP))
        A("s_add_u32 s56, s%d, s%d" % (S_WS, S_T0)); A("s_addc_u32 s57, s%d, 0" % (S_WS + 1))
        A("s_and_b32 s57, s57, 0xffff"); A("s_mov_b32 s58, 128"); A("s_mov_b32 s59, 0x20000")
        A("v_mov_b32 v250, 0")
        for j in range(k):
            A("v_mov_b32 v251, s%d" % (STAMP0 + 2*j))
            A("buffer_store_dword v251, v250, s[56:59], 0 offen offset:%d" % (4*j))
        A("v_mov_b32 v251, s90"); A("buffer_store_dword v251, v250, s[56:59], 0 offen offset:%d" % (4*k))
        A("v_mov_b32 v251, s92"); A("buffer_store_dword v251, v250, s[56:59], 0 offen offset:%d" % (4*(k+1)))
        A.label(lab)
    if opt.dbgt:
        lab = A.newlabel("L_dbgt")
        A("s_memrealtime s[62:63]")
        A("s_waitcnt lgkmcnt(0)")
        A("s_cmp_lg_u32 s%d, 0" % S_WAVE)
        A("s_cbranch_scc1 %s" % lab)
        A("s_add_u32 s64, s%d, %d" % (S_WS, WS_STAMP)); A("s_addc_u32 s65, s%d, 0" % (S_WS + 1)); A("s_and_b32 s65, s65, 0xffff")
        A("s_mov_b32 s66, 4096"); A("s_mov_b32 s67, 0x20000")
        A("s_lshl_b32 s68, s2, 3")
        A("s_mov_b64 exec, 1")
        A("v_mov_b32 v250, s92"); A("v_mov_b32 v251, s62"); A("v_mov_b32 v252, s68")
        A("buffer_store_dwordx2 v[250:251], v252, s[64:67], 0 offen")
        A.label(lab)
    A.nstamp = 0

def srd(A, sreg, lo, hi, nbytes):
    A("s_mov_b32 s%d, s%d" % (sreg, lo))
    A("s_and_b32 s%d, s%d, 0xffff" % (sreg + 1, hi))
    A("s_mov_b32 s%d, 0x%x" % (sreg + 2, nbytes))
    A("s_mov_b32 s%d, 0x20000" % (sreg + 3))

def srd_off(A, sreg, lo, hi, soff, total):
    A("s_add_u32 s%d, s%d, s%d" % (sreg, lo, soff))
    A("s_addc_u32 s%d, s%d, 0" % (sreg + 1, hi))
    A("s_and_b32 s%d, s%d, 0xffff" % (sreg + 1, sreg + 1))
    A("s_sub_u32 s%d, 0x%x, s%d" % (sreg + 2, total, soff))
    A("s_mov_b32 s%d, 0x20000" % (sreg + 3))

def xsum32(A, r, tmp):
    A("v_mov_b32 v%d, v%d" % (tmp, r)); A("s_nop 1")
    A("v_permlane32_swap_b32 v%d, v%d" % (r, tmp)); A("s_nop 1")
    A("v_add_f32 v%d, v%d, v%d" % (r, r, tmp))
def xsum16(A, r, tmp):
    A("v_mov_b32 v%d, v%d" % (tmp, r)); A("s_nop 1")
    A("v_permlane16_swap_b32 v%d, v%d" % (r, tmp)); A("s_nop 1")
    A("v_add_f32 v%d, v%d, v%d" % (r, r, tmp))

def x_unit_setup(A, vL, vDX, vT0, vT1, vT2, vT3, XS):
    A("s_lshl_b32 s%d, s%d, 7" % (S_T0, S_TILE))
    A("s_lshl_b32 s%d, s%d, 4" % (S_T1, S_WAVE))
    A("s_add_u32 s%d, s%d, s%d" % (S_T0, S_T0, S_T1))
    A("s_mul_i32 s%d, s%d, 1152" % (S_T0, S_T0))
    A("v_lshrrev_b32 v%d, 3, v%d" % (vT0, vL))
    A("v_mul_u32_u24 v%d, 1152, v%d" % (vT1, vT0))
    A("v_add_u32 v%d, s%d, v%d" % (vT1, S_T0, vT1))
    A("v_lshrrev_b32 v%d, 4, v%d" % (vT2, vL))
    A("v_and_b32 v%d, 7, v%d" % (vT3, vL))
    A("v_xor_b32 v%d, v%d, v%d" % (vDX, vT3, vT2))
    A("v_lshl_add_u32 v%d, v%d, 4, v%d" % (vDX, vDX, vT1))
    A("v_add_u32 v%d, 4, v%d" % (vT2, vT2))
    A("v_xor_b32 v%d, v%d, v%d" % (vDX + 1, vT3, vT2))
    A("v_lshl_add_u32 v%d, v%d, 4, v%d" % (vDX + 1, vDX + 1, vT1))
    A("v_add_u32 v%d, %d, v%d" % (vDX + 1, 8 * 1152, vDX + 1))
    A("s_lshl_b32 s%d, s%d, 11" % (S_XM0, S_WAVE))
    A("s_add_u32 s%d, s%d, %d" % (S_XM0, S_XM0, XS))

def x_unit_dma(A, kb, vDX, nslots):
    slot = kb % nslots
    for q in range(2):
        A("s_add_u32 m0, s%d, %d" % (S_XM0, slot * 16384 + q * 1024))
        A("s_movk_i32 s%d, %d" % (S_T3, kb * 128))
        A("buffer_load_dwordx4 v%d, s[%d:%d], s%d offen lds" % (vDX + q, SRD_X, SRD_X + 3, S_T3))
        A.vm.issue(("x", kb, q))

def emit_step(A, c, groups, block, pre_vm=None, pre_lg=None, head=None):
    A.wait(vm=pre_vm or None, lg=pre_lg or None)
    A("s_barrier")
    if head:
        for fn in head: fn()
    if c == 0:
        for g in groups: g()
        for fn in block: fn()
    else:
        for fn in block: fn()
        for g in groups: g()


WS_FLAG = 44 << 20
TAG_OFF = 240

def publish_tag(A):
    A("s_cmp_lg_u32 s2, 0"); A("s_cbranch_scc1 L_notag")
    A("s_cmp_lg_u32 s%d, 0" % S_WAVE); A("s_cbranch_scc1 L_notag")
    A("s_memrealtime s[%d:%d]" % (S_E0 + 1, S_E0 + 2))
    A("s_mov_b32 s%d, s%d" % (SRD_A, S_DBG)); A("s_and_b32 s%d, s%d, 0xffff" % (SRD_A + 1, S_DBG + 1)); A("s_mov_b32 s%d, 256" % (SRD_A + 2)); A("s_mov_b32 s%d, 0x20000" % (SRD_A + 3))
    A("s_waitcnt lgkmcnt(0)")
    A("s_or_b32 s%d, s%d, 1" % (S_E0 + 1, S_E0 + 1))
    A("v_mov_b32 v2, s%d" % (S_E0 + 1)); A("v_mov_b32 v3, %d" % TAG_OFF)
    A("s_mov_b64 exec, 1")
    A("buffer_store_dword v2, v3, s[%d:%d], 0 offen sc0 sc1" % (SRD_A, SRD_A + 3))
    A("s_mov_b64 exec, -1")
    A.label("L_notag")

def tail_common(A, L):
    SRD_O, SRD_PP, SRD_F = 28, 32, 36
    A("s_waitcnt vmcnt(0) lgkmcnt(0)")
    A("v_mbcnt_lo_u32_b32 v1, -1, 0")
    A("v_mbcnt_hi_u32_b32 v1, -1, v1")
    A("s_load_dwordx2 s[4:5], s[0:1], 0")
    A("s_load_dwordx4 s[12:15], s[0:1], 48")
    A("s_load_dwordx2 s[20:21], s[0:1], 64")
    A("s_barrier")
    A("s_waitcnt lgkmcnt(0)")
    srd(A, SRD_D, 14, 15, 256)
    A("s_lshl_b32 s%d, s%d, 7" % (S_T1, S_TILE)); A("s_add_u32 s%d, s%d, %d" % (S_T1, S_T1, WS_FLAG))
    A("s_add_u32 s%d, s20, s%d" % (SRD_F, S_T1)); A("s_addc_u32 s%d, s21, 0" % (SRD_F + 1))
    A("s_and_b32 s%d, s%d, 0xffff" % (SRD_F + 1, SRD_F + 1)); A("s_mov_b32 s%d, 64" % (SRD_F + 2)); A("s_mov_b32 s%d, 0x20000" % (SRD_F + 3))
    A("v_mov_b32 v6, %d" % TAG_OFF)
    A("s_mov_b32 s%d, 0" % S_T1)
    A.label(L("L_tag"))
    A("buffer_load_dword v5, v6, s[%d:%d], 0 offen sc1" % (SRD_D, SRD_D + 3))
    A("s_waitcnt vmcnt(0)")
    A("v_readfirstlane_b32 s%d, v5" % S_E3)
    A("s_add_u32 s%d, s%d, 1" % (S_T1, S_T1))
    A("s_nop 2")
    A("s_cmp_lg_u32 s%d, 0" % S_E3)
    A("s_cbranch_scc1 %s" % L("L_tagok"))
    A("s_cmp_lt_u32 s%d, 200000" % S_T1)
    A("s_cbranch_scc1 %s" % L("L_tag"))
    A.label(L("L_tagok"))

def tail_signal(A, L, jexpr):
    SRD_F = 36
    A("s_cmp_lg_u32 s%d, 0" % S_WAVE)
    A("s_cbranch_scc1 %s" % L("L_t_nosig"))
    jexpr()
    A("s_lshl_b32 s%d, s%d, 2" % (S_T0, S_T0))
    A("v_mov_b32 v4, s%d" % S_E3); A("v_mov_b32 v5, s%d" % S_T0)
    A("s_mov_b64 exec, 1")
    A("buffer_store_dword v4, v5, s[%d:%d], 0 offen sc0 sc1" % (SRD_F, SRD_F + 3))
    A("s_mov_b64 exec, -1")
    A.label(L("L_t_nosig"))

def att_tail(A, sfx):
    L = lambda s: "%s_%s" % (s, sfx)
    tail_common(A, L)
    tail_signal(A, L, lambda: A("s_add_u32 s%d, s%d, 12" % (S_T0, S_ROLE)))

def mlp_tail(A, sfx):
    L = lambda s: "%s_%s" % (s, sfx)
    SRD_O, SRD_PP, SRD_F = 28, 32, 36
    vL, vT, vPZ, vPA = 1, 4, 5, 6
    PB = [16, 96]; XR = [8, 12]; SM = [80, 160]; PO = [2, 7]; XO = [3, 240]
    tail_common(A, L)
    tail_signal(A, L, lambda: A("s_mov_b32 s%d, s%d" % (S_T0, S_ROLE)))
    srd(A, SRD_X, 4, 5, S * D * 2)
    srd(A, SRD_O, 12, 13, S * D * 2)
    srd(A, SRD_PP, 20, 21, NPART * PART_BYTES)
    A("s_mul_i32 s%d, s%d, 12" % (S_E0, S_ROLE))
    def addr(st, hb_sreg):
        po, xo = PO[st], XO[st]
        A("s_lshr_b32 s%d, s%d, 1" % (S_T1, hb_sreg)); A("s_and_b32 s%d, s%d, 1" % (S_T2, hb_sreg))
        A("s_mul_i32 s%d, s%d, 3641" % (S_T3, S_T1)); A("s_lshr_b32 s%d, s%d, 16" % (S_T3, S_T3))
        A("s_mul_i32 s%d, s%d, 18" % (S_E1, S_T3)); A("s_sub_u32 s%d, s%d, s%d" % (S_E1, S_T1, S_E1))
        A("s_mul_i32 s%d, s%d, 72" % (S_E2, S_TILE)); A("s_add_u32 s%d, s%d, s%d" % (S_E2, S_E2, S_T1))
        A("s_lshl_b32 s%d, s%d, 1" % (S_E2, S_E2)); A("s_add_u32 s%d, s%d, s%d" % (S_E2, S_E2, S_T2)); A("s_lshl_b32 s%d, s%d, 10" % (S_E2, S_E2))
        A("v_lshlrev_b32 v%d, 4, v%d" % (po, vL)); A("v_add_u32 v%d, s%d, v%d" % (po, S_E2, po))
        A("s_lshl_b32 s%d, s%d, 7" % (S_E2, S_TILE)); A("s_lshl_b32 s%d, s%d, 5" % (S_T3, S_T3)); A("s_add_u32 s%d, s%d, s%d" % (S_E2, S_E2, S_T3))
        A("v_and_b32 v%d, 31, v%d" % (xo, vL)); A("v_add_u32 v%d, s%d, v%d" % (xo, S_E2, xo))
        A("v_mul_u32_u24 v%d, 1152, v%d" % (xo, xo))
        A("v_lshrrev_b32 v%d, 5, v%d" % (vT, vL)); A("v_lshl_add_u32 v%d, v%d, 4, v%d" % (xo, vT, xo))
        A("s_lshl_b32 s%d, s%d, 6" % (S_E1, S_E1)); A("s_lshl_b32 s%d, s%d, 5" % (S_T2, S_T2)); A("s_add_u32 s%d, s%d, s%d" % (S_E1, S_E1, S_T2))
        A("v_add_u32 v%d, s%d, v%d" % (xo, S_E1, xo))
        A("buffer_load_dwordx4 v[%d:%d], v%d, s[%d:%d], 0 offen" % (XR[st], XR[st] + 3, xo, SRD_X, SRD_X + 3))
    A("s_add_u32 s%d, s%d, s%d" % (S_T0, S_E0, S_WAVE)); A("s_mov_b32 s%d, s%d" % (S_A, S_T0))
    addr(0, S_A)
    A("s_and_b32 s%d, s%d, 3" % (S_T0, S_WAVE)); A("s_add_u32 s%d, s%d, s%d" % (S_A, S_E0, S_T0)); A("s_add_u32 s%d, s%d, 8" % (S_A, S_A))
    addr(1, S_A)
    A("v_lshlrev_b32 v%d, 2, v%d" % (vPA, vL))
    def poll(mask, name):
        A("s_cmp_lg_u32 s%d, 0" % S_WAVE)
        A("s_cbranch_scc1 %s" % L(name + "_go"))
        A("s_mov_b32 s%d, 0" % S_T1)
        A.label(L(name + "_poll"))
        A("buffer_load_dword v%d, v%d, s[%d:%d], 0 offen sc1" % (vPZ, vPA, SRD_F, SRD_F + 3))
        A("s_waitcnt vmcnt(0)")
        A("v_cmp_eq_u32 vcc, s%d, v%d" % (S_E3, vPZ))
        A("s_add_u32 s%d, s%d, 1" % (S_T1, S_T1))
        A("s_nop 3")
        A("s_and_b32 s%d, vcc_lo, 0x%x" % (S_T0, mask))
        A("s_cmp_eq_u32 s%d, 0x%x" % (S_T0, mask))
        A("s_cbranch_scc1 %s" % L(name + "_go"))
        A("s_cmp_ge_u32 s%d, 200000" % S_T1)
        A("s_cbranch_scc1 %s" % L(name + "_go"))
        A("s_sleep 8")
        A("s_branch %s" % L(name + "_poll"))
        A.label(L(name + "_go"))
        A("s_barrier")
    T2 = [176, 192]
    def loads(st, plist, base):
        for n, p in enumerate(plist):
            A("s_mov_b32 s%d, %d" % (S_T3, p * PART_BYTES))
            A("buffer_load_dwordx4 v[%d:%d], v%d, s[%d:%d], s%d offen sc1" % (base + 4*n, base + 4*n + 3, PO[st], SRD_PP, SRD_PP + 3, S_T3))
    def accum(st, n, base, younger):
        sm = SM[st]
        for p in range(n):
            A("s_waitcnt vmcnt(%d)" % (n - 1 - p + younger))
            for q in range(4):
                A("v_dot2_f32_bf16 v%d, v%d, s%d, v%d" % (sm + 2*q, base + 4*p + q, S_SEL0, sm + 2*q))
                A("v_dot2_f32_bf16 v%d, v%d, s%d, v%d" % (sm + 2*q + 1, base + 4*p + q, S_SEL1, sm + 2*q + 1))
    def finish(st):
        sm = SM[st]; xr = XR[st]
        A("s_nop 2")
        for q in range(4): A("v_permlane32_swap_b32 v%d, v%d" % (sm + q, sm + 4 + q))
        A("s_nop 1")
        for q in range(4):
            A("v_lshlrev_b32 v%d, 16, v%d" % (vT, xr + q))
            A("v_and_b32 v%d, 0xffff0000, v%d" % (vPZ, xr + q))
            A("v_add_f32 v%d, v%d, v%d" % (sm + 2*q, sm + 2*q, vT))
            A("v_add_f32 v%d, v%d, v%d" % (sm + 2*q + 1, sm + 2*q + 1, vPZ))
        for q in range(4): A("v_cvt_pk_bf16_f32 v%d, v%d, v%d" % (xr + q, sm + 2*q, sm + 2*q + 1))
        A("buffer_store_dwordx4 v[%d:%d], v%d, s[%d:%d], 0 offen" % (xr, xr + 3, XO[st], SRD_O, SRD_O + 3))
    for st in range(2):
        for q in range(8): A("v_mov_b32 v%d, 0" % (SM[st] + q))
    poll(0x0fff, "L_pa")
    two = L("L_two");
    A("s_cmp_ge_u32 s%d, 4" % S_WAVE)
    A("s_cbranch_scc1 %s" % L("L_a_one"))
    loads(0, range(12), PB[0]); loads(1, range(12), PB[1])
    accum(0, 12, PB[0], 12); accum(1, 12, PB[1], 0)
    A("s_branch %s" % L("L_a_done"))
    A.label(L("L_a_one"))
    loads(0, range(12), PB[0])
    accum(0, 12, PB[0], 0)
    A.label(L("L_a_done"))
    poll(0xf000, "L_pb")
    A("s_cmp_ge_u32 s%d, 4" % S_WAVE)
    A("s_cbranch_scc1 %s" % L("L_b_one"))
    loads(0, range(12, 16), T2[0]); loads(1, range(12, 16), T2[1])
    accum(0, 4, T2[0], 4); accum(1, 4, T2[1], 0)
    finish(0); finish(1)
    A("s_branch %s" % L("L_b_done"))
    A.label(L("L_b_one"))
    loads(0, range(12, 16), T2[0])
    accum(0, 4, T2[0], 0)
    finish(0)
    A.label(L("L_b_done"))


def code_prefetch(A, vdst, va, nins):
    if opt.exp != "cpf": return
    A("s_getpc_b64 s[%d:%d]" % (S_E0 + 1, S_E0 + 2))
    A("v_and_b32 v%d, 63, v0" % va)
    A("v_lshlrev_b32 v%d, 7, v%d" % (va, va))
    A("s_lshl_b32 s%d, s%d, 13" % (S_T0, S_R))
    A("v_add_u32 v%d, s%d, v%d" % (va, S_T0, va))
    A("v_mov_b32 v%d, s%d" % (va + 1, S_E0 + 2))
    A("v_add_co_u32 v%d, vcc, s%d, v%d" % (va, S_E0 + 1, va))
    A("s_nop 1")
    A("v_addc_co_u32 v%d, vcc, 0, v%d, vcc" % (va + 1, va + 1))
    A("global_load_dword v%d, v[%d:%d], off" % (vdst, va, va + 1))
    A.vm.issue(("cpf",))
```

```python
import sys
from g2_common import *
from g2_mlp import mlp_role
try:
    from g2_att import att_role
except ImportError:
    att_role = None

def k1_kernel(with_att=True):
    A = K()
    A("s_cmp_ge_u32 s2, 256")
    A("s_cbranch_scc1 L_k1_end")
    A("s_load_dwordx16 s[4:19], s[0:1], 0")
    A("s_load_dwordx2 s[20:21], s[0:1], 64")
    if opt.stamps or opt.dbgt: A("s_memrealtime s[92:93]")
    A("v_lshrrev_b32 v1, 6, v0")
    A("s_nop 0")
    A("v_readfirstlane_b32 s%d, v1" % S_WAVE)
    A("s_mov_b32 s%d, 0x3f803f80" % S_ONES)
    A("s_mov_b32 s%d, 0x%x" % (S_L2E, LOG2E))
    A("s_mov_b32 s%d, 0x00003f80" % S_SEL0)
    A("s_mov_b32 s%d, 0x3f800000" % S_SEL1)
    A("s_and_b32 s%d, s%d, 3" % (S_R, S_WAVE))
    A("s_lshr_b32 s%d, s%d, 2" % (S_C, S_WAVE))
    A("s_and_b32 s%d, s2, 7" % S_T0)
    A("s_lshr_b32 s%d, s2, 3" % S_T1)
    A("s_lshr_b32 s%d, s%d, 1" % (S_T2, S_T0))
    A("s_and_b32 s%d, s%d, 1" % (S_T0, S_T0))
    A("s_lshl_b32 s%d, s%d, 3" % (S_T0, S_T0))
    A("s_and_b32 s%d, s%d, 7" % (S_TILE, S_T1))
    A("s_add_u32 s%d, s%d, s%d" % (S_TILE, S_TILE, S_T0))
    A("s_lshr_b32 s%d, s%d, 3" % (S_T1, S_T1))
    A("s_mul_i32 s%d, s%d, 3" % (S_T3, S_T2))
    A("s_add_u32 s%d, s%d, s%d" % (S_ROLE, S_T3, S_T1))
    A("s_sub_u32 s%d, s%d, 1" % (S_ROLE, S_ROLE))
    A("s_waitcnt lgkmcnt(0)")
    srd(A, SRD_X, S_X, S_X + 1, S * D * 2)
    publish_tag(A)
    A("s_cmp_lg_u32 s%d, 0" % S_T1)
    A("s_cbranch_scc1 L_mlp")
    A("s_mov_b32 s%d, s%d" % (S_ROLE, S_T2))
    if not with_att: A("s_branch L_k1_end")
    if with_att:
        A("s_cmp_eq_u32 s%d, 0" % S_C)
        A("s_cbranch_scc1 L_att0")
        A("s_branch L_att1")
    A.label("L_k1_end")
    A("s_endpgm")
    A.label("L_mlp")
    A("s_cmp_eq_u32 s%d, 0" % S_C)
    A("s_cbranch_scc1 L_mlp0")
    A("s_branch L_mlp1")
    if with_att:
        A.label("L_att0")
        att_role(A, 0)
        A.label("L_att1")
        att_role(A, 1)
    A.label("L_mlp0")
    mlp_role(A, 0)
    A.label("L_mlp1")
    mlp_role(A, 1)
    return A

def k3_kernel(parts):
    A = K()
    ks = [0]
    def st3():
        if opt.exp == "k3st":
            A("s_memtime s[%d:%d]" % (64 + 2 * ks[0], 65 + 2 * ks[0])); ks[0] += 1
    NO, NP = 18, 4
    O, P, X, ACC, SM, WF = 16, 88, 152, 168, 200, 232
    A("s_cmp_ge_u32 s2, 144")
    A("s_cbranch_scc1 L_k3_end")
    if opt.dbgt: A("s_memrealtime s[40:41]")
    if opt.exp == "k3st": A("s_memrealtime s[84:85]")
    st3()
    A("s_load_dwordx2 s[4:5], s[0:1], 0")
    A("s_load_dwordx2 s[6:7], s[0:1], 48")
    A("s_load_dwordx2 s[8:9], s[0:1], 64")
    A("s_load_dwordx2 s[10:11], s[0:1], 16")
    A("v_and_b32 v1, 63, v0")
    A("v_lshrrev_b32 v2, 6, v0")
    A("s_nop 0")
    A("v_readfirstlane_b32 s30, v2")
    A("s_lshr_b32 s33, s2, 3")
    A("s_cmp_ge_u32 s33, 9")
    A("s_cselect_b32 s31, 1, 0")
    A("s_mul_i32 s32, s31, 9")
    A("s_sub_u32 s32, s33, s32")
    A("s_and_b32 s33, s2, 7"); A("s_lshl_b32 s33, s33, 1"); A("s_add_u32 s31, s31, s33")
    A("s_lshl_b32 s35, s31, 2"); A("s_add_u32 s35, s35, s30")
    A("v_lshrrev_b32 v3, 3, v1")
    A("s_mul_i32 s37, s30, 144")
    A("v_add_u32 v3, s37, v3")
    A("v_mul_u32_u24 v3, 1152, v3")
    A("v_and_b32 v4, 7, v1"); A("v_lshrrev_b32 v5, 2, v1"); A("v_and_b32 v5, 4, v5"); A("v_xor_b32 v4, v4, v5")
    A("v_lshl_add_u32 v3, v4, 4, v3")
    A("s_mul_i32 s38, s30, 18432")
    A("s_lshl_b32 s39, s32, 7")
    A("v_lshlrev_b32 v6, 4, v1")
    A("s_waitcnt lgkmcnt(0)")
    srd(A, 16, 4, 5, S * D * 2)
    srd(A, 20, 6, 7, S * D * 2)
    srd(A, 24, 8, 9, NPART * PART_BYTES)
    srd(A, 44, 10, 11, D * D * 2)
    A("s_mul_i32 s42, s35, %d" % (36 * 1024)); A("s_add_u32 s42, s42, %d" % WS_OF)
    A("s_add_u32 s48, s8, s42"); A("s_addc_u32 s49, s9, 0"); A("s_and_b32 s49, s49, 0xffff"); A("s_mov_b32 s50, %d" % (36 * 1024)); A("s_mov_b32 s51, 0x20000")
    A("s_mul_i32 s42, s35, 18"); A("s_lshl_b32 s43, s32, 1"); A("s_add_u32 s42, s42, s43"); A("s_lshl_b32 s42, s42, 11")
    A("v_add_u32 v7, s42, v6")
    def pload(n):
        A("s_mov_b32 s43, %d" % (parts[n] * PART_BYTES))
        for h in range(4):
            r = P + 16 * (n % NP) + 4 * h
            A("buffer_load_dwordx4 v[%d:%d], v7, s[24:27], s43 offen offset:%d" % (r, r + 3, h * 1024))
            A.vm.issue(("p", n, h))
    def oload(kk):
        r = O + 4 * (kk % NO)
        A("s_mov_b32 s43, %d" % ((kk // 4) * 4096))
        A("buffer_load_dwordx4 v[%d:%d], v6, s[48:51], s43 offen offset:%d" % (r, r + 3, (kk % 4) * 1024))
        A.vm.issue(("o", kk))
    for n in range(NP): pload(n)
    for q in range(18):
        A("s_add_u32 m0, s38, %d" % (q * 1024))
        A("s_add_u32 s43, s39, %d" % (q * 8 * 1152))
        A("buffer_load_dwordx4 v3, s[44:47], s43 offen lds")
        A.vm.issue(("wo", q))
    for kk in range(NO): oload(kk)
    A("v_and_b32 v8, 31, v1")
    A("s_lshl_b32 s42, s35, 5")
    A("v_add_u32 v8, s42, v8")
    A("v_mul_u32_u24 v8, 1152, v8")
    A("v_lshrrev_b32 v9, 5, v1")
    A("v_lshl_add_u32 v8, v9, 4, v8")
    A("v_add_u32 v8, s39, v8")
    A("v_lshrrev_b32 v10, 2, v1"); A("v_and_b32 v10, 3, v10")
    A("v_lshrrev_b32 v11, 4, v1"); A("v_and_b32 v11, 1, v11"); A("v_lshlrev_b32 v11, 1, v11")
    A("v_lshrrev_b32 v12, 1, v1"); A("v_and_b32 v12, 1, v12"); A("v_add_u32 v11, v11, v12")
    A("v_lshrrev_b32 v12, 1, v10"); A("v_lshlrev_b32 v12, 2, v12"); A("v_xor_b32 v11, v11, v12")
    A("v_lshlrev_b32 v11, 4, v11")
    A("v_and_b32 v12, 1, v1"); A("v_lshl_add_u32 v11, v12, 3, v11")
    A("v_lshl_add_u32 v12, v9, 3, v10"); A("v_lshl_add_u32 v11, v12, 7, v11")
    A("v_xor_b32 v12, 64, v11")
    A("v_add_u32 v13, 36864, v11"); A("v_add_u32 v14, 36864, v12")
    A("s_mov_b32 s28, 0x00003f80"); A("s_mov_b32 s29, 0x3f800000")
    for q in range(32): A("v_mov_b32 v%d, 0" % (SM + q))
    def psum(n):
        A.wait(vm=[("p", n, 3)])
        for w_ in range(16):
            A("v_dot2_f32_bf16 v%d, v%d, s28, v%d" % (SM + 2*w_, P + 16*(n % NP) + w_, SM + 2*w_))
            A("v_dot2_f32_bf16 v%d, v%d, s29, v%d" % (SM + 2*w_ + 1, P + 16*(n % NP) + w_, SM + 2*w_ + 1))
        if n + NP < len(parts): pload(n + NP)
    st3()
    for n in range(NP): psum(n)
    st3()
    def wread(kk):
        for cb in range(2):
            f = WF + 8 * (kk % 2) + 4 * cb
            base, off = (11 + cb, kk * 2048) if kk < 18 else (13 + cb, (kk - 18) * 2048)
            A("ds_read_b64_tr_b16 v[%d:%d], v%d offset:%d" % (f, f + 1, base, off))
            A("ds_read_b64_tr_b16 v[%d:%d], v%d offset:%d" % (f + 2, f + 3, base, off + 512))
            A.lg.issue(("w", kk, cb, 0)); A.lg.issue(("w", kk, cb, 1))
    A.wait(vm=[("wo", 17)])
    A("s_barrier")
    st3()
    wread(0)
    for kk in range(36):
        A.wait(vm=[("o", kk)], lg=[("w", kk, 1, 1)])
        r = O + 4 * (kk % NO)
        for cb in range(2):
            f = WF + 8 * (kk % 2) + 4 * cb; ac = ACC + 16 * cb
            cs = "0" if kk == 0 else "v[%d:%d]" % (ac, ac + 15)
            A("v_mfma_f32_32x32x16_bf16 v[%d:%d], v[%d:%d], v[%d:%d], %s" % (ac, ac + 15, f, f + 3, r, r + 3, cs))
            if cb == 0 and kk + 1 < 36: wread(kk + 1)
        if kk + NO < 36: oload(kk + NO)
        if kk == 8:
            st3()
            for n in range(NP, 2 * NP): psum(n)
            st3()
        if kk == 26:
            for n in range(2 * NP, len(parts)): psum(n)
    st3()
    for h in range(4):
        A("buffer_load_dwordx4 v[%d:%d], v8, s[16:19], 0 offen offset:%d" % (X + 4*h, X + 4*h + 3, (h >> 1) * 64 + (h & 1) * 32))
    A("s_nop 7"); A("s_nop 7")
    for q in range(32): A("v_add_f32 v%d, v%d, v%d" % (SM + q, SM + q, ACC + q))
    A("s_nop 1")
    for h in range(4):
        for q in range(4): A("v_permlane32_swap_b32 v%d, v%d" % (SM + 8*h + q, SM + 8*h + 4 + q))
    A("s_waitcnt vmcnt(0)")
    for h in range(4):
        for q in range(4):
            A("v_lshlrev_b32 v2, 16, v%d" % (X + 4*h + q))
            A("v_and_b32 v3, 0xffff0000, v%d" % (X + 4*h + q))
            A("v_add_f32 v%d, v%d, v2" % (SM + 8*h + 2*q, SM + 8*h + 2*q))
            A("v_add_f32 v%d, v%d, v3" % (SM + 8*h + 2*q + 1, SM + 8*h + 2*q + 1))
        for q in range(4):
            A("v_cvt_pk_bf16_f32 v%d, v%d, v%d" % (X + 4*h + q, SM + 8*h + 2*q, SM + 8*h + 2*q + 1))
        A("buffer_store_dwordx4 v[%d:%d], v8, s[20:23], 0 offen offset:%d" % (X + 4*h, X + 4*h + 3, (h >> 1) * 64 + (h & 1) * 32))
    if opt.exp == "k3st":
        st3()
        A("s_memrealtime s[86:87]")
        A("s_waitcnt lgkmcnt(0)")
        A("s_cmp_lg_u32 s30, 0"); A("s_cbranch_scc1 L_k3_end")
        A("s_lshl_b32 s42, s2, 6"); A("s_add_u32 s42, s42, %d" % (WS_STAMP + 65536))
        A("s_add_u32 s56, s8, s42"); A("s_addc_u32 s57, s9, 0"); A("s_and_b32 s57, s57, 0xffff"); A("s_mov_b32 s58, 64"); A("s_mov_b32 s59, 0x20000")
        A("v_mov_b32 v2, 0")
        for j in range(ks[0]):
            A("v_mov_b32 v3, s%d" % (64 + 2 * j)); A("buffer_store_dword v3, v2, s[56:59], 0 offen offset:%d" % (4 * j))
        A("v_mov_b32 v3, s84"); A("buffer_store_dword v3, v2, s[56:59], 0 offen offset:56")
        A("v_mov_b32 v3, s86"); A("buffer_store_dword v3, v2, s[56:59], 0 offen offset:60")
    if opt.dbgt:
        A("s_memrealtime s[52:53]")
        A("s_load_dwordx2 s[54:55], s[0:1], 56")
        A("s_waitcnt lgkmcnt(0)")
        A("s_mov_b32 s56, s54"); A("s_and_b32 s57, s55, 0xffff"); A("s_mov_b32 s58, 256"); A("s_mov_b32 s59, 0x20000")
        A("s_cmp_lg_u32 s2, 0")
        A("s_cbranch_scc1 L_k3_end")
        A("s_add_u32 s60, s8, %d" % WS_STAMP); A("s_addc_u32 s61, s9, 0"); A("s_and_b32 s61, s61, 0xffff"); A("s_mov_b32 s62, 4096"); A("s_mov_b32 s63, 0x20000")
        A("v_lshlrev_b32 v2, 5, v1")
        A("buffer_load_dwordx4 v[16:19], v2, s[60:63], 0 offen")
        A("buffer_load_dwordx4 v[20:23], v2, s[60:63], 0 offen offset:16")
        A("s_waitcnt vmcnt(0)")
        A("v_min_u32 v16, v16, v18"); A("v_min_u32 v20, v20, v22"); A("v_min_u32 v16, v16, v20")
        A("v_max_u32 v17, v17, v19"); A("v_max_u32 v21, v21, v23"); A("v_max_u32 v17, v17, v21")
        A("v_not_b32 v16, v16")
        A("v_mov_b32 v24, 0"); A("v_mov_b32 v25, 4")
        A("buffer_atomic_umax v16, v24, s[56:59], 0 offen")
        A("buffer_atomic_umax v17, v25, s[56:59], 0 offen")
        A("v_mov_b32 v26, s40"); A("v_mov_b32 v27, 8")
        A("buffer_store_dword v26, v27, s[56:59], 0 offen")
        A("v_mov_b32 v26, s52"); A("v_mov_b32 v27, 12")
        A("buffer_store_dword v26, v27, s[56:59], 0 offen")
    A.label("L_k3_end")
    A("s_endpgm")
    return A

HDR = """; Kernarg layout for this problem (72 bytes, ptrs only, base s[0:1]):
"""

MAIN = "parallel_sum__linear_attn_block__dense_activation_silu__prompt_kernel"
def build_all(path, with_att=True):
    k1 = k1_kernel(with_att)
    t1, r1 = kernel_wrap(MAIN, k1.text(), 256, 96)
    hdr = HDR + "; @launch grid=(256,1,1) block=(512,1,1) lds=163840\n"
    open(path, "w").write(hdr + '.amdgcn_target "amdgcn-amd-amdhsa--gfx950"\n' + t1 + r1)

if __name__ == "__main__":
    out = sys.argv[1]
    for a in sys.argv[2:]:
        if a == "stamps": opt.stamps = True
        elif a == "dbgt": opt.dbgt = True
        elif a == "notouch": opt.touch = False
        elif a.startswith("steps="): opt.stamp_steps = tuple(int(x) for x in a[6:].split(","))
        elif a.startswith("stf="): opt.stf = " " + a[4:].replace("+", " ") if a[4:] else ""
        elif a.startswith("exp="): opt.exp = a[4:]
        elif a.startswith("lvl="): opt.lvl = int(a[4:])
        elif a.startswith("swave="): opt.swave = int(a[6:])
    build_all(out, with_att=("noatt" not in sys.argv and att_role is not None))
    build(out)
    print("built", out)
```
